```python
import torch

def _softmax(x, axis=-1):
    return torch.softmax(x, dim=axis)
def _gelu(x):
    return torch.nn.functional.gelu(x, approximate="tanh")
def _silu(x):
    return torch.nn.functional.silu(x)
def _sigmoid(x):
    return torch.sigmoid(x)
def _layernorm(x, axis=-1, eps=1e-5):
    m = x.mean(dim=axis, keepdim=True)
    v = x.var(dim=axis, keepdim=True, unbiased=False)
    return (x - m) / torch.sqrt(v + eps)
def _scatter_add(tgt, idx, src, axis=0):
    return tgt.clone().index_add_(axis, idx, src)
def _segment_sum(src, seg, n):
    out = torch.zeros((n,) + src.shape[1:], dtype=src.dtype)
    return out.index_add_(0, seg, src)
def _pad(x, pw):
    flat = tuple(v for pair in reversed(pw) for v in pair)
    return torch.nn.functional.pad(x, flat)

kernel_name = 'interleave_layers__linear_kernel_hedgehog__dense_activation_squared_relu__prompt'

def setup_inputs():

    _w = (lambda a: (lambda t: t.to(torch.bfloat16) if t.is_floating_point() else t)(torch.as_tensor(a)))
    def _A_setup():
        B, S, D, H = 1, 2048, 640, 32
        Dh = D // H
        return {
            "x": _w((lambda *s: torch.randn(*s, dtype=torch.bfloat16) * 0.05)(B, S, D)),
            "wqkv": _w((lambda *s: torch.randn(*s, dtype=torch.bfloat16) * 0.2)(D, 3 * D)),
            "w_phi": _w((lambda *s: torch.randn(*s, dtype=torch.bfloat16) * 0.2)(H, Dh, Dh) * (Dh ** -0.5)),
            "wo": _w((lambda *s: torch.randn(*s, dtype=torch.bfloat16) * 0.05)(D, D)),
        }
    _A_in = _A_setup()

    def _B_setup():
        B, S, D, F = 1, 2048, 640, 1536
        return {
            "x": _w((lambda *s: torch.randn(*s, dtype=torch.bfloat16) * 0.05)(B, S, D)),
            "w1": _w((lambda *s: torch.randn(*s, dtype=torch.bfloat16) * 0.05)(D, F)),
            "b1": _w((lambda *s: torch.randn(*s, dtype=torch.bfloat16) * 0.2)(F)),
            "w2": _w((lambda *s: torch.randn(*s, dtype=torch.bfloat16) * 0.05)(F, D)),
            "b2": _w((lambda *s: torch.randn(*s, dtype=torch.bfloat16) * 0.8)(D)),
        }
    _B_in = _B_setup()

    return {
        "A_x": _A_in["x"],
        "A_wqkv": _A_in["wqkv"],
        "A_w_phi": _A_in["w_phi"],
        "A_wo": _A_in["wo"],
        "B_x": _B_in["x"],
        "B_w1": _B_in["w1"],
        "B_b1": _B_in["b1"],
        "B_w2": _B_in["w2"],
        "B_b2": _B_in["b2"],
    }

def reference(A_x, A_wqkv, A_w_phi, A_wo, B_x, B_w1, B_b1, B_w2, B_b2):
    def _A_ref(x, wqkv, w_phi, wo):
        B, S, D = x.shape
        H = 32; Dh = D // H
        qkv = (lambda x, *d: x.permute(*d))((x @ wqkv).reshape(B, S, 3, H, Dh), 2, 0, 3, 1, 4)
        q, k, v = qkv[0], qkv[1], qkv[2]
        pq = torch.einsum("bhsd,hdf->bhsf", q, w_phi)
        pk = torch.einsum("bhsd,hdf->bhsf", k, w_phi)
        phi_q = torch.concatenate([_softmax(pq, axis=-1), _softmax(-pq, axis=-1)], axis=-1)
        phi_k = torch.concatenate([_softmax(pk, axis=-1), _softmax(-pk, axis=-1)], axis=-1)
        kv = torch.einsum("bhsf,bhsd->bhfd", phi_k, v)
        z  = torch.einsum("bhsf->bhf", phi_k)
        num = torch.einsum("bhqf,bhfd->bhqd", phi_q, kv)
        den = torch.einsum("bhqf,bhf->bhq", phi_q, z)[..., None] + 1e-6
        o = num / den
        return (lambda x, *d: x.permute(*d))(o, 0, 2, 1, 3).reshape(B, S, D) @ wo

    def _B_ref(x, w1, b1, w2, b2):
        h = torch.einsum("bsd,df->bsf", x, w1) + b1
        zero = torch.zeros_like(h)
        r = torch.where(h > zero, h, zero)
        h = r * r
        out = torch.einsum("bsf,fd->bsd", h, w2) + b2
        return out

    x = A_x
    x = x + _A_ref(_layernorm(x, axis=-1), A_wqkv, A_w_phi, A_wo)
    x = x + _B_ref(_layernorm(x, axis=-1), B_w1, B_b1, B_w2, B_b2)
    x = x + _A_ref(_layernorm(x, axis=-1), A_wqkv, A_w_phi, A_wo)
    x = x + _B_ref(_layernorm(x, axis=-1), B_w1, B_b1, B_w2, B_b2)
    return x
```

```python
import re

REG_RE = re.compile(r'^(-?)\|?(?:abs\()?([vas])(?:(\d+)|\[(\d+):(\d+)\])\)?\|?$')
TRANS = ('v_exp_f32', 'v_log_f32', 'v_rcp_f32', 'v_rsq_f32', 'v_sqrt_f32', 'v_sin_f32', 'v_cos_f32')
NO_DST_SALU = ('s_cmp', 's_waitcnt', 's_nop', 's_barrier', 's_branch', 's_cbranch', 's_endpgm', 's_sleep',
               's_setprio', 's_bitcmp', 's_setpc', 's_sendmsg', 's_setreg')


def regs_of(tok):
    tok = tok.strip()
    if tok == 'vcc':
        return {('s', 106), ('s', 107)}
    if tok == 'vcc_lo':
        return {('s', 106)}
    if tok == 'vcc_hi':
        return {('s', 107)}
    if tok == 'exec':
        return {('s', 126), ('s', 127)}
    if tok == 'exec_lo':
        return {('s', 126)}
    if tok == 'exec_hi':
        return {('s', 127)}
    if tok == 'm0':
        return {('s', 124)}
    m = REG_RE.match(tok)
    if not m:
        return set()
    k = m.group(2)
    if m.group(3) is not None:
        return {(k, int(m.group(3)))}
    return {(k, i) for i in range(int(m.group(4)), int(m.group(5)) + 1)}


def split_ops(s):
    out, depth, cur = [], 0, ''
    for ch in s:
        if ch in '[(':
            depth += 1
        elif ch in '])':
            depth -= 1
        if ch == ',' and depth == 0:
            out.append(cur.strip())
            cur = ''
        else:
            cur += ch
    if cur.strip():
        out.append(cur.strip())
    return out


class Ins:
    __slots__ = ('text', 'op', 'ops', 'mods', 'rd', 'wr', 'cls', 'tag', 'track', 'srcc', 'srcab', 'passes', 'wide',
                 'data', 'sel')

    def __init__(self, text, tag=None, track=True):
        self.text, self.tag, self.track = text, tag, track
        self.rd, self.wr, self.srcc, self.srcab, self.data = set(), set(), set(), set(), set()
        self.passes, self.wide, self.sel = 0, False, False
        t = text.strip()
        if t.endswith(':') or t.startswith('.') or t.startswith(';') or not t:
            self.op, self.ops, self.mods = t, [], ''
            self.cls = 'label' if t.endswith(':') else 'dir'
            return
        parts = t.split(None, 1)
        self.op = parts[0]
        rest = parts[1] if len(parts) > 1 else ''
        ops = split_ops(rest)
        mods = ''
        if ops:
            last = ops[-1].split(None, 1)
            if len(last) > 1 and not ops[-1].startswith('hwreg') and not self.op.startswith('s_waitcnt'):
                ops[-1], mods = last[0], last[1]
        self.ops, self.mods = ops, mods
        R = [regs_of(o) for o in ops]
        op = self.op
        u = lambda xs: set().union(*xs) if xs else set()
        if op.startswith('v_mfma'):
            self.cls = 'mfma'
            self.wr, self.srcab, self.srcc = R[0], R[1] | R[2], R[3]
            self.rd = self.srcab | self.srcc
            self.passes = 8 if '32x32' in op else 4
        elif op.startswith('buffer_load') or op.startswith('global_load'):
            self.cls = 'vmem'
            if ' lds' in ' ' + mods:
                self.rd = u(R) | {('s', 124)}
            else:
                self.wr, self.rd = R[0], u(R[1:])
        elif op.startswith('buffer_store'):
            self.cls = 'vmem'
            self.rd, self.data = u(R), R[0]
            self.wide = op.endswith('x3') or op.endswith('x4')
        elif op.startswith('buffer_atomic'):
            self.cls = 'vmem'
            self.rd = u(R)
            if 'sc0' in mods:
                self.wr = R[0]
        elif op.startswith('buffer_'):
            self.cls = 'vmem'
        elif op.startswith('ds_read') or op.startswith('ds_bpermute') or op.startswith('ds_swizzle'):
            self.cls = 'ds'
            self.wr, self.rd = R[0], u(R[1:])
        elif op.startswith('ds_'):
            self.cls = 'ds'
            self.rd = u(R)
        elif op.startswith('s_load') or op.startswith('s_memtime') or op.startswith('s_memrealtime') \
                or op.startswith('s_buffer_load'):
            self.cls = 'smem'
            self.wr, self.rd = R[0], u(R[1:])
        elif op.startswith('s_'):
            self.cls = 'salu'
            if op.startswith(NO_DST_SALU):
                self.rd = u(R)
            else:
                self.wr, self.rd = R[0], u(R[1:])
                if 'saveexec' in op:
                    self.wr |= regs_of('exec')
            if op.startswith('s_cbranch_vcc'):
                self.rd |= regs_of('vcc')
        elif op.startswith('v_'):
            self.cls = 'valu'
            if 'permlane' in op and 'swap' in op:
                self.wr = R[0] | R[1]
                self.rd = R[0] | R[1]
            elif op.startswith(('v_add_co', 'v_sub_co', 'v_addc_co', 'v_subb_co', 'v_mad_u64', 'v_div_scale')):
                self.wr, self.rd = R[0] | R[1], u(R[2:])
            elif op == 'v_nop':
                pass
            else:
                self.wr, self.rd = R[0], u(R[1:])
                if op.startswith(('v_fmac', 'v_dot2c', 'v_pk_fmac', 'v_writelane')) or '_dpp' in op:
                    self.rd |= R[0]
            self.sel = 'sdwa' in op
        else:
            raise ValueError('unknown instruction class: ' + text)

    def states(self):
        if self.cls in ('label', 'dir'):
            return 0
        if self.op == 's_nop':
            return int(self.ops[0], 0) + 1
        return 1


def need_states(p, c):
    n = 0
    vreg = lambda s: {r for r in s if r[0] != 's'}
    sreg = lambda s: {r for r in s if r[0] == 's'}
    if p.cls == 'valu':
        ws, wv = sreg(p.wr), vreg(p.wr)
        if ws:
            if c.cls == 'vmem' and ws & c.rd:
                n = max(n, 5)
            if c.cls == 'valu' and ws & c.rd:
                n = max(n, 4 if 'lane' in c.op else 2)
            if c.cls == 'valu' and c.op.startswith('v_cndmask') and len(c.ops) == 3 and ('s', 106) in ws:
                n = max(n, 2)
        if wv:
            if c.cls == 'mfma' and wv & c.rd:
                n = max(n, 2)
            if c.cls == 'valu' and wv & c.rd:
                if 'permlane' in c.op or '_dpp' in c.op:
                    n = max(n, 2)
                if c.op.startswith(('v_readlane', 'v_readfirstlane')):
                    n = max(n, 1)
                if p.op.startswith(TRANS) and not c.op.startswith(TRANS):
                    n = max(n, 1)
                if p.sel:
                    n = max(n, 1)
                if p.op.startswith('v_dot'):
                    same_c = c.op == p.op and not (wv & (regs_of(c.ops[1]) | regs_of(c.ops[2])))
                    n = max(n, 0 if same_c else 3)
            if p.op.startswith('v_dot') and c.cls in ('vmem', 'ds', 'mfma') and wv & c.rd:
                n = max(n, 3)
            if p.op.startswith('v_dot') and c.cls == 'valu' and c.op != p.op and wv & c.wr:
                n = max(n, 3)
    elif p.cls == 'mfma':
        big = p.passes == 8
        if c.cls == 'mfma':
            if p.wr & c.srcab:
                n = max(n, 12 if big else 8)
            if p.wr & c.srcc and not (p.wr == c.srcc and p.op == c.op):
                n = max(n, 10 if big else 6)
            if p.wr & c.wr and not (p.wr == c.srcc and p.op == c.op):
                n = max(n, 10 if big else 6)
        elif c.cls in ('valu', 'vmem', 'ds'):
            if p.wr & (c.rd | c.wr):
                n = max(n, 12 if big else 8)
            if p.srcc & c.wr:
                n = max(n, 7 if big else 3)
    elif p.cls == 'vmem':
        if p.wide and p.data & c.wr:
            n = max(n, 2)
    elif p.cls == 'salu':
        if ('s', 124) in p.wr and c.cls == 'vmem' and ('s', 124) in c.rd:
            n = max(n, 1)
    return n


class Asm:
    def __init__(self):
        self.ins = []

    def __call__(self, text, tag=None, track=True):
        for line in text.split('\n'):
            line = line.split(';')[0].rstrip() if not line.strip().startswith(';') else line
            if line.strip():
                self.ins.append(Ins(line.strip(), tag, track))

    def extend(self, other):
        self.ins.extend(other.ins if isinstance(other, Asm) else other)

    def wait_tag(self, tag):
        i = Ins('; wait ' + str(tag))
        i.cls, i.tag = 'waittag', tag
        self.ins.append(i)

    def reset(self):
        i = Ins('; reset')
        i.cls = 'reset'
        self.ins.append(i)

    def finalize(self):
        out, vm, lg = [], [], []
        hist = []
        self.stats = {'nops': 0, 'waits': 0}
        self.pending = []

        def push(i):
            out.append(i)
            if i.states():
                hist.append(i)
                if len(hist) > 24:
                    del hist[0]

        for c in self.ins:
            if c.cls == 'reset':
                vm, lg, hist = [], [], []
                continue
            if c.cls in ('label', 'dir'):
                if c.cls == 'label' and any(e.wr for e in vm + lg):
                    self.pending.append(c.text)
                out.append(c)
                continue
            nvm = nlg = None
            if c.cls == 'waittag':
                idx = max((k for k, e in enumerate(vm) if e.tag == c.tag), default=None)
                if idx is not None:
                    nvm = len(vm) - 1 - idx
            elif c.op == 's_waitcnt':
                m = re.search(r'vmcnt\((\d+)\)', c.text)
                if m:
                    n = int(m.group(1))
                    vm = vm[len(vm) - n:] if n < len(vm) and n else ([] if n == 0 else vm)
                m = re.search(r'lgkmcnt\((\d+)\)', c.text)
                if m:
                    n = int(m.group(1))
                    if n == 0:
                        lg = []
                    elif not any(e.cls == 'smem' for e in lg) and n < len(lg):
                        lg = lg[len(lg) - n:]
                push(c)
                continue
            else:
                touch = c.rd | c.wr
                idx = max((k for k, e in enumerate(vm) if e.wr & touch), default=None)
                if idx is not None:
                    nvm = len(vm) - 1 - idx
                idx = max((k for k, e in enumerate(lg) if e.wr & touch), default=None)
                if idx is not None:
                    nlg = 0 if any(e.cls == 'smem' for e in lg) else len(lg) - 1 - idx
            parts = []
            if nvm is not None:
                vm = vm[len(vm) - nvm:] if nvm else []
                parts.append(f'vmcnt({min(nvm, 63)})')
            if nlg is not None:
                lg = lg[len(lg) - nlg:] if nlg else []
                parts.append(f'lgkmcnt({min(nlg, 15)})')
            if parts:
                push(Ins('s_waitcnt ' + ' '.join(parts)))
                self.stats['waits'] += 1
            if c.cls == 'waittag':
                continue
            need, dist = 0, 0
            for p in reversed(hist):
                need = max(need, need_states(p, c) - dist)
                dist += p.states()
                if dist >= 20:
                    break
            while need > 0:
                k = min(need, 16)
                push(Ins(f's_nop {k - 1}'))
                self.stats['nops'] += k
                need -= k
            push(c)
            if c.track:
                if c.cls == 'vmem':
                    vm.append(c)
                elif c.cls in ('ds', 'smem'):
                    lg.append(c)
        return '\n'.join(('' if i.cls in ('label', 'dir') else '    ') + i.text for i in out) + '\n'


def interleave(main, fill, every):
    out, k = [], 0
    for i, m in enumerate(main):
        out.append(m)
        n = every(i, m)
        out.extend(fill[k:k + n])
        k += n
    out.extend(fill[k:])
    return out


def v(a, n=1):
    return f'v{a}' if n == 1 else f'v[{a}:{a + n - 1}]'


def a_(a, n=1):
    return f'a{a}' if n == 1 else f'a[{a}:{a + n - 1}]'


def s_(a, n=1):
    return f's{a}' if n == 1 else f's[{a}:{a + n - 1}]'
```

```python
from asmlib import *
from layout import *
from gen_pre import *

S_WS, S_X, S_OUT, S_B1, S_B2 = 4, 8, 12, 16, 20
WS, XS, OUT = s_(S_WS, 4), s_(S_X, 4), s_(S_OUT, 4)
sW, sSET, sC, sGI, sJ, sTAG, sSG, sSW, sCNT = 3, 24, 25, 26, 27, 28, 29, 30, 31
sKSA, sKSS, sPAR8, sLO, sHI = 56, 57, 58, 59, 60
sSTAMP = 64

vL16, vL16H, vW1, vXF, vST, vP32, vP8, vOUT, vEX, vZ, vOM, vOR, vT0, vT1, vT2, vT3 = range(16)
R = 16
PA, PB = 36, 40
A00, A01, A10, A11 = 44, 60, 76, 92
E = 108
D16 = 128
KV1 = 144
CB = 160
STT = 168
WO_E = 176
WO_L = 144
aCQ, aC1 = 240, 244
LOG2E = 0x3fb8aa3b
INV640 = 0x3acccccd
EPS_LN = 0x3727c5ac
EPS_DEN = 0x358637bd
F_X, F_O, F_X1, F_H = range(4)


class Cfg:
    st = ''
    stamps = False
    ring1 = 10
    ring3 = 7


def act(L, off):
    return ACT + L * ACT_STRIDE + off


class Main:
    def __init__(self, e, cfg):
        self.e, self.cfg, self.nstamp, self.nlab = e, cfg, 0, 0
        self.stamp_names = []

    def stamp(self, name):
        if not self.cfg.stamps:
            return
        e = self.e
        e('s_memtime s[62:63]')
        e('s_waitcnt lgkmcnt(0)')
        e(f's_mov_b32 s{sSTAMP + self.nstamp}, s62')
        self.stamp_names.append(name)
        self.nstamp += 1
        assert self.nstamp <= 36

    def label(self, base):
        self.nlab += 1
        return f'L{base}_{self.nlab}'

    def flag_base(self, d, L, kind, sidx):
        e = self.e
        e(f's_lshl_b32 s{d}, s{sidx}, 7')
        e(f's_add_u32 s{d}, s{d}, {FL + (L * 4 + kind) * 4096}')

    def poll(self, sflag, vpoll):
        e = self.e
        lab = self.label('poll')
        e(f's_mov_b32 s{sCNT}, 0')
        e(f'{lab}:')
        e(f'buffer_load_dword {v(vT0)}, {v(vpoll)}, {WS}, s{sflag} offen sc1')
        e(f's_add_u32 s{sCNT}, s{sCNT}, 1')
        e(f's_cmp_gt_u32 s{sCNT}, 0x80000')
        e('s_cbranch_scc1 Labort')
        e('s_waitcnt vmcnt(0)')
        e(f'v_cmp_ne_u32 vcc, s{sTAG}, {v(vT0)}')
        e(f's_cbranch_vccnz {lab}')

    def set_flag(self, sflag):
        e = self.e
        e(f'v_mov_b32 {v(vT0)}, s{sTAG}')
        e('s_waitcnt vmcnt(0)')
        e('s_mov_b64 exec, 1')
        e(f'buffer_store_dword {v(vT0)}, {v(vZ)}, {WS}, s{sflag} offen {self.cfg.st}')
        e('s_mov_b64 exec, -1')

    def prologue(self, name):
        e = self.e
        e.reset()
        e(f'.globl {name}\n.p2align 8\n.type {name},@function\n{name}:')
        e('s_cmp_ge_u32 s2, 256')
        e('s_cbranch_scc1 Lend')
        load_kernargs(e)
        if self.cfg.stamps:
            e('s_memrealtime s[100:101]')
        e('v_lshrrev_b32 v1, 6, v0')
        e(f'v_readfirstlane_b32 s{sW}, v1')
        e('v_and_b32 v44, 63, v0')
        e('v_and_b32 v45, 15, v0')
        e('v_bfe_u32 v46, v0, 4, 2')
        e('v_and_b32 v47, 31, v0')
        e('v_bfe_u32 v48, v0, 5, 1')
        e(f'v_lshlrev_b32 {v(vL16)}, 4, v44')
        e(f's_and_b32 s{sSET}, s2, 7')
        e(f's_lshr_b32 s{sC}, s2, 3')
        e(f's_lshr_b32 s{sGI}, s2, 6')
        e(f's_and_b32 s{sJ}, s{sC}, 7')
        e(f's_lshl_b32 s{sSG}, s{sSET}, 2')
        e(f's_add_u32 s{sSW}, s{sSG}, s{sW}')
        e(f's_add_u32 s{sSG}, s{sSG}, s{sGI}')
        e('s_waitcnt lgkmcnt(0)')
        self.stamp('start')
        e(f's_add_u32 s62, s{P_WS}, {EPOCH}')
        e(f's_addc_u32 s63, s{P_WS + 1}, 0')
        e(f's_load_dword s{sTAG}, s[62:63], 0')
        srd(e, S_WS, P_WS, WS_USED)
        e(f's_mul_i32 s61, s{sC}, 81920')
        e(f's_mul_i32 s40, s{sW}, 20480')
        e('s_add_u32 s61, s61, s40')
        for i in range(20):
            if i % 4 == 0:
                e('s_mov_b32 m0, s40')
            e(f'buffer_load_dwordx4 {v(vL16)}, {WS}, s61 offen offset:{(i % 4) * 1024} lds', tag='wq')
            if i % 4 == 3 and i < 19:
                e('s_add_u32 s61, s61, 4096')
                e('s_add_u32 s40, s40, 4096')
        srd(e, S_X, P_X, 2048 * 1280)
        srd(e, S_OUT, P_OUT, 2048 * 1280)
        srd(e, S_B1, P_B1, 3072)
        srd(e, S_B2, P_B2, 1280)
        e(f's_lshr_b32 s{sKSS}, s{sJ}, 1')
        e(f's_mul_i32 s{sKSS}, s{sKSS}, 5')
        e(f's_and_b32 s{sPAR8}, s{sJ}, 1')
        e(f's_mul_i32 s{sKSA}, s{sPAR8}, 3')
        e(f's_add_u32 s{sKSA}, s{sKSA}, s{sKSS}')
        e(f's_add_u32 s{sKSS}, s{sKSS}, 2')
        e(f's_lshl_b32 s{sPAR8}, s{sPAR8}, 3')
        e(f's_mov_b32 s{sLO}, 0x3f80')
        e(f's_mov_b32 s{sHI}, 0x3f800000')
        e(f'v_mul_u32_u24 {v(vOUT)}, 1280, v45')
        e(f'v_lshl_add_u32 {v(vOUT)}, v46, 4, {v(vOUT)}')
        self.rowmajor_offsets(40, 41)
        e(f'buffer_load_dwordx4 v[52:55], {v(vOUT)}, {XS}, s40 offen')
        e(f'buffer_load_dwordx4 v[56:59], {v(vOUT)}, {XS}, s40 offen offset:64')
        e(f'buffer_load_dwordx2 v[60:61], {v(vOUT)}, {XS}, s41 offen')
        e('v_mul_u32_u24 v49, 80, v44')
        e(f's_mul_i32 s40, s{sC}, 5120')
        e(f's_add_u32 s40, s40, {CSQ}')
        for i in range(5):
            e(f'buffer_load_dwordx4 {v(64 + 4 * i, 4)}, v49, {WS}, s40 offen offset:{16 * i}')
        e(f's_mul_i32 s40, s{sC}, 3840')
        e(f's_add_u32 s40, s40, {CS1}')
        for i in range(5):
            e(f'buffer_load_dwordx4 {v(84 + 4 * i, 4)}, v49, {WS}, s40 offen offset:{16 * i}')
        e('v_lshrrev_b32 v50, 2, v45')
        e('v_and_b32 v51, 3, v45')
        e('v_lshl_add_u32 v50, v50, 3, v51')
        e('v_lshlrev_b32 v50, 1, v50')
        e('v_lshlrev_b32 v51, 1, v45')
        e(f's_mul_i32 s40, s{sC}, 96')
        e(f'buffer_load_ushort v104, v50, {s_(S_B1, 4)}, s40 offen')
        e(f'buffer_load_ushort v105, v50, {s_(S_B1, 4)}, s40 offen offset:8')
        e(f'buffer_load_ushort v106, v51, {s_(S_B1, 4)}, s40 offen offset:64')
        e(f'v_add_u32 {v(vL16H)}, 0x10000, {v(vL16)}')
        e(f'v_add_u32 {v(vW1)}, {LDS_W1}, {v(vL16)}')
        e(f'v_add_u32 {v(vEX)}, {LDS_EX}, {v(vL16)}')
        e(f'v_lshlrev_b32 {v(vXF)}, 9, v46')
        e(f'v_lshl_add_u32 {v(vXF)}, v45, 4, {v(vXF)}')
        e(f'v_lshlrev_b32 {v(vST)}, 6, v45')
        e(f'v_lshl_add_u32 {v(vST)}, v48, 5, {v(vST)}')
        e('v_and_b32 v50, 1, v46')
        e(f'v_lshl_add_u32 {v(vST)}, v50, 30, {v(vST)}')
        e(f'v_lshlrev_b32 {v(vP32)}, 2, v47')
        e(f'v_and_b32 {v(vP8)}, 28, {v(vP32)}')
        e(f'v_mov_b32 {v(vZ)}, 0')
        e(f'v_mul_u32_u24 {v(vOR)}, 20480, v50')
        e(f'v_lshl_add_u32 {v(vOR)}, v45, 4, {v(vOR)}')
        e(f'v_lshl_add_u32 {v(vOM)}, v48, 8, {v(vOR)}')
        e(f'v_lshl_add_u32 {v(vOR)}, v48, 2, {v(vOR)}')
        e('v_and_b32 v50, 1, v47')
        e('v_lshlrev_b32 v50, 4, v50')
        e(f'v_lshlrev_b32 v50, v50, s{sLO}')
        e('v_bfe_u32 v51, v47, 2, 1')
        e('v_cmp_eq_u32 vcc, v51, v48')
        e('v_cndmask_b32 v50, 0, v50, vcc')
        e('v_bfe_u32 v51, v47, 1, 1')
        e('v_lshrrev_b32 v62, 3, v47')
        e('v_lshl_add_u32 v51, v62, 1, v51')
        for q in range(8):
            e(f'v_cmp_eq_u32 vcc, {q}, v51')
            e(f'v_cndmask_b32 {v(PA + q)}, 0, v50, vcc')
        unpack_bf16(e, R, 52, 10)

        def sum20(b):
            for i in range(1, 10):
                e(f'v_pk_add_f32 {v(b, 2)}, {v(b, 2)}, {v(b + 2 * i, 2)}')
            e(f'v_add_f32 {v(b)}, {v(b)}, {v(b + 1)}')
            e(f'v_cvt_pk_bf16_f32 {v(b + 1)}, {v(b)}, {v(b)}')
            e(f'v_lshlrev_b32 {v(b + 1)}, 16, {v(b + 1)}')
            e(f'v_sub_f32 {v(b + 2)}, {v(b)}, {v(b + 1)}')
            e(f'v_cvt_pk_bf16_f32 {v(b)}, {v(b + 1)}, {v(b + 2)}')
        sum20(64)
        sum20(84)
        for T in range(2):
            e(f'v_cmp_eq_u32 vcc, {T}, v48')
            e('v_cndmask_b32 v65, 0, v64, vcc')
            e(f'v_accvgpr_write_b32 {a_(aCQ + 2 * T)}, v65')
            e(f'v_accvgpr_write_b32 {a_(aCQ + 2 * T + 1)}, v65')
        e('v_cmp_eq_u32 s[40:41], 3, v46')
        for lt in range(3):
            e(f'v_cmp_eq_u32 vcc, {lt}, v46')
            e('v_cndmask_b32 v65, 0, v84, vcc')
            e(f'v_cndmask_b32 v65, v65, {v(104 + lt)}, s[40:41]')
            e(f'v_accvgpr_write_b32 {a_(aC1 + 2 * lt)}, v65')
            e(f'v_accvgpr_write_b32 {a_(aC1 + 2 * lt + 1)}, v65')
        e('s_waitcnt lgkmcnt(0)')

    def rowmajor_offsets(self, d0, d1):
        e = self.e
        e(f's_lshl_b32 s{d1}, s{sSG}, 2')
        e(f's_add_u32 s{d1}, s{d1}, s{sW}')
        e(f's_mul_i32 s{d1}, s{d1}, {16 * 1280}')
        e(f's_lshl_b32 s{d0}, s{sKSA}, 6')
        e(f's_add_u32 s{d0}, s{d0}, s{d1}')
        e(f's_add_u32 s{d1}, s{d1}, s{sPAR8}')
        e(f's_lshl_b32 s62, s{sKSS}, 6')
        e(f's_add_u32 s{d1}, s{d1}, s62')

    def ln_scalars(self, S, Q, t):
        e = self.e
        e(f'v_mul_f32 {v(S)}, {hex(INV640 | 0x80000000)}, {v(S)}')
        e(f'v_mul_f32 {v(Q)}, {hex(INV640)}, {v(Q)}')
        e(f'v_fma_f32 {v(Q)}, -{v(S)}, {v(S)}, {v(Q)}')
        e(f'v_max_f32 {v(Q)}, 0, {v(Q)}')
        e(f'v_add_f32 {v(Q)}, {hex(EPS_LN)}, {v(Q)}')
        e(f'v_rsq_f32 {v(t)}, {v(Q)}')

    def split_hi_lo(self, dst, x, t):
        e = self.e
        e(f'v_cvt_pk_bf16_f32 {v(dst)}, {v(x)}, {v(x)}')
        e(f'v_lshlrev_b32 {v(t)}, 16, {v(dst)}')
        e(f'v_sub_f32 {v(t)}, {v(x)}, {v(t)}')
        e(f'v_cvt_pk_bf16_f32 {v(dst + 1)}, {v(t)}, {v(t)}')

    def softmax(self, a, sp, dst):
        e = self.e
        t0, t1, t2, t3 = vT0, vT1, vT2, vT3
        e(f'v_max3_f32 {v(t0)}, {v(a)}, {v(a + 1)}, {v(a + 2)}')
        e(f'v_max3_f32 {v(t1)}, -{v(a)}, -{v(a + 1)}, -{v(a + 2)}')
        for i in (3, 5, 7):
            e(f'v_max3_f32 {v(t0)}, {v(t0)}, {v(a + i)}, {v(a + i + 1)}')
            e(f'v_max3_f32 {v(t1)}, {v(t1)}, -{v(a + i)}, -{v(a + i + 1)}')
        e(f'v_max_f32 {v(t0)}, {v(t0)}, {v(a + 9)}')
        e(f'v_max_f32 {v(t1)}, {v(t1)}, -{v(a + 9)}')
        e(f'v_permlane32_swap_b32 {v(t0)}, {v(t1)}')
        e(f'v_max_f32 {v(t0)}, {v(t0)}, {v(t1)}')
        e(f'v_mul_f32 {v(t0)}, {v(t0)}, {v(sp + 1)}')
        e(f'v_mov_b32 {v(t1)}, {v(t0)}')
        e(f'v_permlane32_swap_b32 {v(t0)}, {v(t1)}')
        for i in range(10):
            sel = (a + i) & 1
            e(f'v_pk_fma_f32 {v(E + 2 * i, 2)}, {v((a + i) & ~1, 2)}, {v(sp, 2)}, {v(t0, 2)} '
              f'op_sel:[{sel},0,0] op_sel_hi:[{sel},1,1]')
        for i in range(20):
            e(f'v_exp_f32 {v(E + i)}, {v(E + i)}')
        e(f'v_pk_add_f32 {v(t2, 2)}, {v(E, 2)}, {v(E + 2, 2)}')
        e(f'v_pk_add_f32 {v(t0, 2)}, {v(E + 4, 2)}, {v(E + 6, 2)}')
        for i in range(4, 10):
            t = t2 if i % 2 == 0 else t0
            e(f'v_pk_add_f32 {v(t, 2)}, {v(t, 2)}, {v(E + 2 * i, 2)}')
        e(f'v_pk_add_f32 {v(t2, 2)}, {v(t2, 2)}, {v(t0, 2)}')
        e(f'v_permlane32_swap_b32 {v(t2)}, {v(t3)}')
        e(f'v_add_f32 {v(t2)}, {v(t2)}, {v(t3)}')
        e(f'v_rcp_f32 {v(t2)}, {v(t2)}')
        e(f'v_mov_b32 {v(t3)}, {v(t2)}')
        e(f'v_permlane32_swap_b32 {v(t2)}, {v(t3)}')
        for i in range(10):
            e(f'v_pk_mul_f32 {v(E + 2 * i, 2)}, {v(E + 2 * i, 2)}, {v(t2, 2)}')
        for i in range(10):
            e(f'v_cvt_pk_bf16_f32 {v(dst + i)}, {v(E + 2 * i)}, {v(E + 2 * i + 1)}')

    def p1(self, L):
        e, cfg = self.e, self.cfg
        acc = ((A00, A01), (A10, A11))
        D = cfg.ring1
        ring = lambda ks, mt: WO_E + (ks % D) * 8 + 4 * mt
        wbuf = lambda ks, T: E + (ks % 4) * 8 + 4 * T
        e(f's_mul_i32 s40, s{sSW}, 81920')
        e(f's_add_u32 s40, s40, {act(L, XF_O)}')
        e('s_add_u32 s41, s40, 40960')
        e(f's_lshl_b32 s42, s{sSW}, 12')
        e(f's_add_u32 s42, s42, {act(L, ST_O)}')
        e(f's_mul_i32 s43, s{sJ}, 102400')
        e(f's_mul_i32 s44, s{sW}, 25600')
        e('s_add_u32 s43, s43, s44')
        e(f's_add_u32 s43, s43, {WOF}')
        e(f'v_lshrrev_b32 {v(vT1)}, 9, {v(vL16)}')
        e(f'v_lshlrev_b32 {v(vT1)}, 5, {v(vT1)}')
        e(f'v_lshl_add_u32 {v(vT1)}, {v(vP32)}, 4, {v(vT1)}')
        if L > 0:
            self.flag_base(44, L, F_X, sSW)
            self.poll(44, vP32)
        self.stamp(f'p1_{L}_go')

        def load_a(ks):
            for mt in range(2):
                e(f'buffer_load_dwordx4 {v(ring(ks, mt), 4)}, {v(vL16)}, {WS}, s{40 + mt} offen offset:{(ks % 4) * 1024} sc1')
            if ks % 4 == 3:
                e('s_add_u32 s40, s40, 4096')
                e('s_add_u32 s41, s41, 4096')

        def load_w(ks):
            for T in range(2):
                off = (ks * 2 + T) * 1024
                base = vL16 if off < 65536 else vL16H
                e(f'ds_read_b128 {v(wbuf(ks, T), 4)}, {v(base)} offset:{off % 65536}')

        def load_wo(i):
            e(f'buffer_load_dwordx4 {v(WO_E + 4 * i, 4)}, {v(vL16)}, {WS}, s43 offen offset:{(i % 4) * 1024}')
            if i % 4 == 3:
                e('s_add_u32 s43, s43, 4096')

        for ks in range(D):
            load_a(ks)
            if ks == 3:
                for mt in range(2):
                    for q in range(2):
                        e(f'buffer_load_dwordx4 {v(KV1 + 8 * mt + 4 * q, 4)}, {v(vT1)}, {WS}, s42 offen offset:{2048 * mt + 16 * q} sc1')
        if L == 0:
            e.wait_tag('wq')
            e('s_barrier')
        load_w(0)
        load_w(1)
        assert 40 % D == 0 and D * 8 <= 80
        for ks in range(40):
            if ks + 2 < 40:
                load_w(ks + 2)
            for T in range(2):
                for mt in range(2):
                    c = v(acc[T][mt], 16) if ks else '0'
                    e(f'{M32} {v(acc[T][mt], 16)}, {v(wbuf(ks, T), 4)}, {v(ring(ks, mt), 4)}, {c}')
            if ks + D < 40:
                load_a(ks + D)
            else:
                load_wo(2 * (ks + D - 40))
                load_wo(2 * (ks + D - 40) + 1)
            if ks in (8, 10):
                mt = (ks - 8) // 2
                b = KV1 + 8 * mt
                st = STT + 4 * mt
                e(f'v_pk_add_f32 {v(b, 2)}, {v(b, 2)}, {v(b + 2, 2)}')
                e(f'v_pk_add_f32 {v(b + 4, 2)}, {v(b + 4, 2)}, {v(b + 6, 2)}')
                e(f'v_pk_add_f32 {v(b, 2)}, {v(b, 2)}, {v(b + 4, 2)}')
                e(f'v_add_f32 {v(b)}, {v(b)}, {v(b + 1)}')
                e(f'v_mov_b32 {v(b + 1)}, {v(b)}')
                e(f'v_permlane32_swap_b32 {v(b)}, {v(b + 1)}')
                self.ln_scalars(b, b + 1, st + 2)
                self.split_hi_lo(CB + 2 * mt, b, b + 2)
                e(f'v_mul_f32 {v(st)}, {hex(LOG2E)}, {v(st + 2)}')
                e(f'v_mul_f32 {v(st + 1)}, {hex(LOG2E | 0x80000000)}, {v(st + 2)}')
        for i in range(2 * D, 20):
            load_wo(i)
        for T in range(2):
            for mt in range(2):
                e(f'{M32H} {v(acc[T][mt], 16)}, {a_(aCQ + 2 * T, 2)}, {v(CB + 2 * mt, 2)}, {v(acc[T][mt], 16)}')
        self.stamp(f'p1_{L}_gemm')

        KV2 = A00
        for mt in range(2):
            a0, a1, st = acc[0][mt], acc[1][mt], STT + 4 * mt
            self.softmax(a0, st, D16)
            for i, src in enumerate((a0 + 10, a0 + 12, a0 + 14, a1 + 10, a1 + 12)):
                e(f'v_pk_mul_f32 {v(src, 2)}, {v(src, 2)}, {v(st + 2, 2)} op_sel_hi:[1,0]')
                e(f'v_cvt_pk_bf16_f32 {v(D16 + 10 + i)}, {v(src)}, {v(src + 1)}')
            e(f'v_mov_b32 {v(D16 + 15)}, s{sLO}')
            X, Y = E, a0
            e(f'{M32} {v(X, 16)}, {v(D16, 4)}, {v(PA, 4)}, 0')
            e(f'{M32} {v(X, 16)}, {v(D16 + 4, 4)}, {v(PB, 4)}, {v(X, 16)}')
            e(f'{M32} {v(Y, 16)}, {v(D16 + 8, 4)}, {v(PA, 4)}, 0')
            e(f'{M32} {v(Y, 16)}, {v(D16 + 12, 4)}, {v(PB, 4)}, {v(Y, 16)}')
            for q in range(8):
                e(f'v_cvt_pk_bf16_f32 {v(D16 + q)}, {v(X + 2 * q)}, {v(X + 2 * q + 1)}')
            for q in range(8):
                e(f'v_cvt_pk_bf16_f32 {v(D16 + 8 + q)}, {v(Y + 2 * q)}, {v(Y + 2 * q + 1)}')
            for h in range(2):
                c = v(KV1, 16) if mt or h else '0'
                e(f'{M32} {v(KV1, 16)}, {v(D16 + 4 * h, 4)}, {v(D16 + 8 + 4 * h, 4)}, {c}')
            for h in range(2):
                c = v(KV2, 16) if mt or h else '0'
                e(f'{M32} {v(KV2, 16)}, {v(D16 + 8 + 4 * h, 4)}, {v(D16 + 8 + 4 * h, 4)}, {c}')
        e(f's_mul_i32 s40, s{sW}, 5120')
        e(f'v_add_u32 {v(vT0)}, s40, {v(vEX)}')
        e(f's_lshl_b32 s40, s{sW}, 10')
        e(f'v_add_u32 {v(vT1)}, s40, {v(vEX)}')
        e(f's_lshl_b32 s40, s{sW}, 2')
        e(f'v_add_u32 {v(vT2)}, s40, {v(vEX)}')
        e(f's_lshl_b32 s40, s{sC}, 2')
        e(f's_add_u32 s40, s40, s{sW}')
        e('s_lshl_b32 s40, s40, 13')
        e(f's_add_u32 s40, s40, {KVP + L * 0x100000}')
        e(f's_lshl_b32 s41, s{sSET}, 10')
        e('s_add_u32 s41, s41, s40')
        e('s_add_u32 s42, s40, 4096')
        for q in range(4):
            e(f'ds_write_b128 {v(vT0)}, {v(KV1 + 4 * q, 4)} offset:{1024 * q}')
        e(f'ds_write_b128 {v(vT0)}, {v(KV2, 4)} offset:4096')
        e('s_waitcnt lgkmcnt(0)')
        e('s_barrier')
        for src in range(4):
            e(f'ds_read_b128 {v(E + 4 * src, 4)}, {v(vT1)} offset:{5120 * src}')
            e(f'ds_read_b32 {v(E + 16 + src)}, {v(vT2)} offset:{5120 * src + 4096}')
        for h in range(2):
            e(f'v_pk_add_f32 {v(E + 2 * h, 2)}, {v(E + 2 * h, 2)}, {v(E + 4 + 2 * h, 2)}')
        for h in range(2):
            e(f'v_pk_add_f32 {v(E + 8 + 2 * h, 2)}, {v(E + 8 + 2 * h, 2)}, {v(E + 12 + 2 * h, 2)}')
        e(f'v_pk_add_f32 {v(E + 16, 2)}, {v(E + 16, 2)}, {v(E + 18, 2)}')
        for h in range(2):
            e(f'v_pk_add_f32 {v(E + 2 * h, 2)}, {v(E + 2 * h, 2)}, {v(E + 8 + 2 * h, 2)}')
        e(f'v_add_f32 {v(E + 16)}, {v(E + 16)}, {v(E + 17)}')
        e(f'v_cvt_pk_bf16_f32 {v(D16)}, {v(E)}, {v(E + 1)}')
        e(f'v_cvt_pk_bf16_f32 {v(D16 + 1)}, {v(E + 2)}, {v(E + 3)}')
        e(f'v_cvt_pk_bf16_f32 {v(D16 + 2)}, {v(E + 16)}, {v(vZ)}')
        e(f'v_mov_b32 {v(D16 + 3)}, s{sTAG}')
        e(f'buffer_store_dwordx4 {v(D16, 4)}, {v(vL16)}, {WS}, s41 offen sc1')
        e('s_barrier')
        self.stamp(f'p1_{L}_kvpub')
        for i in range(5):
            if i == 4:
                e('s_add_u32 s43, s43, 4096')
            e(f'buffer_load_dwordx4 {v(WO_L + 4 * i, 4)}, {v(vL16)}, {WS}, s43 offen offset:{(i % 4) * 1024}')
        if L == 0:
            e(f's_mul_i32 s44, s{sC}, 61440')
            e(f's_mul_i32 s45, s{sW}, 15360')
            e('s_add_u32 s44, s44, s45')
            e(f's_add_u32 s44, s44, {W1F}')
            e(f's_add_u32 s45, s45, {LDS_W1}')
            for i in range(15):
                if i % 4 == 0:
                    e('s_mov_b32 m0, s45')
                e(f'buffer_load_dwordx4 {v(vL16)}, {WS}, s44 offen offset:{(i % 4) * 1024} lds', tag='w1')
                if i % 4 == 3:
                    e('s_add_u32 s44, s44, 4096')
                    e('s_add_u32 s45, s45, 4096')
        for mt in range(2):
            self.softmax(acc[1][mt], STT + 4 * mt, acc[0][mt])
        self.stamp(f'p1_{L}_smq')

        G = A10
        lab = self.label('kv')
        e(f's_mov_b32 s{sCNT}, 0')
        e(f'{lab}:')
        for x in range(8):
            e(f'buffer_load_dwordx4 {v(G + 4 * x, 4)}, {v(vL16)}, {WS}, s{40 if x < 4 else 42} offen offset:{(x % 4) * 1024} sc1')
        e(f's_add_u32 s{sCNT}, s{sCNT}, 1')
        e(f's_cmp_gt_u32 s{sCNT}, 0x40000')
        e('s_cbranch_scc1 Labort')
        e('s_waitcnt vmcnt(0)')
        tg = [G + 4 * x + 3 for x in range(8)]
        e(f'v_min3_u32 {v(vT0)}, {v(tg[0])}, {v(tg[1])}, s{sTAG}')
        e(f'v_max3_u32 {v(vT1)}, {v(tg[0])}, {v(tg[1])}, s{sTAG}')
        for x in (2, 4, 6):
            e(f'v_min3_u32 {v(vT0)}, {v(vT0)}, {v(tg[x])}, {v(tg[x + 1])}')
            e(f'v_max3_u32 {v(vT1)}, {v(vT1)}, {v(tg[x])}, {v(tg[x + 1])}')
        e(f'v_cmp_ne_u32 vcc, {v(vT0)}, {v(vT1)}')
        e(f's_cbranch_vccnz {lab}')
        self.stamp(f'p1_{L}_kvgot')
        for i in range(5):
            if i % 2 == 0:
                e(f'v_lshlrev_b32 {v(E + i)}, 16, {v(G + i // 2)}')
            else:
                e(f'v_and_b32 {v(E + i)}, 0xffff0000, {v(G + i // 2)}')
        for x in range(1, 8):
            for i in range(5):
                e(f'v_dot2c_f32_bf16 {v(E + i)}, s{sHI if i % 2 else sLO}, {v(G + 4 * x + i // 2)}')
        e(f's_lshr_b32 s40, s{sW}, 1')
        e('s_lshl_b32 s40, s40, 10')
        e(f's_and_b32 s41, s{sW}, 1')
        e('s_lshl_b32 s41, s41, 3')
        e('s_add_u32 s40, s40, s41')
        e(f'v_add_u32 {v(vT0)}, s40, {v(vEX)}')
        e(f'v_lshrrev_b32 {v(vT1)}, 1, {v(vL16)}')
        e(f'v_add_u32 {v(vT1)}, {LDS_EX + 2048}, {v(vT1)}')
        e(f's_lshl_b32 s40, s{sW}, 1')
        e(f'v_add_u32 {v(vT2)}, s40, {v(vT1)}')
        e(f'v_cvt_pk_bf16_f32 {v(E + 6)}, {v(E)}, {v(E + 1)}')
        e(f'v_cvt_pk_bf16_f32 {v(E + 7)}, {v(E + 2)}, {v(E + 3)}')
        e(f'v_cvt_pk_bf16_f32 {v(E + 8)}, {v(E + 4)}, {v(E + 4)}')
        e(f'ds_write_b64 {v(vT0)}, {v(E + 6, 2)}')
        e(f'ds_write_b16 {v(vT2)}, {v(E + 8)}')
        e(f's_mul_i32 s40, s{sSW}, 81920')
        e(f's_add_u32 s40, s40, {act(L, OF_O)}')
        e(f's_mul_i32 s41, s{sGI}, 5120')
        e('s_add_u32 s40, s40, s41')
        e(f's_lshr_b32 s42, s{sJ}, 1')
        e('s_lshl_b32 s42, s42, 8')
        e(f's_add_u32 s42, s42, s{sPAR8}')
        e('s_add_u32 s42, s42, s40')
        e('s_add_u32 s42, s42, 4096')
        e(f's_lshl_b32 s41, s{sJ}, 9')
        e('s_add_u32 s40, s40, s41')
        e('s_add_u32 s41, s40, 40960')
        e('s_add_u32 s43, s42, 40960')
        self.flag_base(44, L, F_O, sSW)
        e(f's_lshl_b32 s45, s{sC}, 2')
        e('s_add_u32 s44, s44, s45')
        e('s_waitcnt lgkmcnt(0)')
        e('s_barrier')
        e(f'ds_read_b128 {v(D16, 4)}, {v(vEX)}')
        e(f'ds_read_b128 {v(D16 + 4, 4)}, {v(vEX)} offset:1024')
        e(f'ds_read_b64 {v(D16 + 8, 2)}, {v(vT1)}')
        for mt in range(2):
            O, Q = acc[1][mt], acc[0][mt]
            e(f'{M32} {v(O, 16)}, {v(D16, 4)}, {v(Q, 4)}, 0')
            e(f'{M32} {v(O, 16)}, {v(D16 + 4, 4)}, {v(Q + 4, 4)}, {v(O, 16)}')
        for mt in range(2):
            O, Q = acc[1][mt], acc[0][mt]
            e(f'{M32H} {v(O, 16)}, {v(D16 + 8, 2)}, {v(Q + 8, 2)}, {v(O, 16)}')
        for mt in range(2):
            O, P = acc[1][mt], E + 8 * mt
            e(f'v_add_f32 {v(O + 14)}, {hex(EPS_DEN)}, {v(O + 14)}')
            e(f'v_rcp_f32 {v(O + 14)}, {v(O + 14)}')
            for i in range(5):
                e(f'v_pk_mul_f32 {v(O + 4 + 2 * i, 2)}, {v(O + 4 + 2 * i, 2)}, {v(O + 14, 2)} op_sel_hi:[1,0]')
            for i in range(5):
                e(f'v_cvt_pk_bf16_f32 {v(P + i)}, {v(O + 4 + 2 * i)}, {v(O + 5 + 2 * i)}')
            e(f'buffer_store_dwordx4 {v(P, 4)}, {v(vOM)}, {WS}, s{40 + mt} offen {cfg.st}')
            e(f'buffer_store_dword {v(P + 4)}, {v(vOR)}, {WS}, s{42 + mt} offen {cfg.st}')
        self.set_flag(44)
        self.stamp(f'p1_{L}_end')

    def ksplit(self, L, nk, wreg, areg, accs, abase, mstride, fkind, depth, name):
        e = self.e
        e(f's_mul_i32 s46, s{sSG}, {4 * mstride}')
        e(f's_add_u32 s46, s46, {abase}')
        e(f's_mul_i32 s47, s{sW}, {nk * 1024}')
        e('s_add_u32 s46, s46, s47')
        for s in range(4):
            e(f's_add_u32 s47, s{sW}, {s + 1}')
            e('s_and_b32 s47, s47, 3')
            e(f's_mul_i32 s47, s47, {mstride}')
            e(f's_add_u32 s{40 + s}, s46, s47')
        e(f's_mul_i32 s47, s{sW}, 5120')
        e(f'v_add_u32 {v(vT1)}, s47, {v(vEX)}')
        for s in range(3):
            e(f's_sub_u32 s47, s{sW}, {s + 1}')
            e('s_and_b32 s47, s47, 3')
            e(f's_mul_i32 s{48 + s}, s47, 5120')
        self.flag_base(44, L, fkind, sSG)
        e(f's_lshl_b32 s45, s{sW}, 5')
        e('s_add_u32 s44, s44, s45')
        self.poll(44, vP8)
        self.stamp(f'{name}_{L}_go')

        def load_a(i):
            s, k = divmod(i, nk)
            e(f'buffer_load_dwordx4 {v(areg(i), 4)}, {v(vL16)}, {WS}, s{40 + s} offen offset:{(k % 4) * 1024} sc1')
            if k % 4 == 3 and k + 1 < nk:
                e(f's_add_u32 s{40 + s}, s{40 + s}, 4096')

        total = 4 * nk
        for i in range(min(depth, total)):
            load_a(i)
        for s in range(4):
            acc = accs[s % 2] if s < 3 else R
            prev = accs[(s - 1) % 2]
            for k in range(nk):
                i = s * nk + k
                for t in range(5):
                    c = v(acc + 4 * t, 4) if (k or s == 3) else '0'
                    e(f'{M16} {v(acc + 4 * t, 4)}, {wreg(k, t)}, {v(areg(i), 4)}, {c}')
                if i + depth < total:
                    load_a(i + depth)
                if s > 0 and k == 0:
                    if s > 1:
                        e('s_barrier')
                    for t in range(5):
                        e(f'ds_write_b128 {v(vT1)}, {v(prev + 4 * t, 4)} offset:{1024 * t}')
                if s > 0 and k == 1:
                    e(f'v_add_u32 {v(vT2)}, s{48 + s - 1}, {v(vEX)}')
                    e('s_waitcnt lgkmcnt(0)')
                    e('s_barrier')
                    for t in range(5):
                        e(f'ds_read_b128 {v(prev + 4 * t, 4)}, {v(vT2)} offset:{1024 * t}')
                if 0 < s < 3 and k == 3:
                    for q in range(10):
                        e(f'v_pk_add_f32 {v(R + 2 * q, 2)}, {v(R + 2 * q, 2)}, {v(prev + 2 * q, 2)}')
        prev = accs[0]
        for q in range(10):
            e(f'v_pk_add_f32 {v(R + 2 * q, 2)}, {v(R + 2 * q, 2)}, {v(prev + 2 * q, 2)}')
        self.stamp(f'{name}_{L}_gemm')

    def pack_residual(self, P):
        for q in range(10):
            self.e(f'v_cvt_pk_bf16_f32 {v(P + q)}, {v(R + 2 * q)}, {v(R + 2 * q + 1)}')

    def publish_stats(self, base, L, fkind):
        e = self.e
        row_stats(e, R, 56)
        e(f's_lshl_b32 s43, s{sSG}, 2')
        e(f's_add_u32 s43, s43, s{sW}')
        e('s_lshl_b32 s43, s43, 10')
        e(f's_lshl_b32 s45, s{sJ}, 2')
        e('s_add_u32 s43, s43, s45')
        e(f's_add_u32 s43, s43, {base}')
        e(f'buffer_store_dword v56, {v(vST)}, {WS}, s43 offen {self.cfg.st}')
        self.flag_base(44, L, fkind, sSG)
        e(f's_add_u32 s45, s45, s{sW}')
        e('s_lshl_b32 s45, s45, 2')
        e('s_add_u32 s44, s44, s45')
        self.set_flag(44)

    def p2(self, L):
        e, cfg = self.e, self.cfg
        wreg = lambda k, t: v(WO_E + 4 * (5 * k + t), 4) if k < 4 else v(WO_L + 4 * t, 4)
        e('s_barrier')
        self.ksplit(L, 5, wreg, lambda i: 44 + 4 * i, (124, 44), act(L, OF_O), 20480, F_O, 20, 'p2')
        P = 44
        self.pack_residual(P)
        e(f's_lshl_b32 s40, s{sSG}, 2')
        e(f's_add_u32 s40, s40, s{sW}')
        e('s_mul_i32 s40, s40, 20480')
        e(f's_add_u32 s40, s40, {act(L, X1F_O)}')
        e(f's_lshl_b32 s41, s{sKSS}, 10')
        e('s_add_u32 s41, s41, s40')
        e(f's_add_u32 s41, s41, s{sPAR8}')
        e(f's_lshl_b32 s42, s{sKSA}, 10')
        e('s_add_u32 s40, s40, s42')
        e(f'buffer_store_dwordx4 {v(P, 4)}, {v(vL16)}, {WS}, s40 offen {cfg.st}')
        e(f'buffer_store_dwordx4 {v(P + 4, 4)}, {v(vL16)}, {WS}, s40 offen offset:1024 {cfg.st}')
        e(f'buffer_store_dwordx2 {v(P + 8, 2)}, {v(vL16)}, {WS}, s41 offen {cfg.st}')
        self.publish_stats(act(L, ST1_O), L, F_X1)
        self.stamp(f'p2_{L}_end')
        e(f'v_lshrrev_b32 {v(vT1)}, 8, {v(vL16)}')
        e(f'v_lshlrev_b32 {v(vT1)}, 4, {v(vT1)}')
        e(f's_lshl_b32 s40, s{sKSA}, 6')
        e(f's_lshl_b32 s41, s{sKSS}, 6')
        e(f's_add_u32 s41, s41, s{sPAR8}')
        e(f'buffer_load_dwordx4 v[60:63], {v(vT1)}, {s_(S_B2, 4)}, s40 offen')
        e(f'buffer_load_dwordx4 v[64:67], {v(vT1)}, {s_(S_B2, 4)}, s40 offen offset:64')
        e(f'buffer_load_dwordx2 v[68:69], {v(vT1)}, {s_(S_B2, 4)}, s41 offen')
        if L == 0:
            e(f's_mul_i32 s40, s{sJ}, 245760')
            e(f's_mul_i32 s41, s{sW}, 61440')
            e('s_add_u32 s40, s40, s41')
            e(f's_add_u32 s40, s40, {W2F}')
            for i in range(60):
                e(f'buffer_load_dwordx4 {a_(4 * i, 4)}, {v(vL16)}, {WS}, s40 offen offset:{(i % 4) * 1024}')
                if i % 4 == 3:
                    e('s_add_u32 s40, s40, 4096')
        for q in range(10):
            e(f'v_dot2c_f32_bf16 {v(R + 2 * q)}, s{sLO}, {v(60 + q)}')
            e(f'v_dot2c_f32_bf16 {v(R + 2 * q + 1)}, s{sHI}, {v(60 + q)}')

    def p3(self, L):
        e, cfg = self.e, self.cfg
        D = cfg.ring3
        ACC, WB, SB, RING = 44, 92, 128, 256 - 16 * D
        assert RING >= SB + 16
        acc = lambda lt, mt: ACC + 4 * (3 * mt + lt)
        wbuf = lambda ks, lt: WB + (ks % 3) * 12 + 4 * lt
        ring = lambda ks, mt: RING + (ks % D) * 16 + 4 * mt
        e(f's_mul_i32 s40, s{sSW}, 81920')
        e(f's_add_u32 s40, s40, {act(L, X1F_O)}')
        for mt in range(1, 4):
            e(f's_add_u32 s{40 + mt}, s40, {20480 * mt}')
        e(f's_lshl_b32 s46, s{sSW}, 12')
        e(f's_add_u32 s46, s46, {act(L, ST1_O)}')
        e(f'v_lshrrev_b32 {v(vT1)}, 8, {v(vL16)}')
        e(f'v_cmp_eq_u32 s[48:49], 3, {v(vT1)}')
        e(f'v_lshlrev_b32 {v(vT1)}, 4, {v(vT1)}')
        e(f'v_and_b32 {v(vT2)}, 0xf0, {v(vL16)}')
        e(f'v_lshl_add_u32 {v(vT1)}, {v(vT2)}, 2, {v(vT1)}')
        self.flag_base(44, L, F_X1, sSW)
        self.poll(44, vP32)
        self.stamp(f'p3_{L}_go')

        def load_a(ks):
            for mt in range(4):
                e(f'buffer_load_dwordx4 {v(ring(ks, mt), 4)}, {v(vL16)}, {WS}, s{40 + mt} offen offset:{(ks % 4) * 1024} sc1')
            if ks % 4 == 3:
                for mt in range(4):
                    e(f's_add_u32 s{40 + mt}, s{40 + mt}, 4096')

        def load_w(ks):
            for lt in range(3):
                e(f'ds_read_b128 {v(wbuf(ks, lt), 4)}, {v(vW1)} offset:{(ks * 3 + lt) * 1024}')

        for ks in range(D):
            load_a(ks)
            if ks == 1:
                for mt in range(4):
                    e(f'buffer_load_dwordx4 {v(SB + 4 * mt, 4)}, {v(vT1)}, {WS}, s46 offen offset:{1024 * mt} sc1')
        if L == 0:
            e('s_barrier')
        load_w(0)
        load_w(1)
        for ks in range(20):
            if ks + 2 < 20:
                load_w(ks + 2)
            for mt in range(4):
                for lt in range(3):
                    c = v(acc(lt, mt), 4) if ks else '0'
                    e(f'{M16} {v(acc(lt, mt), 4)}, {v(wbuf(ks, lt), 4)}, {v(ring(ks, mt), 4)}, {c}')
            if ks + D < 20:
                load_a(ks + D)
            if 4 <= ks < 8:
                b = SB + 4 * (ks - 4)
                e(f'v_pk_add_f32 {v(b, 2)}, {v(b, 2)}, {v(b + 2, 2)}')
                e(f'v_add_f32 {v(b)}, {v(b)}, {v(b + 1)}')
                e(f'v_mov_b32 {v(b + 1)}, {v(b)}')
                e(f'v_permlane16_swap_b32 {v(b)}, {v(b + 1)}')
                e(f'v_add_f32 {v(b)}, {v(b)}, {v(b + 1)}')
                e(f'v_mov_b32 {v(b + 1)}, {v(b)}')
                e(f'v_permlane32_swap_b32 {v(b)}, {v(b + 1)}')
                self.ln_scalars(b, b + 1, b + 2)
                e(f'v_mul_f32 {v(b + 1)}, {v(b + 1)}, {v(b + 2)}')
                e(f'v_cndmask_b32 {v(vT2)}, {v(b)}, {v(b + 1)}, s[48:49]')
                self.split_hi_lo(b, vT2, b + 3)
        for mt in range(4):
            for lt in range(3):
                e(f'{M16H} {v(acc(lt, mt), 4)}, {a_(aC1 + 2 * lt, 2)}, {v(SB + 4 * mt, 2)}, {v(acc(lt, mt), 4)}')
        self.stamp(f'p3_{L}_gemm')
        e(f's_mul_i32 s40, s{sSW}, 196608')
        e(f's_add_u32 s40, s40, {act(L, HF_O)}')
        e(f's_lshr_b32 s41, s{sC}, 1')
        e('s_mul_i32 s41, s41, 3072')
        e('s_add_u32 s40, s40, s41')
        e(f's_add_u32 s41, s40, s{sPAR8}')
        e(f's_lshl_b32 s42, s{sPAR8}, 8')
        e('s_add_u32 s40, s40, s42')
        for mt in range(4):
            a, P = acc(0, mt), WB + 8 * mt
            for q in range(6):
                e(f'v_pk_mul_f32 {v(a + 2 * q, 2)}, {v(a + 2 * q, 2)}, {v(SB + 4 * mt + 2, 2)} op_sel_hi:[1,0]')
            for q in range(12):
                e(f'v_max_f32 {v(a + q)}, 0, {v(a + q)}')
            for q in range(6):
                e(f'v_pk_mul_f32 {v(a + 2 * q, 2)}, {v(a + 2 * q, 2)}, {v(a + 2 * q, 2)}')
            for q in range(6):
                e(f'v_cvt_pk_bf16_f32 {v(P + q)}, {v(a + 2 * q)}, {v(a + 2 * q + 1)}')
            e(f'buffer_store_dwordx4 {v(P, 4)}, {v(vL16)}, {WS}, s40 offen {cfg.st}')
            e(f'buffer_store_dwordx2 {v(P + 4, 2)}, {v(vL16)}, {WS}, s41 offen offset:1024 {cfg.st}')
            if mt < 3:
                e('s_add_u32 s40, s40, 49152')
                e('s_add_u32 s41, s41, 49152')
        self.flag_base(44, L, F_H, sSW)
        e(f's_lshl_b32 s45, s{sC}, 2')
        e('s_add_u32 s44, s44, s45')
        self.set_flag(44)
        self.stamp(f'p3_{L}_end')

    def p4(self, L):
        e, cfg = self.e, self.cfg
        depth = 24
        e('s_barrier')
        self.ksplit(L, 12, lambda k, t: a_(4 * (5 * k + t), 4), lambda i: 112 + 4 * (i % 36), (64, 84),
                    act(L, HF_O), 49152, F_H, depth, 'p4')
        P = 44
        self.pack_residual(P)
        if L == 1:
            self.rowmajor_offsets(40, 41)
            e(f'buffer_store_dwordx4 {v(P, 4)}, {v(vOUT)}, {OUT}, s40 offen')
            e(f'buffer_store_dwordx4 {v(P + 4, 4)}, {v(vOUT)}, {OUT}, s40 offen offset:64')
            e(f'buffer_store_dwordx2 {v(P + 8, 2)}, {v(vOUT)}, {OUT}, s41 offen')
            self.stamp(f'p4_{L}_end')
            return
        e(f's_lshl_b32 s40, s{sSG}, 1')
        e(f's_lshr_b32 s41, s{sW}, 1')
        e('s_add_u32 s40, s40, s41')
        e('s_mul_i32 s40, s40, 40960')
        e(f's_and_b32 s41, s{sW}, 1')
        e('s_lshl_b32 s41, s41, 8')
        e('s_add_u32 s40, s40, s41')
        e(f's_add_u32 s40, s40, {act(L + 1, XF_O)}')
        e(f's_lshl_b32 s41, s{sKSS}, 11')
        e('s_add_u32 s41, s41, s40')
        e(f's_add_u32 s41, s41, s{sPAR8}')
        e(f's_lshl_b32 s42, s{sKSA}, 11')
        e('s_add_u32 s40, s40, s42')
        e(f'buffer_store_dwordx4 {v(P, 4)}, {v(vXF)}, {WS}, s40 offen {cfg.st}')
        e(f'buffer_store_dwordx4 {v(P + 4, 4)}, {v(vXF)}, {WS}, s40 offen offset:2048 {cfg.st}')
        e(f'buffer_store_dwordx2 {v(P + 8, 2)}, {v(vXF)}, {WS}, s41 offen {cfg.st}')
        self.publish_stats(act(L + 1, ST_O), L + 1, F_X)
        e('s_barrier')
        self.stamp(f'p4_{L}_end')

    def epilogue(self):
        e = self.e
        if self.cfg.stamps:
            e('s_waitcnt vmcnt(0)')
            self.stamp('done')
            e('s_memrealtime s[62:63]')
            e('s_waitcnt lgkmcnt(0)')
            e('s_mov_b32 s101, s62')
            e('s_lshl_b32 s40, s2, 2')
            e(f's_add_u32 s40, s40, s{sW}')
            e('s_lshl_b32 s40, s40, 8')
            e(f's_add_u32 s40, s40, {STAMP}')
            for i in range(38):
                e(f'v_mov_b32 {v(44 + i)}, s{sSTAMP + i}')
            e('s_mov_b64 exec, 1')
            for i in range(10):
                e(f'buffer_store_dwordx4 {v(44 + 4 * i, 4)}, {v(vZ)}, {WS}, s40 offen offset:{16 * i}')
        e('Labort:')
        e('Lend:')
        e('s_endpgm')

    def gen(self, name):
        self.prologue(name)
        for L in range(2):
            self.p1(L)
            self.p2(L)
            self.p3(L)
            self.p4(L)
        self.epilogue()
```

```python
from asmlib import *
from layout import *

M32 = 'v_mfma_f32_32x32x16_bf16'
M32H = 'v_mfma_f32_32x32x8_bf16'
M16 = 'v_mfma_f32_16x16x32_bf16'
M16H = 'v_mfma_f32_16x16x16_bf16'

P_X, P_WQKV, P_WPHI, P_WO, P_BX, P_W1, P_B1, P_W2, P_B2, P_OUT, P_DBG, P_WS = [32 + 2 * i for i in range(12)]


def load_kernargs(e):
    e('s_load_dwordx16 s[32:47], s[0:1], 0')
    e('s_load_dwordx8 s[48:55], s[0:1], 64')


def srd(e, d, p, nbytes):
    e(f's_mov_b32 s{d}, s{p}')
    e(f's_and_b32 s{d + 1}, s{p + 1}, 0xffff')
    e(f's_mov_b32 s{d + 2}, {nbytes}')
    e(f's_mov_b32 s{d + 3}, 0x20000')


def sdiv(e, q, r, x, d):
    magic = (1 << 16) // d + 1
    e(f's_mul_i32 s{q}, s{x}, {magic}')
    e(f's_lshr_b32 s{q}, s{q}, 16')
    e(f's_mul_i32 s{r}, s{q}, {d}')
    e(f's_sub_u32 s{r}, s{x}, s{r}')


def row_stats(e, R, t):
    e(f'v_pk_add_f32 {v(t, 2)}, {v(R, 2)}, {v(R + 2, 2)}')
    e(f'v_pk_mul_f32 {v(t + 2, 2)}, {v(R, 2)}, {v(R, 2)}')
    for i in range(1, 10):
        if i > 1:
            e(f'v_pk_add_f32 {v(t, 2)}, {v(t, 2)}, {v(R + 2 * i, 2)}')
        e(f'v_pk_fma_f32 {v(t + 2, 2)}, {v(R + 2 * i, 2)}, {v(R + 2 * i, 2)}, {v(t + 2, 2)}')
    e(f'v_add_f32 {v(t)}, {v(t)}, {v(t + 1)}')
    e(f'v_add_f32 {v(t + 2)}, {v(t + 2)}, {v(t + 3)}')
    e(f'v_permlane32_swap_b32 {v(t)}, {v(t + 2)}')
    e(f'v_add_f32 {v(t)}, {v(t)}, {v(t + 2)}')
    e(f'v_mov_b32 {v(t + 1)}, {v(t)}')
    e(f'v_permlane16_swap_b32 {v(t)}, {v(t + 1)}')
    e(f'v_add_f32 {v(t)}, {v(t)}, {v(t + 1)}')


def unpack_bf16(e, dst, src, n):
    for i in range(n):
        e(f'v_lshlrev_b32 {v(dst + 2 * i)}, 16, {v(src + i)}')
        e(f'v_and_b32 {v(dst + 2 * i + 1)}, 0xffff0000, {v(src + i)}')


def gen_pre(e, name):
    S_WS, S_X, S_WQKV, S_WPHI, S_WO, S_W1, S_W2 = 4, 8, 12, 16, 20, 24, 28
    sw = 3
    e.reset()
    e(f'.globl {name}\n.p2align 8\n.type {name},@function\n{name}:')
    e('s_cmp_ge_u32 s2, 256')
    e('s_cbranch_scc1 Lpre_end')
    load_kernargs(e)
    e('v_lshrrev_b32 v1, 6, v0')
    e(f'v_readfirstlane_b32 s{sw}, v1')
    e('v_and_b32 v0, 63, v0')
    e('v_lshlrev_b32 v1, 4, v0')
    e('v_and_b32 v2, 15, v0')
    e('v_lshrrev_b32 v3, 4, v0')
    e('v_and_b32 v4, 31, v0')
    e('v_lshrrev_b32 v5, 5, v0')
    e('s_waitcnt lgkmcnt(0)')
    srd(e, S_WS, P_WS, WS_USED)
    srd(e, S_X, P_X, 2048 * 1280)
    srd(e, S_WQKV, P_WQKV, 640 * 3840)
    srd(e, S_WPHI, P_WPHI, 32 * 800)
    srd(e, S_WO, P_WO, 640 * 1280)
    srd(e, S_W1, P_W1, 640 * 3072)
    srd(e, S_W2, P_W2, 1536 * 1280)
    ws, xs_ = s_(S_WS, 4), s_(S_X, 4)

    e(f's_or_b32 s56, s2, s{sw}')
    e('s_cmp_lg_u32 s56, 0')
    e('s_cbranch_scc1 Lpre_noepoch')
    e(f's_mov_b32 s56, {EPOCH}')
    e('v_mov_b32 v6, 0')
    e(f'buffer_load_dword v7, v6, {ws}, s56 offen sc1')
    e('v_add_u32 v7, 1, v7')
    e(f'buffer_store_dword v7, v6, {ws}, s56 offen sc1')
    e('s_waitcnt vmcnt(0)')
    e('Lpre_noepoch:')

    ID, ONES = 8, 12
    e('v_and_b32 v6, 1, v2')
    e('v_lshlrev_b32 v6, 4, v6')
    e('v_mov_b32 v7, 0x3f80')
    e('v_lshlrev_b32 v6, v6, v7')
    e('v_lshrrev_b32 v7, 1, v2')
    e('v_lshlrev_b32 v10, 1, v3')
    e('v_cmp_eq_u32 vcc, v7, v10')
    e(f'v_cndmask_b32 {v(ID)}, 0, v6, vcc')
    e('v_add_u32 v10, 1, v10')
    e('v_cmp_eq_u32 vcc, v7, v10')
    e(f'v_cndmask_b32 {v(ID + 1)}, 0, v6, vcc')
    for i in range(4):
        e(f'v_mov_b32 {v(ONES + i)}, 0x3f803f80')

    e('s_and_b32 s56, s2, 7')
    e('s_lshr_b32 s57, s2, 6')
    e('s_bfe_u32 s58, s2, 0x30003')
    e('s_lshr_b32 s59, s58, 1')
    e('s_and_b32 s60, s58, 1')
    e('s_mul_i32 s59, s59, 5')
    e('s_mul_i32 s61, s60, 3')
    e('s_add_u32 s61, s61, s59')
    e('s_add_u32 s59, s59, 2')
    e('s_lshl_b32 s62, s56, 2')
    e('s_add_u32 s62, s62, s57')
    e('s_lshl_b32 s63, s62, 2')
    e(f's_add_u32 s63, s63, s{sw}')
    e('s_lshl_b32 s63, s63, 4')
    e('s_mul_i32 s64, s63, 1280')
    e('s_lshl_b32 s65, s61, 6')
    e('s_add_u32 s65, s65, s64')
    e('s_lshl_b32 s66, s59, 6')
    e('s_add_u32 s66, s66, s64')
    e('s_lshl_b32 s67, s60, 3')
    e('s_add_u32 s66, s66, s67')
    e('v_mul_u32_u24 v6, 1280, v2')
    e('v_lshl_add_u32 v6, v3, 4, v6')
    e(f'buffer_load_dwordx4 v[16:19], v6, {xs_}, s65 offen')
    e(f'buffer_load_dwordx4 v[20:23], v6, {xs_}, s65 offen offset:64')
    e(f'buffer_load_dwordx2 v[24:25], v6, {xs_}, s66 offen')
    e('s_lshl_b32 s68, s62, 1')
    e(f's_lshr_b32 s69, s{sw}, 1')
    e('s_add_u32 s68, s68, s69')
    e('s_mul_i32 s68, s68, 40960')
    e(f's_and_b32 s69, s{sw}, 1')
    e('s_lshl_b32 s69, s69, 8')
    e('s_add_u32 s68, s68, s69')
    e(f's_add_u32 s68, s68, {ACT + XF_O}')
    e('s_lshl_b32 s69, s61, 11')
    e('s_add_u32 s69, s69, s68')
    e('s_lshl_b32 s70, s59, 11')
    e('s_add_u32 s70, s70, s68')
    e('s_add_u32 s70, s70, s67')
    e('v_lshlrev_b32 v7, 9, v3')
    e('v_lshl_add_u32 v7, v2, 4, v7')
    e(f'buffer_store_dwordx4 v[16:19], v7, {ws}, s69 offen')
    e(f'buffer_store_dwordx4 v[20:23], v7, {ws}, s69 offen offset:2048')
    e(f'buffer_store_dwordx2 v[24:25], v7, {ws}, s70 offen')
    unpack_bf16(e, 28, 16, 10)
    row_stats(e, 28, 48)
    e('v_lshlrev_b32 v7, 6, v2')
    e('v_lshl_add_u32 v7, v5, 5, v7')
    e('v_and_b32 v10, 1, v3')
    e('v_lshl_add_u32 v7, v10, 30, v7')
    e('s_lshl_b32 s64, s63, 6')
    e('s_lshl_b32 s65, s58, 2')
    e('s_add_u32 s64, s64, s65')
    e(f's_add_u32 s64, s64, {ACT + ST_O}')
    e(f'buffer_store_dword v48, v7, {ws}, s64 offen')

    e('s_cmp_ge_u32 s2, 160')
    e('s_cbranch_scc1 Lpre_noqkv')
    e('s_and_b32 s56, s2, 7')
    e('s_lshl_b32 s56, s56, 2')
    e(f's_add_u32 s56, s56, s{sw}')
    e('s_lshr_b32 s57, s2, 3')
    e('v_and_b32 v6, 19, v4')
    e('v_bfe_u32 v7, v4, 2, 1')
    e('v_lshl_add_u32 v6, v7, 3, v6')
    e('v_bfe_u32 v10, v4, 3, 1')
    e('v_lshl_add_u32 v6, v10, 2, v6')
    e('v_mul_u32_u24 v6, 3840, v6')
    e(f's_mul_i32 s58, s57, {32 * 3840}')
    e('s_mul_i32 s59, s56, 40')
    e('s_add_u32 s58, s58, s59')
    e('v_lshl_add_u32 v10, v5, 4, v6')
    AQ, AK, AV, AT0, AT1 = 16, 20, 24, 28, 30
    wq = s_(S_WQKV, 4)
    e(f'buffer_load_dwordx4 {v(AQ, 4)}, v10, {wq}, s58 offen')
    e(f'buffer_load_dwordx4 {v(AK, 4)}, v10, {wq}, s58 offen offset:1280')
    e(f'buffer_load_dwordx4 {v(AV, 4)}, v10, {wq}, s58 offen offset:2560')
    e('v_mul_u32_u24 v11, 1280, v5')
    e('v_add_u32 v10, v6, v11')
    e(f'buffer_load_dwordx2 {v(AT0, 2)}, v10, {wq}, s58 offen offset:{1280 + 32}')
    e('v_add_u32 v10, v10, v11')
    e(f'buffer_load_dwordx2 {v(AT1, 2)}, v10, {wq}, s58 offen offset:32')
    e('v_lshrrev_b32 v6, 3, v4')
    e('v_and_b32 v10, 3, v4')
    e('v_lshl_add_u32 v6, v6, 2, v10')
    e('v_mul_u32_u24 v7, 10, v7')
    e('v_add_u32 v7, v7, v6')
    e('v_lshlrev_b32 v10, 1, v7')
    e('v_cmp_gt_u32 vcc, 10, v6')
    e(f'v_mov_b32 v11, {OOB}')
    e('v_cndmask_b32 v10, v11, v10, vcc')
    e('v_lshl_add_u32 v11, v5, 30, v10')
    e('v_mul_u32_u24 v32, 320, v5')
    e('v_add_u32 v10, v10, v32')
    e('s_mul_i32 s59, s56, 800')
    ph = s_(S_WPHI, 4)
    for k in range(8):
        e(f'buffer_load_ushort {v(32 + k)}, v10, {ph}, s59 offen offset:{40 * k}')
    for k in range(4):
        e(f'buffer_load_ushort {v(40 + k)}, v11, {ph}, s59 offen offset:{640 + 40 * k}')
    BP, BV0, BV1, BT0, BT1 = 44, 48, 52, 56, 58
    e('v_lshlrev_b32 v62, 2, v5')
    for (bv, bt, off, hi) in ((BV0, BT0, 10, 16), (BV1, BT1, 4, 14)):
        e(f'v_subrev_u32 v60, {off}, v7')
        e('v_cmp_le_u32 s[60:61], 10, v6')
        e(f'v_cmp_gt_u32 vcc, {hi}, v6')
        e('s_and_b64 vcc, vcc, s[60:61]')
        e('v_cndmask_b32 v60, 64, v60, vcc')
        e('v_and_b32 v61, 1, v60')
        e('v_lshlrev_b32 v61, 4, v61')
        e('v_mov_b32 v63, 0x3f80')
        e('v_lshlrev_b32 v61, v61, v63')
        e('v_lshrrev_b32 v60, 1, v60')
        e('v_sub_u32 v63, v60, v62')
        for q in range(4):
            e(f'v_cmp_eq_u32 vcc, {q}, v63')
            e(f'v_cndmask_b32 {v(bv + q)}, 0, v61, vcc')
        e('v_cmp_eq_u32 vcc, 1, v5')
        e('v_cndmask_b32 v61, 0, v61, vcc')
        for q in range(2):
            e(f'v_cmp_eq_u32 vcc, {8 + q}, v60')
            e(f'v_cndmask_b32 {v(bt + q)}, 0, v61, vcc')
    for q in range(4):
        e(f'v_lshl_or_b32 {v(BP + q)}, {v(33 + 2 * q)}, 16, {v(32 + 2 * q)}')
    for q in range(2):
        e(f'v_lshl_or_b32 v60, {v(41 + 2 * q)}, 16, {v(40 + 2 * q)}')
        e(f'v_or_b32 {v(BT0 + q)}, {v(BT0 + q)}, v60')
        e(f'v_or_b32 {v(BT1 + q)}, {v(BT1 + q)}, v60')
    D0, D1, FR, C0, C1 = 64, 80, 96, 112, 128
    e(f'{M32} {v(D0, 16)}, {v(AK, 4)}, {v(BP, 4)}, 0')
    e(f'{M32} {v(D1, 16)}, {v(AQ, 4)}, {v(BP, 4)}, 0')
    e(f'{M32} {v(D0, 16)}, {v(AV, 4)}, {v(BV0, 4)}, {v(D0, 16)}')
    e(f'{M32} {v(D1, 16)}, {v(AV, 4)}, {v(BV1, 4)}, {v(D1, 16)}')
    e(f'{M32H} {v(D0, 16)}, {v(AT0, 2)}, {v(BT0, 2)}, {v(D0, 16)}')
    e(f'{M32H} {v(D1, 16)}, {v(AT1, 2)}, {v(BT1, 2)}, {v(D1, 16)}')
    e('s_mul_i32 s58, s56, 81920')
    e('s_lshl_b32 s59, s57, 12')
    e('s_add_u32 s58, s58, s59')
    if WQ:
        e(f's_add_u32 s58, s58, {WQ}')
    for T, D in ((0, D0), (1, D1)):
        for half in range(2):
            f = FR + 8 * T + 4 * half
            for q in range(4):
                e(f'v_cvt_pk_bf16_f32 {v(f + q)}, {v(D + 8 * half + 2 * q)}, {v(D + 8 * half + 2 * q + 1)}')
            e(f'buffer_store_dwordx4 {v(f, 4)}, v1, {ws}, s58 offen offset:{2048 * half + 1024 * T}')
    for T, C in ((0, C0), (1, C1)):
        e(f'{M32} {v(C, 16)}, {v(ONES, 4)}, {v(FR + 8 * T, 4)}, 0')
        e(f'{M32} {v(C, 16)}, {v(ONES, 4)}, {v(FR + 8 * T + 4, 4)}, {v(C, 16)}')
    e('v_cmp_eq_u32 vcc, 1, v5')
    e('v_mul_u32_u24 v6, 80, v0')
    e('s_mul_i32 s58, s56, 5120')
    e('s_lshl_b32 s59, s57, 2')
    e('s_add_u32 s58, s58, s59')
    e(f's_add_u32 s58, s58, {CSQ}')
    e(f'v_cndmask_b32 v7, {v(C0)}, {v(C1)}, vcc')
    e(f'buffer_store_dword v7, v6, {ws}, s58 offen')
    e('s_nop 4')
    e('Lpre_noqkv:')

    def transpose_frag(dst, src0, src1, t):
        e(f'{M16H} {v(t, 4)}, {v(src0, 2)}, {v(ID, 2)}, 0')
        e(f'{M16H} {v(t + 4, 4)}, {v(src1, 2)}, {v(ID, 2)}, 0')
        for q in range(4):
            e(f'v_cvt_pk_bf16_f32 {v(dst + q)}, {v(t + 2 * q)}, {v(t + 2 * q + 1)}')

    e('v_lshrrev_b32 v66, 2, v2')
    e('v_and_b32 v67, 3, v2')
    e('s_cmp_lt_u32 s2, 96')
    e('s_cbranch_scc1 Lpre_now1')
    e('s_sub_u32 s56, s2, 96')
    e('s_lshr_b32 s57, s56, 3')
    e('s_and_b32 s56, s56, 7')
    e('s_lshl_b32 s56, s56, 2')
    e(f's_add_u32 s56, s56, s{sw}')
    e('v_lshl_add_u32 v6, v66, 3, v67')
    e('v_mul_u32_u24 v6, 3072, v6')
    e('v_lshl_add_u32 v7, v3, 3, v6')
    e('v_lshl_add_u32 v6, v3, 4, v6')
    e(f's_mul_i32 s58, s57, {32 * 3072}')
    e('s_mul_i32 s59, s56, 96')
    e('s_add_u32 s58, s58, s59')
    e(f's_add_u32 s59, s58, {4 * 3072}')
    w1 = s_(S_W1, 4)
    e(f'buffer_load_dwordx4 v[16:19], v6, {w1}, s58 offen')
    e(f'buffer_load_dwordx4 v[20:23], v6, {w1}, s59 offen')
    e(f'buffer_load_dwordx2 v[24:25], v7, {w1}, s58 offen offset:64')
    e(f'buffer_load_dwordx2 v[26:27], v7, {w1}, s59 offen offset:64')
    e('s_mul_i32 s58, s56, 61440')
    e('s_mul_i32 s59, s57, 3072')
    e('s_add_u32 s58, s58, s59')
    e(f's_add_u32 s58, s58, {W1F}')
    for lt, (s0, s1) in enumerate(((16, 20), (18, 22), (24, 26))):
        transpose_frag(28 + 4 * lt, s0, s1, 40 + 8 * lt)
        e(f'buffer_store_dwordx4 {v(28 + 4 * lt, 4)}, v1, {ws}, s58 offen offset:{1024 * lt}')
    for lt in range(3):
        e(f'{M16} {v(72 + 4 * lt, 4)}, {v(ONES, 4)}, {v(28 + 4 * lt, 4)}, 0')
    e('v_mul_u32_u24 v6, 80, v0')
    e('v_cmp_eq_u32 vcc, 3, v3')
    e(f'v_mov_b32 v7, {OOB}')
    e('v_cndmask_b32 v6, v6, v7, vcc')
    e('s_mul_i32 s58, s56, 3840')
    e('s_lshl_b32 s59, s57, 2')
    e('s_add_u32 s58, s58, s59')
    e(f's_add_u32 s58, s58, {CS1}')
    e('v_cmp_eq_u32 vcc, 1, v3')
    e('v_cndmask_b32 v7, v72, v76, vcc')
    e('v_cmp_eq_u32 vcc, 2, v3')
    e('v_cndmask_b32 v7, v7, v80, vcc')
    e(f'buffer_store_dword v7, v6, {ws}, s58 offen')
    e('s_nop 4')
    e('Lpre_now1:')

    def colblock(src, base, jstride):
        e('s_mul_i32 s62, s62, 1280')
        e('s_mul_i32 s63, s63, 1280')
        e('s_lshl_b32 s58, s57, 6')
        e('s_add_u32 s62, s62, s58')
        e('s_add_u32 s63, s63, s58')
        e('v_mul_u32_u24 v6, 1280, v6')
        e('v_lshl_add_u32 v6, v3, 4, v6')
        e(f'buffer_load_dwordx4 v[16:19], v6, {src}, s62 offen')
        e(f'buffer_load_dwordx4 v[20:23], v6, {src}, s63 offen')
        sdiv(e, 58, 59, 57, 5)
        e('s_lshl_b32 s58, s58, 1')
        e('s_sub_u32 s60, s59, 3')
        e('s_cmp_gt_u32 s59, 2')
        e('s_cselect_b32 s60, s60, s59')
        e('s_addc_u32 s58, s58, 0')
        e(f's_mul_i32 s58, s58, {jstride}')
        e('s_lshl_b32 s60, s60, 11')
        e('s_add_u32 s58, s58, s60')
        e('s_mul_i32 s60, s56, 5120')
        e('s_add_u32 s58, s58, s60')
        e(f's_add_u32 s58, s58, {base}')
        e('s_cmp_eq_u32 s59, 2')
        e(f's_mov_b32 s60, {jstride}')
        e('s_cselect_b32 s60, s60, 1024')
        e('s_add_u32 s60, s60, s58')
        transpose_frag(28, 16, 20, 40)
        e(f'buffer_store_dwordx4 v[28:31], v1, {ws}, s58 offen')
        transpose_frag(32, 18, 22, 48)
        e(f'buffer_store_dwordx4 v[32:35], v1, {ws}, s60 offen')
        e('s_nop 4')

    e('s_cmp_ge_u32 s2, 240')
    e('s_cbranch_scc1 Lpre_now2')
    sdiv(e, 56, 57, 2, 5)
    e('s_lshl_b32 s57, s57, 2')
    e(f's_add_u32 s57, s57, s{sw}')
    sdiv(e, 58, 59, 56, 3)
    e('s_mul_i32 s62, s58, 96')
    e('s_mul_i32 s60, s59, 24')
    e('s_cmp_eq_u32 s59, 1')
    e('s_cselect_b32 s60, 32, s60')
    e('s_cselect_b32 s61, 48, 4')
    e('s_cselect_b64 vcc, -1, 0')
    e('s_add_u32 s62, s62, s60')
    e('s_add_u32 s63, s62, s61')
    e('v_lshl_add_u32 v6, v66, 3, v67')
    e('v_cndmask_b32 v6, v6, v2, vcc')
    colblock(s_(S_W2, 4), W2F, 245760)
    e('Lpre_now2:')

    e('s_cmp_lt_u32 s2, 156')
    e('s_cbranch_scc1 Lpre_nowo')
    e('s_sub_u32 s64, s2, 156')
    sdiv(e, 56, 57, 64, 5)
    e('s_lshl_b32 s57, s57, 2')
    e(f's_add_u32 s57, s57, s{sw}')
    sdiv(e, 58, 59, 56, 5)
    e('s_mul_i32 s62, s58, 160')
    e('s_mul_i32 s60, s59, 40')
    e('s_cmp_eq_u32 s59, 4')
    e('s_cselect_b32 s60, 8, s60')
    e('s_cselect_b32 s61, 20, 4')
    e('s_cselect_b64 vcc, -1, 0')
    e('s_add_u32 s62, s62, s60')
    e('s_add_u32 s63, s62, s61')
    e('v_mul_u32_u24 v6, 10, v66')
    e('v_add_u32 v6, v6, v67')
    e('v_mul_u32_u24 v7, 40, v66')
    e('v_lshrrev_b32 v10, 1, v67')
    e('v_mul_u32_u24 v10, 10, v10')
    e('v_and_b32 v11, 1, v67')
    e('v_add3_u32 v7, v7, v10, v11')
    e('v_cndmask_b32 v6, v6, v7, vcc')
    colblock(s_(S_WO, 4), WOF, 102400)
    e('Lpre_nowo:')
    e('Lpre_end:')
    e('s_endpgm')
```

```python
WQ = 0x0000000
W1F = 0x0280000
W2F = 0x0460000
WOF = 0x0640000
CSQ = 0x0710000
CS1 = 0x0740000
FL = 0x0760000
EPOCH = 0x0770000
STAMP = 0x0778000
KVP = 0x0800000
ACT = 0x0A00000
XF_O = 0x0000000
OF_O = 0x0280000
X1F_O = 0x0500000
HF_O = 0x0780000
ST_O = 0x0D80000
ST1_O = 0x0DA0000
ACT_STRIDE = 0x0E00000
WS_USED = ACT + 2 * ACT_STRIDE
STAMP = WS_USED
WS_USED += 0x40000

LDS_WQ = 0
LDS_W1 = 81920
LDS_EX = 143360
LDS_TOTAL = 163840
OOB = 0x40000000
```

```python
import sys
from asmlib import *
from layout import *
import gen_pre, gen_main

NAME = 'interleave_layers__linear_kernel_hedgehog__dense_activation_squared_relu__prompt'

def kd(name, vgpr, accum):
    return f""".amdhsa_kernel {name}
  .amdhsa_next_free_vgpr {vgpr}
  .amdhsa_next_free_sgpr 102
  .amdhsa_accum_offset {accum}
  .amdhsa_group_segment_fixed_size 0
  .amdhsa_kernarg_size 96
  .amdhsa_user_sgpr_count 2
  .amdhsa_user_sgpr_kernarg_segment_ptr 1
  .amdhsa_system_sgpr_workgroup_id_x 1
.end_amdhsa_kernel
"""

def build(cfg, only_pre=False):
    e = Asm()
    gen_pre.gen_pre(e, 'prep_kernel')
    m = gen_main.Main(e, cfg)
    m.gen(NAME + '_kernel')
    body = e.finalize()
    hdr = '; @launch kernel=prep_kernel grid=(256,1,1) block=(256,1,1) lds=0\n'
    if not only_pre:
        hdr += f'; @launch kernel={NAME}_kernel grid=(256,1,1) block=(256,1,1) lds={LDS_TOTAL}\n'
    txt = hdr + '.amdgcn_target "amdgcn-amd-amdhsa--gfx950"\n.text\n' + body
    txt += '.section .rodata,"a"\n.p2align 6\n' + kd('prep_kernel', 160, 160) + '.p2align 6\n' + kd(NAME + '_kernel', 512, 256)
    return txt, e, m

if __name__ == '__main__':
    cfg = gen_main.Cfg()
    for a in sys.argv[2:]:
        k, val = a.split('=')
        setattr(cfg, k, type(getattr(cfg, k))(eval(val)) if not isinstance(getattr(cfg, k), str) else val)
    txt, e, m = build(cfg)
    open(sys.argv[1], 'w').write(txt)
    print('instructions', len(e.ins), e.stats, 'pending at labels:', e.pending)
```

```python
import re

REG_RE = re.compile(r'^(-?)\|?(?:abs\()?([vas])(?:(\d+)|\[(\d+):(\d+)\])\)?\|?$')
TRANS = ('v_exp_f32', 'v_log_f32', 'v_rcp_f32', 'v_rsq_f32', 'v_sqrt_f32', 'v_sin_f32', 'v_cos_f32')
NO_DST_SALU = ('s_cmp', 's_waitcnt', 's_nop', 's_barrier', 's_branch', 's_cbranch', 's_endpgm', 's_sleep',
               's_setprio', 's_bitcmp', 's_setpc', 's_sendmsg', 's_setreg')


def regs_of(tok):
    tok = tok.strip()
    if tok == 'vcc':
        return {('s', 106), ('s', 107)}
    if tok == 'vcc_lo':
        return {('s', 106)}
    if tok == 'vcc_hi':
        return {('s', 107)}
    if tok == 'exec':
        return {('s', 126), ('s', 127)}
    if tok == 'exec_lo':
        return {('s', 126)}
    if tok == 'exec_hi':
        return {('s', 127)}
    if tok == 'm0':
        return {('s', 124)}
    m = REG_RE.match(tok)
    if not m:
        return set()
    k = m.group(2)
    if m.group(3) is not None:
        return {(k, int(m.group(3)))}
    return {(k, i) for i in range(int(m.group(4)), int(m.group(5)) + 1)}


def split_ops(s):
    out, depth, cur = [], 0, ''
    for ch in s:
        if ch in '[(':
            depth += 1
        elif ch in '])':
            depth -= 1
        if ch == ',' and depth == 0:
            out.append(cur.strip())
            cur = ''
        else:
            cur += ch
    if cur.strip():
        out.append(cur.strip())
    return out


class Ins:
    __slots__ = ('text', 'op', 'ops', 'mods', 'rd', 'wr', 'cls', 'tag', 'track', 'srcc', 'srcab', 'passes', 'wide',
                 'data', 'sel')

    def __init__(self, text, tag=None, track=True):
        self.text, self.tag, self.track = text, tag, track
        self.rd, self.wr, self.srcc, self.srcab, self.data = set(), set(), set(), set(), set()
        self.passes, self.wide, self.sel = 0, False, False
        t = text.strip()
        if t.endswith(':') or t.startswith('.') or t.startswith(';') or not t:
            self.op, self.ops, self.mods = t, [], ''
            self.cls = 'label' if t.endswith(':') else 'dir'
            return
        parts = t.split(None, 1)
        self.op = parts[0]
        rest = parts[1] if len(parts) > 1 else ''
        ops = split_ops(rest)
        mods = ''
        if ops:
            last = ops[-1].split(None, 1)
            if len(last) > 1 and not ops[-1].startswith('hwreg') and not self.op.startswith('s_waitcnt'):
                ops[-1], mods = last[0], last[1]
        self.ops, self.mods = ops, mods
        R = [regs_of(o) for o in ops]
        op = self.op
        u = lambda xs: set().union(*xs) if xs else set()
        if op.startswith('v_mfma'):
            self.cls = 'mfma'
            self.wr, self.srcab, self.srcc = R[0], R[1] | R[2], R[3]
            self.rd = self.srcab | self.srcc
            self.passes = 8 if '32x32' in op else 4
        elif op.startswith('buffer_load') or op.startswith('global_load'):
            self.cls = 'vmem'
            if ' lds' in ' ' + mods:
                self.rd = u(R) | {('s', 124)}
            else:
                self.wr, self.rd = R[0], u(R[1:])
        elif op.startswith('buffer_store'):
            self.cls = 'vmem'
            self.rd, self.data = u(R), R[0]
            self.wide = op.endswith('x3') or op.endswith('x4')
        elif op.startswith('buffer_atomic'):
            self.cls = 'vmem'
            self.rd = u(R)
            if 'sc0' in mods:
                self.wr = R[0]
        elif op.startswith('buffer_'):
            self.cls = 'vmem'
        elif op.startswith('ds_read') or op.startswith('ds_bpermute') or op.startswith('ds_swizzle'):
            self.cls = 'ds'
            self.wr, self.rd = R[0], u(R[1:])
        elif op.startswith('ds_'):
            self.cls = 'ds'
            self.rd = u(R)
        elif op.startswith('s_load') or op.startswith('s_memtime') or op.startswith('s_memrealtime') \
                or op.startswith('s_buffer_load'):
            self.cls = 'smem'
            self.wr, self.rd = R[0], u(R[1:])
        elif op.startswith('s_'):
            self.cls = 'salu'
            if op.startswith(NO_DST_SALU):
                self.rd = u(R)
            else:
                self.wr, self.rd = R[0], u(R[1:])
                if 'saveexec' in op:
                    self.wr |= regs_of('exec')
            if op.startswith('s_cbranch_vcc'):
                self.rd |= regs_of('vcc')
        elif op.startswith('v_'):
            self.cls = 'valu'
            if 'permlane' in op and 'swap' in op:
                self.wr = R[0] | R[1]
                self.rd = R[0] | R[1]
            elif op.startswith(('v_add_co', 'v_sub_co', 'v_addc_co', 'v_subb_co', 'v_mad_u64', 'v_div_scale')):
                self.wr, self.rd = R[0] | R[1], u(R[2:])
            elif op == 'v_nop':
                pass
            else:
                self.wr, self.rd = R[0], u(R[1:])
                if op.startswith(('v_fmac', 'v_dot2c', 'v_pk_fmac', 'v_writelane')) or '_dpp' in op:
                    self.rd |= R[0]
            self.sel = 'sdwa' in op
        else:
            raise ValueError('unknown instruction class: ' + text)

    def states(self):
        if self.cls in ('label', 'dir'):
            return 0
        if self.op == 's_nop':
            return int(self.ops[0], 0) + 1
        return 1


def need_states(p, c):
    n = 0
    vreg = lambda s: {r for r in s if r[0] != 's'}
    sreg = lambda s: {r for r in s if r[0] == 's'}
    if p.cls == 'valu':
        ws, wv = sreg(p.wr), vreg(p.wr)
        if ws:
            if c.cls == 'vmem' and ws & c.rd:
                n = max(n, 5)
            if c.cls == 'valu' and ws & c.rd:
                n = max(n, 4 if 'lane' in c.op else 2)
            if c.cls == 'valu' and c.op.startswith('v_cndmask') and len(c.ops) == 3 and ('s', 106) in ws:
                n = max(n, 2)
        if wv:
            if c.cls == 'mfma' and wv & c.rd:
                n = max(n, 2)
            if c.cls == 'valu' and wv & c.rd:
                if 'permlane' in c.op or '_dpp' in c.op:
                    n = max(n, 2)
                if c.op.startswith(('v_readlane', 'v_readfirstlane')):
                    n = max(n, 1)
                if p.op.startswith(TRANS) and not c.op.startswith(TRANS):
                    n = max(n, 1)
                if p.sel:
                    n = max(n, 1)
                if p.op.startswith('v_dot'):
                    same_c = c.op == p.op and not (wv & (regs_of(c.ops[1]) | regs_of(c.ops[2])))
                    n = max(n, 0 if same_c else 3)
            if p.op.startswith('v_dot') and c.cls in ('vmem', 'ds', 'mfma') and wv & c.rd:
                n = max(n, 3)
            if p.op.startswith('v_dot') and c.cls == 'valu' and c.op != p.op and wv & c.wr:
                n = max(n, 3)
    elif p.cls == 'mfma':
        big = p.passes == 8
        if c.cls == 'mfma':
            if p.wr & c.srcab:
                n = max(n, 12 if big else 8)
            if p.wr & c.srcc and not (p.wr == c.srcc and p.op == c.op):
                n = max(n, 10 if big else 6)
            if p.wr & c.wr and not (p.wr == c.srcc and p.op == c.op):
                n = max(n, 10 if big else 6)
        elif c.cls in ('valu', 'vmem', 'ds'):
            if p.wr & (c.rd | c.wr):
                n = max(n, 12 if big else 8)
            if p.srcc & c.wr:
                n = max(n, 7 if big else 3)
    elif p.cls == 'vmem':
        if p.wide and p.data & c.wr:
            n = max(n, 2)
    elif p.cls == 'salu':
        if ('s', 124) in p.wr and c.cls == 'vmem' and ('s', 124) in c.rd:
            n = max(n, 1)
    return n


class Asm:
    def __init__(self):
        self.ins = []

    def __call__(self, text, tag=None, track=True):
        if isinstance(text, Ins):
            self.ins.append(text)
            return
        for line in text.split('\n'):
            if line.startswith('@need '):
                self.need(*line[6:].split())
                continue
            if line.startswith('@wait '):
                self.wait_tag(line[6:].strip())
                continue
            tag = None
            if ' #' in line:
                line, tag = line.split(' #')
            line = line.split(';')[0].rstrip() if not line.strip().startswith(';') else line
            if line.strip():
                self.ins.append(Ins(line.strip(), tag, track))

    def extend(self, other):
        self.ins.extend(other.ins if isinstance(other, Asm) else other)

    def wait_tag(self, tag):
        i = Ins('; wait ' + str(tag))
        i.cls, i.tag = 'waittag', tag
        self.ins.append(i)

    def need(self, *regs):
        i = Ins('; need')
        i.cls = 'need'
        for r in regs:
            i.rd |= regs_of(r)
        self.ins.append(i)

    def reset(self):
        i = Ins('; reset')
        i.cls = 'reset'
        self.ins.append(i)

    def finalize(self):
        out, vm, lg = [], [], []
        hist = []
        seen, closed = set(), set()
        self.stats = {'nops': 0, 'waits': 0}
        self.pending = []

        def push(i):
            out.append(i)
            if i.states():
                hist.append(i)
                if len(hist) > 24:
                    del hist[0]

        for c in self.ins:
            if c.cls == 'reset':
                vm, lg, hist = [], [], []
                seen, closed = set(), set()
                continue
            if c.cls in ('label', 'dir'):
                if c.cls == 'label' and any(e.wr for e in vm + lg):
                    self.pending.append(c.text)
                out.append(c)
                continue
            nvm = nlg = None
            if c.cls == 'vmem' and c.tag:
                assert c.tag not in closed, f'{c.tag} issued after its wait: {c.text}'
                seen.add(c.tag)
            if c.cls == 'waittag':
                assert c.tag in seen, f'wait for {c.tag} before its issue'
                closed.add(c.tag)
                idx = max((k for k, e in enumerate(vm) if e.tag == c.tag), default=None)
                if idx is not None:
                    nvm = len(vm) - 1 - idx
            elif c.op == 's_waitcnt':
                m = re.search(r'vmcnt\((\d+)\)', c.text)
                if m:
                    n = int(m.group(1))
                    vm = vm[len(vm) - n:] if n < len(vm) and n else ([] if n == 0 else vm)
                m = re.search(r'lgkmcnt\((\d+)\)', c.text)
                if m:
                    n = int(m.group(1))
                    if n == 0:
                        lg = []
                    elif not any(e.cls == 'smem' for e in lg) and n < len(lg):
                        lg = lg[len(lg) - n:]
                push(c)
                continue
            else:
                touch = c.rd | c.wr
                vtouch = c.rd if c.cls == 'vmem' else touch
                idx = max((k for k, e in enumerate(vm) if e.wr & vtouch), default=None)
                if idx is not None:
                    nvm = len(vm) - 1 - idx
                idx = max((k for k, e in enumerate(lg) if e.wr & touch), default=None)
                if idx is not None:
                    nlg = 0 if any(e.cls == 'smem' for e in lg) else len(lg) - 1 - idx
            parts = []
            if nvm is not None:
                vm = vm[len(vm) - nvm:] if nvm else []
                parts.append(f'vmcnt({min(nvm, 63)})')
            if nlg is not None:
                lg = lg[len(lg) - nlg:] if nlg else []
                parts.append(f'lgkmcnt({min(nlg, 15)})')
            if parts:
                push(Ins('s_waitcnt ' + ' '.join(parts)))
                self.stats['waits'] += 1
            if c.cls in ('waittag', 'need'):
                continue
            need, dist = 0, 0
            for p in reversed(hist):
                need = max(need, need_states(p, c) - dist)
                dist += p.states()
                if dist >= 20:
                    break
            while need > 0:
                k = min(need, 16)
                push(Ins(f's_nop {k - 1}'))
                self.stats['nops'] += k
                need -= k
            push(c)
            if c.track:
                if c.cls == 'vmem':
                    vm.append(c)
                elif c.cls in ('ds', 'smem'):
                    lg.append(c)
        return '\n'.join(('' if i.cls in ('label', 'dir') else '    ') + i.text for i in out) + '\n'


def interleave(main, fill, every):
    out, k = [], 0
    for i, m in enumerate(main):
        out.append(m)
        n = every(i, m)
        out.extend(fill[k:k + n])
        k += n
    out.extend(fill[k:])
    return out


def v(a, n=1):
    return f'v{a}' if n == 1 else f'v[{a}:{a + n - 1}]'


def a_(a, n=1):
    return f'a{a}' if n == 1 else f'a[{a}:{a + n - 1}]'


def s_(a, n=1):
    return f's{a}' if n == 1 else f's[{a}:{a + n - 1}]'
```

```python
WQ = 0x0000000
W1F = 0x0280000
W2F = 0x0460000
WOF = 0x0640000
CSQ = 0x0710000
CS1 = 0x0738000
FL = 0x0760000
G1 = 0x0764000
G2 = 0x0770000
EPOCH = 0x076C000
KVP = 0x0800000
ACT = 0x0A00000
XF_O = 0x0000000
OF_O = 0x0280000
X1F_O = 0x0500000
HF_O = 0x0780000
ST_O = 0x0D80000
ST1_O = 0x0DA0000
ACT_STRIDE = 0x0E00000
WS_USED = ACT + 2 * ACT_STRIDE
STAMP = WS_USED
WS_USED += 0x40000
RG, RSTR, RG_W1, RG_W2 = WS_USED, 221184, 98304, 159744
WS_USED += 32 * RSTR
G3 = 0x0778000

LDS_WQ = 0
LDS_W1 = 81920
LDS_EX = 143360
LDS_TOTAL = 163840
OOB = 0x40000000
```

```python
import sys
from asmlib import *
from layout import *

NAME = 'interleave_layers__linear_kernel_hedgehog__dense_activation_squared_relu__prompt'
M32 = 'v_mfma_f32_32x32x16_bf16'
M32H = 'v_mfma_f32_32x32x8_bf16'
M16 = 'v_mfma_f32_16x16x32_bf16'
M16H = 'v_mfma_f32_16x16x16_bf16'

P_X, P_WQKV, P_WPHI, P_WO, P_BX, P_W1, P_B1, P_W2, P_B2, P_OUT, P_DBG, P_WS = [64 + 2 * i for i in range(12)]
S_WS, S_OUT, S_B2, S_X, S_WQKV, S_WPHI, S_WO, S_W1, S_W2, S_B1 = range(4, 44, 4)
WS, OUT, B2 = s_(S_WS, 4), s_(S_OUT, 4), s_(S_B2, 4)
sW = 3
sSET, sC, sGI, sJ, sTAG, sSG, sSW, sCNT, sVAL, sKSA, sKSS, sPAR, sLO, sHI = range(48, 62)
sSTAMP = 64

vL16, vB2, vB3, vXF, vXS1, vXS2, vST, vSTL, vOM, vOR, vKVS, vKVL, vT0, vT1, vT2, vT3 = range(16)
R = 16
PA, PB = 36, 40
A00, A01, A10, A11 = 44, 60, 76, 92
E, D16, KV1, CB, SP, STT = 108, 128, 144, 160, 164, 168
WO_E, WO_L = 176, 144
aCQ, aC1, aB1 = 240, 244, 250
LOG2E, INV640, EPS_LN, EPS_DEN = 0x3fb8aa3b, 0x3acccccd, 0x3727c5ac, 0x358637bd
EXO = LDS_EX - 131072
SEQ_G1, SEQ_G2, SEQ_KV = 11, 12, 9
F_X, F_O, F_X1, F_H = range(4)
KVS = 768


class Cfg:
    stamps = False
    rt = False
    alias = True
    force_slow = False
    both = True
    d1 = 7
    d1x = 10
    d2 = 5
    d3 = 7
    w2split = (16, 8, 10)
    wb = False
    fa = (123, 165, 180)
    ga = (200, 218)
    fb = (242, 276, 290)
    gb = (312, 334)


def lds(off):
    return (vL16, vB2, vB3)[off >> 16], off & 0xffff


def spread(after, items, start, step=1, per=1):
    for n, x in enumerate(items):
        after.setdefault(start + (n // per) * step, []).append(x)


def fill(after, items, start, end):
    n = len(items)
    for k, x in enumerate(items):
        after.setdefault(start + k * (end - start) // n, []).append(x)


class Gen:
    def __init__(self, cfg):
        self.e, self.cfg = Asm(), cfg
        self.nstamp, self.nlab, self.stamp_names, self.tails = 0, 0, [], []
        self.st, self.stamping = '', cfg.stamps

    def act(self, L, off):
        if self.cfg.alias:
            return ACT + {XF_O: XF_O, X1F_O: XF_O, OF_O: HF_O, HF_O: HF_O, ST_O: ST_O, ST1_O: ST_O}[off]
        return ACT + L * ACT_STRIDE + off

    def ostride(self):
        return 196608 if self.cfg.alias else 81920

    def stamp(self, name):
        if not self.stamping:
            return
        e = self.e
        e(('s_memrealtime' if self.cfg.rt else 's_memtime') + ' s[62:63]')
        e('s_waitcnt lgkmcnt(0)')
        e(f's_mov_b32 s{sSTAMP + self.nstamp}, s62')
        self.stamp_names.append(name)
        self.nstamp += 1
        assert self.nstamp <= 36

    def label(self, base):
        self.nlab += 1
        return f'L{base}_{self.nlab}'

    def srd(self, d, p, nbytes):
        e = self.e
        e(f's_mov_b32 s{d}, s{p}')
        e(f's_and_b32 s{d + 1}, s{p + 1}, 0xffff')
        e(f's_mov_b32 s{d + 2}, {nbytes}')
        e(f's_mov_b32 s{d + 3}, 0x20000')

    def sdiv(self, q, r, x, d):
        e = self.e
        e(f's_mul_i32 s{q}, s{x}, {(1 << 16) // d + 1}')
        e(f's_lshr_b32 s{q}, s{q}, 16')
        e(f's_mul_i32 s{r}, s{q}, {d}')
        e(f's_sub_u32 s{r}, s{x}, s{r}')

    def capture(self, fn):
        keep, self.e = self.e, Asm()
        fn()
        out, self.e = self.e.ins, keep
        return out

    def weave(self, main, after):
        for i, m in enumerate(main):
            self.e(m)
            for x in after.pop(i, ()):
                self.e(x)
        assert not after, sorted(after)

    def flag_line(self, d, line, sidx):
        self.e(f's_lshl_b32 s{d}, s{sidx}, 7')
        self.e(f's_add_u32 s{d}, s{d}, {FL + line * 4096}')

    def spin(self, load, check):
        e, lab = self.e, self.label('poll')
        e(f's_mov_b32 s{sCNT}, 0')
        e(f'{lab}:')
        e(load)
        e(f's_add_u32 s{sCNT}, s{sCNT}, 1')
        e(f's_cmp_gt_u32 s{sCNT}, 0x80000')
        e('s_cbranch_scc1 Lend')
        e('s_waitcnt vmcnt(0)')
        e(check)
        e(f's_cbranch_vccnz {lab}')

    def late_check(self, load, check):
        out, back = self.label('retry'), self.label('back')

        def tail():
            self.e(f'{out}:')
            self.e('s_nop 7')
            self.e('s_nop 3')
            self.spin(load, check)
            self.e(f's_branch {back}')
        self.tails.append(self.capture(tail))
        return check + f'\ns_cbranch_vccnz {out}\n{back}:'

    def poll(self, sflag, vpoll, seq):
        self.e(f's_add_u32 s{sVAL}, s{sTAG}, {seq}')
        self.spin(f'buffer_load_dword {v(vT0)}, {v(vpoll)}, {WS}, s{sflag} offen sc1',
                  f'v_cmp_ne_u32 vcc, s{sVAL}, {v(vT0)}')

    def flag_store(self, sflag, seq, t, tag):
        return (f'v_mov_b32 {v(t)}, {seq}\nv_add_u32 {v(t)}, s{sTAG}, {v(t)}\n@wait {tag}\ns_mov_b64 exec, 1\n'
                f'buffer_store_dword {v(t)}, {v(vL16)}, {WS}, s{sflag} offen {self.st}\ns_mov_b64 exec, -1')

    def unpack(self, dst, src, n):
        for i in range(n):
            self.e(f'v_lshlrev_b32 {v(dst + 2 * i)}, 16, {v(src + i)}')
            self.e(f'v_and_b32 {v(dst + 2 * i + 1)}, 0xffff0000, {v(src + i)}')

    def hi_lo(self, dst, x, t):
        e = self.e
        e(f'v_cvt_pk_bf16_f32 {v(dst)}, {v(x)}, {v(x)}')
        e(f'v_lshlrev_b32 {v(t)}, 16, {v(dst)}')
        e(f'v_sub_f32 {v(t)}, {v(x)}, {v(t)}')
        e(f'v_cvt_pk_bf16_f32 {v(dst + 1)}, {v(t)}, {v(t)}')

    def pair_stats(self, a, b):
        e = self.e
        for q in range(1, 4):
            e(f'v_add_f32 {v(a)}, {v(a)}, {v(a + q)}')
            e(f'v_add_f32 {v(b)}, {v(b)}, {v(b + q)}')
        e(f'v_permlane16_swap_b32 {v(a)}, {v(b)}')
        e(f'v_add_f32 {v(a)}, {v(a)}, {v(b)}')
        e(f'v_mov_b32 {v(a + 1)}, {v(a)}')
        e(f'v_permlane32_swap_b32 {v(a)}, {v(a + 1)}')
        e(f'v_mul_f32 {v(a)}, {hex(INV640 | 0x80000000)}, {v(a)}')
        e(f'v_mul_f32 {v(a + 1)}, {hex(INV640)}, {v(a + 1)}')
        e(f'v_fma_f32 {v(a + 1)}, -{v(a)}, {v(a)}, {v(a + 1)}')
        e(f'v_max_f32 {v(a + 1)}, 0, {v(a + 1)}')
        e(f'v_add_f32 {v(a + 1)}, {hex(EPS_LN)}, {v(a + 1)}')
        e(f'v_rsq_f32 {v(a + 2)}, {v(a + 1)}')

    def colsum(self, t, addr):
        e = self.e
        e(f'v_lshrrev_b32 {v(addr)}, 2, {v(vL16)}')
        e(f'v_add_u32 {v(addr)}, {LDS_EX}, {v(addr)}')
        for h in range(2):
            for q in range(4 if h else 5):
                e(f'ds_read2st64_b32 {v(t + 2 * q + 2 * h, 2)}, {v(addr)} offset0:{10 * h + 2 * q} offset1:{10 * h + 2 * q + 1}')
            for q in range(2 if h else 1, 10):
                e(f'v_add_f32 {v(t)}, {v(t)}, {v(t + q)}')
        e(f'ds_read2st64_b32 {v(t + 2, 2)}, {v(addr)} offset0:18 offset1:19')
        e(f'v_add_f32 {v(t)}, {v(t)}, {v(t + 2)}')
        e(f'v_add_f32 {v(t)}, {v(t)}, {v(t + 3)}')
        e(f'v_cvt_pk_bf16_f32 {v(t + 1)}, {v(t)}, {v(t)}')
        e(f'v_lshlrev_b32 {v(t + 1)}, 16, {v(t + 1)}')
        e(f'v_sub_f32 {v(t + 2)}, {v(t)}, {v(t + 1)}')
        e(f'v_cvt_pk_bf16_f32 {v(t)}, {v(t + 1)}, {v(t + 2)}')

    def colsum_dma(self, base, s0, t, tag):
        return (f's_mul_i32 s{s0}, s{sC}, 5120\ns_mul_i32 s{s0 + 1}, s{sW}, 1280\ns_add_u32 s{s0}, s{s0}, s{s0 + 1}\n'
                f's_add_u32 s{s0}, s{s0}, {base}\ns_add_u32 m0, s{s0 + 1}, {LDS_EX}\n'
                f'v_lshrrev_b32 {v(t)}, 2, {v(vL16)}\n'
                f'buffer_load_dwordx4 {v(vL16)}, {WS}, s{s0} offen sc1 lds #{tag}\n'
                f'buffer_load_dword {v(t)}, {WS}, s{s0} offen offset:1024 sc1 lds #{tag}')

    def rowmajor(self, d0, d1, va, vb, t):
        e = self.e
        e(f's_lshl_b32 s{d1}, s{sSG}, 2')
        e(f's_add_u32 s{d1}, s{d1}, s{sW}')
        e(f's_mul_i32 s{d1}, s{d1}, {16 * 1280}')
        e(f's_lshl_b32 s{d0}, s{sKSA}, 6')
        e(f's_add_u32 s{d0}, s{d0}, s{d1}')
        e(f's_lshl_b32 s62, s{sKSS}, 6')
        e(f's_add_u32 s{d1}, s{d1}, s62')
        e(f's_lshl_b32 s62, s{sPAR}, 5')
        e(f's_add_u32 s{d1}, s{d1}, s62')
        e(f'v_bfe_u32 {v(va)}, {v(vL16)}, 4, 4')
        e(f'v_mul_u32_u24 {v(va)}, 1280, {v(va)}')
        e(f'v_lshrrev_b32 {v(t)}, 8, {v(vL16)}')
        e(f'v_lshl_add_u32 {v(vb)}, {v(t)}, 3, {v(va)}')
        e(f'v_lshl_add_u32 {v(va)}, {v(t)}, 4, {v(va)}')

    def xf_offsets(self, d, L):
        e = self.e
        e(f's_lshl_b32 s{d}, s{sSG}, 1')
        e(f's_lshr_b32 s{d + 1}, s{sW}, 1')
        e(f's_add_u32 s{d}, s{d}, s{d + 1}')
        e(f's_mul_i32 s{d}, s{d}, 40960')
        e(f's_and_b32 s{d + 1}, s{sW}, 1')
        e(f's_lshl_b32 s{d + 1}, s{d + 1}, 8')
        e(f's_add_u32 s{d}, s{d}, s{d + 1}')
        e(f's_add_u32 s{d}, s{d}, {self.act(L, XF_O)}')
        e(f's_lshl_b32 s{d + 1}, s{sKSS}, 1')
        e(f's_add_u32 s{d + 1}, s{d + 1}, s{sPAR}')
        e(f's_lshl_b32 s{d + 1}, s{d + 1}, 10')
        e(f's_add_u32 s{d + 1}, s{d + 1}, s{d}')
        e(f's_lshl_b32 s62, s{sKSA}, 11')
        e(f's_add_u32 s{d}, s{d}, s62')

    def prologue(self):
        e, cfg = self.e, self.cfg
        name = NAME + '_kernel'
        e(f'.globl {name}\n.p2align 8\n.type {name},@function\n{name}:')
        e('s_cmp_ge_u32 s2, 256')
        e('s_cbranch_scc1 Lend')
        e('s_getpc_b64 s[44:45]')
        e('Lpc:')
        e('s_load_dwordx16 s[64:79], s[0:1], 0')
        e('s_load_dwordx8 s[80:87], s[0:1], 64')
        if cfg.stamps:
            e('s_memrealtime s[100:101]')
            e(('s_memrealtime' if cfg.rt else 's_memtime') + ' s[98:99]')
        e(f's_lshr_b32 s{sC}, s2, 3')
        e('v_lshrrev_b32 v44, 6, v0')
        e('v_and_b32 v45, 3, v0')
        e('v_lshl_add_u32 v45, v44, 2, v45')
        e(f's_lshl_b32 s46, s{sC}, 4')
        e('v_add_u32 v45, s46, v45')
        e('v_lshlrev_b32 v45, 7, v45')
        e('v_min_u32 v45, Lfast_end-Lpc, v45')
        e('s_mov_b64 exec, 15')
        e('global_load_dword v46, v45, s[44:45]')
        e('s_mov_b64 exec, -1')
        e(f'v_readfirstlane_b32 s{sW}, v44')
        LANE, M16_, G4, M32_, G2 = 47, 48, 49, 50, 51
        e(f'v_and_b32 {v(LANE)}, 63, v0')
        e(f'v_and_b32 {v(M16_)}, 15, v0')
        e(f'v_bfe_u32 {v(G4)}, v0, 4, 2')
        e(f'v_and_b32 {v(M32_)}, 31, v0')
        e(f'v_bfe_u32 {v(G2)}, v0, 5, 1')
        e(f'v_lshlrev_b32 {v(vL16)}, 4, {v(LANE)}')
        e(f's_and_b32 s{sSET}, s2, 7')
        e(f's_lshr_b32 s{sGI}, s2, 6')
        e(f's_and_b32 s{sJ}, s{sC}, 7')
        e(f's_lshl_b32 s{sSG}, s{sSET}, 2')
        e(f's_add_u32 s{sSW}, s{sSG}, s{sW}')
        e(f's_add_u32 s{sSG}, s{sSG}, s{sGI}')
        e(f's_lshr_b32 s{sKSS}, s{sJ}, 1')
        e(f's_mul_i32 s{sKSS}, s{sKSS}, 5')
        e(f's_and_b32 s{sPAR}, s{sJ}, 1')
        e(f's_mul_i32 s{sKSA}, s{sPAR}, 3')
        e(f's_add_u32 s{sKSA}, s{sKSA}, s{sKSS}')
        e(f's_add_u32 s{sKSS}, s{sKSS}, 2')
        e(f'v_and_b32 v52, 19, {v(M32_)}')
        e(f'v_bfe_u32 v53, {v(M32_)}, 2, 1')
        e('v_lshl_add_u32 v52, v53, 3, v52')
        e(f'v_bfe_u32 v54, {v(M32_)}, 3, 1')
        e('v_lshl_add_u32 v52, v54, 2, v52')
        e('s_cmp_lt_u32 s2, 160')
        e(f's_cselect_b32 s88, 0, {OOB}')
        e('v_mul_u32_u24 v54, 3840, v52')
        e('v_add_u32 v54, s88, v54')
        e(f's_mul_i32 s89, s{sC}, {32 * 3840}')
        e(f's_mul_i32 s90, s{sSW}, 40')
        e('s_add_u32 s89, s89, s90')
        e(f'v_lshl_add_u32 v55, {v(G2)}, 4, v54')
        e(f'v_mul_u32_u24 v56, 1280, {v(G2)}')
        e('v_add_u32 v57, v54, v56')
        e('v_add_u32 v56, v57, v56')
        e('v_mul_u32_u24 v58, 40, v52')
        e('v_cmp_gt_u32 vcc, 20, v52')
        e(f'v_mov_b32 v59, {OOB}')
        e('v_cndmask_b32 v58, v59, v58, vcc')
        e(f'v_lshl_add_u32 v59, {v(G2)}, 30, v58')
        e(f'v_lshl_add_u32 v58, {v(G2)}, 4, v58')
        e(f's_mul_i32 s90, s{sSW}, 800')
        self.rowmajor(91, 92, 60, 61, 62)
        e(f's_lshl_b32 s93, s{sSET}, 5')
        e(f's_add_u32 s93, s93, s{sC}')
        e('s_lshl_b32 s93, s93, 2')
        e(f's_add_u32 s93, s93, s{sW}')
        e('s_mul_i32 s94, s93, 2560')
        e(f'v_mul_u32_u24 v62, 1280, {v(G2)}')
        e(f'v_lshl_add_u32 v63, {v(M32_)}, 3, v62')
        e(f'v_lshl_add_u32 v62, {v(M32_)}, 4, v62')
        e('s_waitcnt lgkmcnt(0)')
        self.srd(S_WQKV, P_WQKV, 640 * 3840)
        AQ, AK, AV, AT0, AT1, AP, APT, XT, XR = 64, 68, 72, 76, 78, 80, 84, 88, 100
        wq = s_(S_WQKV, 4)
        e(f'buffer_load_dwordx4 {v(AK, 4)}, v55, {wq}, s89 offen offset:1280')
        e(f'buffer_load_dwordx4 {v(AQ, 4)}, v55, {wq}, s89 offen')
        e(f'buffer_load_dwordx4 {v(AV, 4)}, v55, {wq}, s89 offen offset:2560')
        self.srd(S_WPHI, P_WPHI, 32 * 800)
        e(f'buffer_load_dwordx4 {v(AP, 4)}, v58, {s_(S_WPHI, 4)}, s90 offen')
        e(f'buffer_load_dwordx2 {v(APT, 2)}, v59, {s_(S_WPHI, 4)}, s90 offen offset:32')
        self.srd(S_X, P_X, 2048 * 1280)
        xs = s_(S_X, 4)
        e(f'buffer_load_dwordx4 {v(XT, 4)}, v60, {xs}, s91 offen')
        e(f'buffer_load_dwordx4 {v(XT + 4, 4)}, v60, {xs}, s91 offen offset:64')
        e(f'buffer_load_dwordx2 {v(XT + 8, 2)}, v61, {xs}, s92 offen')
        e(f'buffer_load_dwordx4 {v(XR, 4)}, v62, {xs}, s94 offen')
        e(f'buffer_load_dwordx4 {v(XR + 4, 4)}, v62, {xs}, s94 offen offset:512')
        e(f'buffer_load_dwordx2 {v(XR + 8, 2)}, v63, {xs}, s94 offen offset:1024')
        e(f'buffer_load_dwordx2 {v(AT0, 2)}, v57, {wq}, s89 offen offset:{1280 + 32}')
        e(f'buffer_load_dwordx2 {v(AT1, 2)}, v56, {wq}, s89 offen offset:32')
        e(f's_add_u32 s46, s{P_WS}, {EPOCH}')
        e(f's_addc_u32 s47, s{P_WS + 1}, 0')
        e(f's_load_dword s{sTAG}, s[46:47], 0')
        self.srd(S_WS, P_WS, WS_USED)
        self.srd(S_OUT, P_OUT, 2048 * 1280)
        self.srd(S_B2, P_B2, 1280)
        self.srd(S_WO, P_WO, 640 * 1280)
        self.srd(S_W1, P_W1, 640 * 3072)
        self.srd(S_W2, P_W2, 1536 * 1280)
        self.srd(S_B1, P_B1, 3072)
        e(f's_mov_b32 s{sLO}, 0x3f80')
        e(f's_mov_b32 s{sHI}, 0x3f800000')
        if cfg.stamps:
            e(f's_mov_b32 s{sSTAMP}, s98')
            self.stamp_names.append('start')
            self.nstamp = 1
        self.stamp('issued')

        SEL, SELT, BV0, BV1, BT0, BT1, BP, ONES = 112, 116, 120, 124, 128, 130, 132, 136
        e(f'v_lshrrev_b32 v54, 3, {v(M32_)}')
        e(f'v_and_b32 v55, 3, {v(M32_)}')
        e('v_lshl_add_u32 v54, v54, 2, v55')
        e('v_mul_u32_u24 v53, 10, v53')
        e('v_add_u32 v53, v53, v54')
        e('v_and_b32 v55, 1, v53')
        e('v_lshlrev_b32 v55, 4, v55')
        e(f'v_lshlrev_b32 v55, v55, s{sLO}')
        e(f'v_lshlrev_b32 v56, 2, {v(G2)}')
        for (b4, b2, off, lo, hi, tg) in ((SEL, SELT, 0, 0, 10, 0), (BV0, BT0, 10, 10, 16, 1), (BV1, BT1, 4, 10, 14, 1)):
            e(f'v_subrev_u32 v57, {off}, v53')
            e('v_lshrrev_b32 v57, 1, v57')
            e(f'v_subrev_u32 v58, {lo}, v54')
            e(f'v_cmp_gt_u32 vcc, {hi - lo}, v58')
            e('v_cndmask_b32 v57, 32, v57, vcc')
            e('v_sub_u32 v58, v57, v56')
            for q in range(4):
                e(f'v_cmp_eq_u32 vcc, {q}, v58')
                e(f'v_cndmask_b32 {v(b4 + q)}, 0, v55, vcc')
            e(f'v_cmp_eq_u32 vcc, {tg}, {v(G2)}')
            e('v_cndmask_b32 v57, 32, v57, vcc')
            for q in range(2):
                e(f'v_cmp_eq_u32 vcc, {8 + q}, v57')
                e(f'v_cndmask_b32 {v(b2 + q)}, 0, v55, vcc')
        for i in range(4):
            e(f'v_mov_b32 {v(ONES + i)}, 0x3f803f80')
        e(f'v_add_u32 {v(vB2)}, 0x10000, {v(vL16)}')
        e(f'v_add_u32 {v(vB3)}, 0x20000, {v(vL16)}')
        e(f'v_lshlrev_b32 {v(vXF)}, 9, {v(G4)}')
        e(f'v_lshl_add_u32 {v(vXF)}, {v(M16_)}, 4, {v(vXF)}')
        e(f'v_and_b32 v52, 1, {v(G4)}')
        e(f'v_lshlrev_b32 v57, 4, {v(M16_)}')
        e('v_lshl_add_u32 v58, v52, 30, v57')
        e(f'v_lshl_add_u32 {v(vXS1)}, {v(G2)}, 8, v58')
        e(f'v_lshl_add_u32 {v(vXS2)}, {v(G2)}, 9, v58')
        e(f'v_lshlrev_b32 {v(vSTL)}, 6, {v(M16_)}')
        e(f'v_lshl_add_u32 {v(vST)}, {v(G2)}, 5, {v(vSTL)}')
        e(f'v_lshl_add_u32 {v(vST)}, v52, 30, {v(vST)}')
        e(f'v_lshl_add_u32 {v(vSTL)}, {v(G4)}, 4, {v(vSTL)}')
        e(f'v_mul_u32_u24 {v(vOM)}, 20480, v52')
        e(f'v_add_u32 {v(vOM)}, {v(vOM)}, v57')
        e(f'v_lshl_add_u32 {v(vOM)}, {v(G2)}, 8, {v(vOM)}')
        e(f'v_mul_u32_u24 {v(vOR)}, 20480, {v(G4)}')
        e(f'v_add_u32 {v(vOR)}, {v(vOR)}, v57')
        e(f'v_subrev_u32 v57, 8, {v(M32_)}')
        e(f'v_cmp_lt_u32 vcc, 27, {v(M32_)}')
        e('v_subb_co_u32 v57, vcc, v57, 0, vcc')
        e(f'v_cmp_eq_u32 vcc, 30, {v(M32_)}')
        e('v_cndmask_b32 v58, v57, 18, vcc')
        e('v_cmp_gt_u32 vcc, 21, v58')
        e('v_cndmask_b32 v58, 0, v58, vcc')
        e(f'v_mul_u32_u24 v59, 22, {v(G2)}')
        e(f'v_add_lshl_u32 {v(vKVL)}, v58, v59, 4')
        e(f'v_add_lshl_u32 {v(vKVS)}, v57, v59, 4')
        e('v_cmp_gt_u32 vcc, 22, v57')
        e(f'v_cmp_ne_u32 s[46:47], 27, {v(M32_)}')
        e('s_and_b64 vcc, vcc, s[46:47]')
        e(f'v_mov_b32 v59, {OOB}')
        e(f'v_cndmask_b32 {v(vKVS)}, v59, {v(vKVS)}, vcc')
        e(f'v_and_b32 v57, 1, {v(M32_)}')
        e('v_lshlrev_b32 v57, 4, v57')
        e(f'v_lshlrev_b32 v57, v57, s{sLO}')
        e(f'v_bfe_u32 v58, {v(M32_)}, 2, 1')
        e(f'v_cmp_eq_u32 vcc, v58, {v(G2)}')
        e('v_cndmask_b32 v58, 0, v57, vcc')
        e(f'v_bfe_u32 v59, {v(M32_)}, 1, 1')
        e(f'v_lshrrev_b32 v60, 3, {v(M32_)}')
        e('v_lshl_add_u32 v59, v60, 1, v59')
        for q in range(8):
            e(f'v_cmp_eq_u32 vcc, {q}, v59')
            e(f'v_cndmask_b32 {v(PA + q)}, 0, v58, vcc')
        ID = 140
        e(f'v_lshrrev_b32 v58, 1, {v(M16_)}')
        e(f'v_lshlrev_b32 v59, 1, {v(G4)}')
        e('v_sub_u32 v58, v58, v59')
        for q in range(2):
            e(f'v_cmp_eq_u32 vcc, {q}, v58')
            e(f'v_cndmask_b32 {v(ID + q)}, 0, v57, vcc')
        e(f's_mul_i32 s89, s{sSW}, 81920')
        e(f's_lshl_b32 s90, s{sC}, 12')
        e('s_add_u32 s89, s89, s90')
        e(f's_mul_i32 s90, s{sSW}, 5120')
        e(f's_lshl_b32 s91, s{sC}, 8')
        e('s_add_u32 s90, s90, s91')
        e(f's_add_u32 s90, s90, {CSQ}')
        e(f'v_add_u32 v52, s88, {v(vL16)}')
        e(f'v_lshl_add_u32 v53, {v(LANE)}, 2, s88')
        self.xf_offsets(91, 0)
        e('s_lshl_b32 s93, s93, 7')
        e(f's_add_u32 s93, s93, {self.act(0, ST_O)}')
        e(f'v_lshlrev_b32 v54, 2, {v(M16_)}')
        e(f'v_lshl_add_u32 v54, {v(G2)}, 6, v54')
        e(f'v_and_b32 v55, 1, {v(G4)}')
        e('v_lshl_add_u32 v54, v55, 30, v54')

        D0, D1, FR = 144, 160, 176
        e(f'{M32} {v(D0, 16)}, {v(AP, 4)}, {v(SEL, 4)}, 0')
        e(f'{M32} {v(D1, 16)}, {v(AV, 4)}, {v(BV1, 4)}, 0')
        e(f'{M32H} {v(D0, 16)}, {v(APT, 2)}, {v(SELT, 2)}, {v(D0, 16)}')
        e(f'v_mov_b32 {v(XT + 10)}, {v(XT + 8)}')
        e(f'v_mov_b32 {v(XT + 11)}, {v(XT + 9)}')
        e(f'buffer_store_dwordx4 {v(XT, 4)}, {v(vXF)}, {WS}, s91 offen sc1 #c')
        e(f'buffer_store_dwordx4 {v(XT + 4, 4)}, {v(vXF)}, {WS}, s91 offen offset:2048 sc1 #c')
        self.unpack(R, XT, 10)
        e(f'v_permlane16_swap_b32 {v(XT + 8)}, {v(XT + 10)}')
        e(f'v_permlane16_swap_b32 {v(XT + 9)}, {v(XT + 11)}')
        e(f'buffer_store_dwordx4 {v(XT + 8, 4)}, {v(vXS2)}, {WS}, s92 offen sc1 #c')
        for q in range(4):
            e(f'v_cvt_pk_bf16_f32 {v(BP + q)}, {v(D0 + 2 * q)}, {v(D0 + 2 * q + 1)}')
        for q in range(2):
            e(f'v_cvt_pk_bf16_f32 v55, {v(D0 + 8 + 2 * q)}, {v(D0 + 9 + 2 * q)}')
            e(f'v_or_b32 {v(BT0 + q)}, {v(BT0 + q)}, v55')
            e(f'v_or_b32 {v(BT1 + q)}, {v(BT1 + q)}, v55')
        e(f'{M32} {v(D0, 16)}, {v(AV, 4)}, {v(BV0, 4)}, 0')
        e(f'{M32} {v(D1, 16)}, {v(AQ, 4)}, {v(BP, 4)}, {v(D1, 16)}')
        e(f'{M32} {v(D0, 16)}, {v(AK, 4)}, {v(BP, 4)}, {v(D0, 16)}')
        e('v_mov_b32 v56, 0')
        e('v_mov_b32 v57, 0')
        for q in range(10):
            e(f'v_dot2c_f32_bf16 v56, {v(ONES)}, {v(XR + q)}')
            e(f'v_dot2c_f32_bf16 v57, {v(XR + q)}, {v(XR + q)}')
        e(f'{M32H} {v(D1, 16)}, {v(AT1, 2)}, {v(BT1, 2)}, {v(D1, 16)}')
        e(f'{M32H} {v(D0, 16)}, {v(AT0, 2)}, {v(BT0, 2)}, {v(D0, 16)}')
        for sh in (8, 4, 2, 1):
            e(f'v_add_f32_dpp v56, v56, v56 row_ror:{sh} row_mask:0xf bank_mask:0xf')
            e(f'v_add_f32_dpp v57, v57, v57 row_ror:{sh} row_mask:0xf bank_mask:0xf')
        e('v_mov_b32 v58, v56')
        e('v_mov_b32 v59, v57')
        e('v_permlane16_swap_b32 v56, v58')
        e('v_permlane16_swap_b32 v57, v59')
        e('v_add_f32 v56, v56, v58')
        e('v_add_f32 v57, v57, v59')
        e(f'v_cmp_eq_u32 vcc, 0, {v(M16_)}')
        e('v_cndmask_b32 v56, 0, v56, vcc')
        e(f'v_cmp_eq_u32 vcc, 8, {v(M16_)}')
        e('v_cndmask_b32 v56, v56, v57, vcc')
        e(f'buffer_store_dword v56, v54, {WS}, s93 offen sc1 #c')
        for T, D in ((1, D1), (0, D0)):
            for half in range(2):
                f = FR + 8 * T + 4 * half
                for q in range(4):
                    e(f'v_cvt_pk_bf16_f32 {v(f + q)}, {v(D + 8 * half + 2 * q)}, {v(D + 8 * half + 2 * q + 1)}')
                e(f'buffer_store_dwordx4 {v(f, 4)}, v52, {WS}, s89 offen offset:{2048 * half + 1024 * T} sc1 #c')
            e(f'{M32} {v(D, 16)}, {v(ONES, 4)}, {v(FR + 8 * T, 4)}, 0')
            e(f'{M32} {v(D, 16)}, {v(ONES, 4)}, {v(FR + 8 * T + 4, 4)}, {v(D, 16)}')

        e(f'v_lshrrev_b32 v60, 2, {v(M16_)}')
        e(f'v_and_b32 v61, 3, {v(M16_)}')
        e('v_lshl_add_u32 v62, v60, 3, v61')
        e(f'v_cmp_eq_u32 vcc, 1, {v(G2)}')
        e(f'v_cndmask_b32 v55, {v(D0)}, {v(D1)}, vcc')
        e(f'buffer_store_dword v55, v53, {WS}, s90 offen sc1 #c')
        L1, L2, LO = 64, 76, 84
        e(f's_sub_u32 s95, s{sC}, 12')
        e(f's_cselect_b32 s88, {OOB}, 0')
        e('s_cselect_b32 s95, 0, s95')
        e('v_mul_u32_u24 v52, 3072, v62')
        e('v_add_u32 v52, s88, v52')
        e(f'v_lshl_add_u32 v53, {v(G4)}, 3, v52')
        e(f'v_lshl_add_u32 v52, {v(G4)}, 4, v52')
        e(f's_mul_i32 s89, s95, {32 * 3072}')
        e(f's_mul_i32 s90, s{sSW}, 96')
        e('s_add_u32 s89, s89, s90')
        e(f's_add_u32 s90, s89, {4 * 3072}')
        w1 = s_(S_W1, 4)
        e(f'buffer_load_dwordx4 {v(L1, 4)}, v52, {w1}, s89 offen')
        e(f'buffer_load_dwordx4 {v(L1 + 4, 4)}, v52, {w1}, s90 offen')
        e(f'buffer_load_dwordx2 {v(L1 + 8, 2)}, v53, {w1}, s89 offen offset:64')
        e(f'buffer_load_dwordx2 {v(L1 + 10, 2)}, v53, {w1}, s90 offen offset:64')
        e(f'v_add_u32 v100, s88, {v(vL16)}')
        e(f'v_lshl_add_u32 v101, {v(LANE)}, 2, s88')
        e(f's_mul_i32 s16, s{sSW}, 61440')
        e('s_mul_i32 s17, s95, 3072')
        e('s_add_u32 s16, s16, s17')
        e(f's_add_u32 s16, s16, {W1F}')
        e(f's_mul_i32 s17, s{sSW}, 5120')
        e('s_lshl_b32 s95, s95, 8')
        e('s_add_u32 s17, s17, s95')
        e(f's_add_u32 s17, s17, {CS1}')

        def colblock(src, base, jstride, dst, vst, so):
            self.sdiv(89, 90, 92, 5)
            e('s_mul_i32 s93, s93, 1280')
            e('s_mul_i32 s94, s94, 1280')
            e('s_lshl_b32 s92, s92, 6')
            e('s_add_u32 s93, s93, s92')
            e('s_add_u32 s94, s94, s92')
            e('s_cmp_eq_u32 s90, 2')
            e('s_cselect_b32 s92, 3, 4')
            e('s_cselect_b32 s95, 32, 8')
            e(f's_mov_b32 s{so + 1}, {jstride}')
            e(f's_cselect_b32 s{so + 1}, s{so + 1}, 1024')
            e('v_mul_u32_u24 v52, 1280, v52')
            e('v_add_u32 v52, s88, v52')
            e(f'v_lshl_add_u32 v52, {v(G4)}, s92, v52')
            e('v_add_u32 v53, s95, v52')
            e(f'buffer_load_dwordx2 {v(dst, 2)}, v52, {src}, s93 offen')
            e(f'buffer_load_dwordx2 {v(dst + 2, 2)}, v53, {src}, s93 offen')
            e(f'buffer_load_dwordx2 {v(dst + 4, 2)}, v52, {src}, s94 offen')
            e(f'buffer_load_dwordx2 {v(dst + 6, 2)}, v53, {src}, s94 offen')
            e(f'v_add_u32 {v(vst)}, s88, {v(vL16)}')
            e('s_lshl_b32 s89, s89, 1')
            e('s_sub_u32 s92, s90, 3')
            e('s_cmp_gt_u32 s90, 2')
            e('s_cselect_b32 s92, s92, s90')
            e('s_addc_u32 s89, s89, 0')
            e(f's_mul_i32 s89, s89, {jstride}')
            e('s_lshl_b32 s92, s92, 11')
            e('s_add_u32 s89, s89, s92')
            e('s_mul_i32 s92, s91, 5120')
            e('s_add_u32 s89, s89, s92')
            e(f's_add_u32 s{so}, s89, {base}')
            e(f's_add_u32 s{so + 1}, s{so + 1}, s{so}')

        e('s_sub_u32 s96, s2, 156')
        e(f's_cselect_b32 s88, {OOB}, 0')
        e('s_cselect_b32 s96, 0, s96')
        self.sdiv(91, 92, 96, 5)
        e('s_lshl_b32 s92, s92, 2')
        e(f's_add_u32 s92, s92, s{sW}')
        self.sdiv(89, 90, 91, 5)
        e('s_mul_i32 s93, s89, 160')
        e('s_mul_i32 s95, s90, 40')
        e('s_cmp_eq_u32 s90, 4')
        e('s_cselect_b32 s95, 8, s95')
        e('s_cselect_b32 s94, 20, 4')
        e('s_cselect_b64 vcc, -1, 0')
        e('s_add_u32 s93, s93, s95')
        e('s_add_u32 s94, s94, s93')
        e('v_mul_u32_u24 v52, 10, v60')
        e('v_add_u32 v52, v52, v61')
        e('v_mul_u32_u24 v53, 40, v60')
        e('v_lshrrev_b32 v54, 1, v61')
        e('v_mul_u32_u24 v54, 10, v54')
        e('v_and_b32 v55, 1, v61')
        e('v_add3_u32 v53, v53, v54, v55')
        e('v_cndmask_b32 v52, v52, v53, vcc')
        colblock(s_(S_WO, 4), WOF, 102400, LO, 102, 18)
        e('s_cmp_lt_u32 s2, 240')
        e(f's_cselect_b32 s88, 0, {OOB}')
        e('s_cselect_b32 s96, s2, 0')
        self.sdiv(91, 92, 96, 5)
        e('s_lshl_b32 s92, s92, 2')
        e(f's_add_u32 s92, s92, s{sW}')
        self.sdiv(89, 90, 91, 3)
        e('s_mul_i32 s93, s89, 96')
        e('s_mul_i32 s95, s90, 24')
        e('s_cmp_eq_u32 s90, 1')
        e('s_cselect_b32 s95, 32, s95')
        e('s_cselect_b32 s94, 32, 0')
        e('s_add_u32 s93, s93, s95')
        e(f'v_lshrrev_b32 v52, 3, {v(M16_)}')
        e('v_mul_u32_u24 v52, s94, v52')
        e('v_add_u32 v52, v52, v62')
        e('s_add_u32 s94, s93, 4')
        colblock(s_(S_W2, 4), W2F, 245760, L2, 103, 20)
        e('v_lshlrev_b32 v52, 1, v62')
        e(f'v_lshlrev_b32 v53, 1, {v(M16_)}')
        e(f's_mul_i32 s89, s{sC}, 96')
        e(f'buffer_load_ushort {a_(aB1)}, v52, {s_(S_B1, 4)}, s89 offen')
        e(f'buffer_load_ushort {a_(aB1 + 1)}, v52, {s_(S_B1, 4)}, s89 offen offset:8')
        e(f'buffer_load_ushort {a_(aB1 + 2)}, v53, {s_(S_B1, 4)}, s89 offen offset:64')

        e('s_getreg_b32 s97, hwreg(HW_REG_XCC_ID, 0, 4)')
        e('s_waitcnt lgkmcnt(0)')
        e(f's_add_u32 s{sVAL}, s{sTAG}, {SEQ_G1}')
        e(f'v_mov_b32 v56, s{sVAL}')
        e('v_mov_b32 v57, s97')
        e(f'v_mov_b32 v58, s{sVAL}')
        e('v_mov_b32 v59, s97')
        e('s_lshl_b32 s89, s2, 7')
        e(f's_add_u32 s89, s89, {G1}')
        e(f's_cmp_eq_u32 s{sW}, 0')
        e(f's_cselect_b32 s90, 0, {OOB}')
        e(f'v_add_u32 v54, s90, {v(vL16)}')
        e(f's_lshr_b32 s91, s{sC}, 2')
        e(f'v_mov_b32 v52, s{sSET}')
        e('v_mov_b32 v53, s91')
        e(f'v_cmp_eq_u32 vcc, 1, {v(G2)}')
        e('v_cndmask_b32 v52, v52, v53, vcc')
        e(f'v_min_u32 v53, 19, {v(M32_)}')
        e(f'v_cndmask_b32 v53, {v(M32_)}, v53, vcc')
        e('v_lshl_add_u32 v52, v53, 3, v52')
        e(f'v_lshlrev_b32 {v(vT2)}, 7, v52')
        e('@wait c')
        e('s_barrier')
        e('s_mov_b64 exec, 0xff')
        e(f'buffer_store_dwordx4 v[56:59], v54, {WS}, s89 offen sc1')
        e('s_mov_b64 exec, -1')
        self.stamp('g1set')

        def transpose(dst, s0, s1, t):
            e(f'{M16H} {v(t, 4)}, {v(s0, 2)}, {v(ID, 2)}, 0')
            e(f'{M16H} {v(t + 4, 4)}, {v(s1, 2)}, {v(ID, 2)}, 0')
            return [f'v_cvt_pk_bf16_f32 {v(dst + q)}, {v(t + 2 * q)}, {v(t + 2 * q + 1)}' for q in range(4)]
        jobs = [(L1, L1 + 4, 100, 's16', 0), (L1 + 2, L1 + 6, 100, 's16', 1024), (L1 + 8, L1 + 10, 100, 's16', 2048),
                (LO, LO + 4, 102, 's18', 0), (LO + 2, LO + 6, 102, 's19', 0),
                (L2, L2 + 4, 103, 's20', 0), (L2 + 2, L2 + 6, 103, 's21', 0)]
        cv = [transpose(200 + 4 * n, s0, s1, 144 + 8 * n) for n, (s0, s1, _, _, _) in enumerate(jobs)]
        for n, (_, _, va, so, off) in enumerate(jobs):
            for x in cv[n]:
                e(x)
            e(f'buffer_store_dwordx4 {v(200 + 4 * n, 4)}, {v(va)}, {WS}, {so} offen offset:{off} sc1 #n')
            if n < 3:
                e(f'{M16} {v(144 + 4 * n, 4)}, {v(ONES, 4)}, {v(200 + 4 * n, 4)}, 0')
        e(f'v_cmp_eq_u32 vcc, 1, {v(G4)}')
        e('v_cndmask_b32 v52, v144, v148, vcc')
        e(f'v_cmp_eq_u32 vcc, 2, {v(G4)}')
        e('v_cndmask_b32 v52, v52, v152, vcc')
        e(f'buffer_store_dword v52, v101, {WS}, s17 offen sc1 #n')
        self.stamp('pre_done')
        e(f's_mov_b32 s89, {G1}')
        self.spin(f'buffer_load_dwordx2 {v(vT0, 2)}, {v(vT2)}, {WS}, s89 offen sc1',
                  f'v_cmp_ne_u32 vcc, s{sVAL}, {v(vT0)}')
        e(f'v_cmp_ne_u32 vcc, s97, {v(vT1)}')
        e('s_cmp_lg_u32 vcc_lo, 0')
        if cfg.both:
            e('s_cbranch_scc1 Lslow')
        self.stamp('g1got')

    def softmax(self, a, sp, dst, pk):
        e = self.e
        t0, t1, t2, t3 = vT0, vT1, vT2, vT3
        e(f'v_max3_f32 {v(t0)}, {v(a)}, {v(a + 1)}, {v(a + 2)}')
        e(f'v_max3_f32 {v(t1)}, -{v(a)}, -{v(a + 1)}, -{v(a + 2)}')
        for i in (3, 5, 7):
            e(f'v_max3_f32 {v(t0)}, {v(t0)}, {v(a + i)}, {v(a + i + 1)}')
            e(f'v_max3_f32 {v(t1)}, {v(t1)}, -{v(a + i)}, -{v(a + i + 1)}')
        e(f'v_max_f32 {v(t0)}, {v(t0)}, {v(a + 9)}')
        e(f'v_max_f32 {v(t1)}, {v(t1)}, -{v(a + 9)}')
        e(f'v_permlane32_swap_b32 {v(t0)}, {v(t1)}')
        e(f'v_max_f32 {v(t0)}, {v(t0)}, {v(t1)}')
        e(f'v_mul_f32 {v(t1)}, {v(t0)}, {v(sp + 1)}')
        e(f'v_mul_f32 {v(t0)}, {v(t0)}, {v(sp + 1)}')
        e(f'v_permlane32_swap_b32 {v(t0)}, {v(t1)}')
        for i in range(10):
            if pk:
                sel = (a + i) & 1
                e(f'v_pk_fma_f32 {v(E + 2 * i, 2)}, {v((a + i) & ~1, 2)}, {v(sp, 2)}, {v(t0, 2)} '
                  f'op_sel:[{sel},0,0] op_sel_hi:[{sel},1,1]')
            else:
                for h in range(2):
                    e(f'v_fma_f32 {v(E + 2 * i + h)}, {v(a + i)}, {v(sp + h)}, {v(t0 + h)}')
        for i in range(20):
            e(f'v_exp_f32 {v(E + i)}, {v(E + i)}')
        if pk:
            e(f'v_pk_add_f32 {v(t2, 2)}, {v(E, 2)}, {v(E + 2, 2)}')
            for i in range(2, 10):
                e(f'v_pk_add_f32 {v(t2, 2)}, {v(t2, 2)}, {v(E + 2 * i, 2)}')
        else:
            for i in range(1, 10):
                for h in range(2):
                    e(f'v_add_f32 {v(t2 + h)}, {v(t2 + h if i > 1 else E + h)}, {v(E + 2 * i + h)}')
        e(f'v_permlane32_swap_b32 {v(t2)}, {v(t3)}')
        e(f'v_add_f32 {v(t2)}, {v(t2)}, {v(t3)}')
        e(f'v_rcp_f32 {v(t2)}, {v(t2)}')
        e(f'v_mov_b32 {v(t3)}, {v(t2)}')
        e(f'v_permlane32_swap_b32 {v(t2)}, {v(t3)}')
        for i in range(10):
            if pk:
                e(f'v_pk_mul_f32 {v(E + 2 * i, 2)}, {v(E + 2 * i, 2)}, {v(t2, 2)}')
            else:
                for h in range(2):
                    e(f'v_mul_f32 {v(E + 2 * i + h)}, {v(E + 2 * i + h)}, {v(t2 + h)}')
            e(f'v_cvt_pk_bf16_f32 {v(dst + i)}, {v(E + 2 * i)}, {v(E + 2 * i + 1)}')

    def kpart(self, mt, pk):
        e = self.e
        a0, a1, st, KV2 = (A00, A01)[mt], (A10, A11)[mt], STT + 4 * mt, A00
        e(f'{M32H} {v(a0, 16)}, {a_(aCQ, 2)}, {v(CB + 2 * mt, 2)}, {v(a0, 16)}')
        e(f'{M32H} {v(a1, 16)}, {a_(aCQ + 2, 2)}, {v(CB + 2 * mt, 2)}, {v(a1, 16)}')
        e(f'v_mov_b32 {v(D16 + 15)}, s{sLO}')
        self.softmax(a0, st, D16, pk)
        X, Y = E, a0
        e(f'{M32} {v(X, 16)}, {v(D16, 4)}, {v(PA, 4)}, 0')
        e(f'{M32} {v(X, 16)}, {v(D16 + 4, 4)}, {v(PB, 4)}, {v(X, 16)}')
        for i, src in enumerate((a0 + 10, a0 + 12, a0 + 14, a1 + 10, a1 + 12)):
            for h in range(2):
                e(f'v_mul_f32 {v(src + h)}, {v(src + h)}, {v(st + 2)}')
            e(f'v_cvt_pk_bf16_f32 {v(D16 + 10 + i)}, {v(src)}, {v(src + 1)}')
        e(f'{M32} {v(Y, 16)}, {v(D16 + 8, 4)}, {v(PA, 4)}, 0')
        e(f'{M32} {v(Y, 16)}, {v(D16 + 12, 4)}, {v(PB, 4)}, {v(Y, 16)}')
        for q in range(8):
            e(f'v_cvt_pk_bf16_f32 {v(D16 + q)}, {v(X + 2 * q)}, {v(X + 2 * q + 1)}')
        for q in range(8):
            e(f'v_cvt_pk_bf16_f32 {v(D16 + 8 + q)}, {v(Y + 2 * q)}, {v(Y + 2 * q + 1)}')
        for h in range(2):
            c = v(KV1, 16) if mt or h else '0'
            e(f'{M32} {v(KV1, 16)}, {v(D16 + 4 * h, 4)}, {v(D16 + 8 + 4 * h, 4)}, {c}')
        for h in range(2):
            c = v(KV2, 16) if mt or h else '0'
            e(f'{M32} {v(KV2, 16)}, {v(D16 + 8 + 4 * h, 4)}, {v(D16 + 8 + 4 * h, 4)}, {c}')

    def w2_loads(self, n):
        out = []
        for i in range(self.w2n, min(60, self.w2n + n)):
            t = f'buffer_load_dwordx4 {a_(4 * i, 4)}, {v(vL16)}, {WS}, s47 offen offset:{(i % 4) * 1024} sc1'
            if i % 4 == 3:
                t += '\ns_add_u32 s47, s47, 4096'
            out.append(t)
        self.w2n += len(out)
        return out

    def p1(self, L):
        e, cfg = self.e, self.cfg
        acc = ((A00, A01), (A10, A11))
        areg = lambda n: 176 + (n % 12) * 4
        wreg = lambda n: 224 + (n % 8) * 4
        e(f's_mul_i32 s16, s{sSW}, 81920')
        e(f's_add_u32 s16, s16, {self.act(L, XF_O)}')
        e(f's_lshl_b32 s17, s{sSW}, 12')
        e(f's_add_u32 s17, s17, {self.act(L, ST_O)}')

        def late_addresses():
            e = self.e
            e(f's_mul_i32 s18, s{sJ}, 102400')
            e(f's_mul_i32 s19, s{sW}, 25600')
            e('s_add_u32 s18, s18, s19')
            e(f's_add_u32 s18, s18, {WOF}')
            e(f's_mul_i32 s20, s{sSW}, {self.ostride()}')
            e(f's_add_u32 s20, s20, {self.act(L, OF_O)}')
            e(f's_mul_i32 s21, s{sGI}, 5120')
            e('s_add_u32 s20, s20, s21')
            e(f's_lshr_b32 s22, s{sJ}, 1')
            e('s_lshl_b32 s22, s22, 5')
            e(f's_add_u32 s22, s22, s{sPAR}')
            e('s_lshl_b32 s22, s22, 3')
            e('s_add_u32 s22, s22, s20')
            e('s_add_u32 s22, s22, 4096')
            e(f's_lshl_b32 s21, s{sJ}, 9')
            e('s_add_u32 s20, s20, s21')
            e('s_add_u32 s21, s20, 40960')
            self.flag_line(23, 1, sSW)
            e(f's_lshl_b32 s24, s{sC}, 2')
            e('s_add_u32 s23, s23, s24')
            e(f's_add_u32 s24, s24, s{sW}')
            e(f's_mul_i32 s24, s24, {8 * KVS}')
            e(f's_add_u32 s24, s24, {KVP + L * 0x100000}')
            for x in range(1, 8):
                e(f's_xor_b32 s{24 + x}, s{sSET}, {x}')
                e(f's_mul_i32 s{24 + x}, s{24 + x}, {KVS}')
                e(f's_add_u32 s{24 + x}, s{24 + x}, s24')
            e(f's_mul_i32 s32, s{sSET}, {KVS}')
            e('s_add_u32 s24, s24, s32')

        def load_a(n):
            t = f'buffer_load_dwordx4 {v(areg(n), 4)}, {v(vL16)}, {WS}, s16 offen offset:{(n % 4) * 1024} sc1'
            return t + ('\ns_add_u32 s16, s16, 4096' if n % 4 == 3 else '')

        def load_w(n):
            b, off = lds((n % 80) * 1024)
            return f'ds_read_b128 {v(wreg(n), 4)}, {v(b)} offset:{off}'

        stat_ld = [f'buffer_load_dwordx4 {v(KV1 + 4 * q, 4)}, {v(vSTL)}, {WS}, s17 offen offset:{1024 * q} sc1' for q in range(4)]

        def stats():
            for mt in range(2):
                b, st = KV1 + 8 * mt, STT + 4 * mt
                self.pair_stats(b, b + 4)
                self.hi_lo(CB + 2 * mt, b, b + 3)
                self.e(f'v_mov_b32 {v(st + 2)}, {v(b + 2)}')
                self.e(f'v_mul_f32 {v(st)}, {hex(LOG2E)}, {v(b + 2)}')
                self.e(f'v_mul_f32 {v(st + 1)}, {hex(LOG2E | 0x80000000)}, {v(b + 2)}')

        mf, after = [], {}
        for n in range(80):
            for T in range(2):
                c = v(acc[T][n // 40], 16) if n % 40 else '0'
                pre = f'@need {v(wreg(2 * n), 4)} {v(wreg(2 * n + 1), 4)} {v(areg(n), 4)}\n' if T == 0 else ''
                mf.append(f'{pre}{M32} {v(acc[T][n // 40], 16)}, {v(wreg(2 * n + T), 4)}, {v(areg(n), 4)}, {c}')
        DW = 5
        if L == 0:
            e(f's_mul_i32 s33, s{sC}, 81920')
            e(f's_lshl_b32 s34, s{sW}, 12')
            e('s_add_u32 s33, s33, s34')

            def chunk(ch):
                t = [f'buffer_load_dwordx4 {v(vL16)}, {WS}, s33 offen offset:{q * 1024} sc1 lds #wq{ch}' for q in range(4)]
                t[0] = 's_mov_b32 m0, s34\n' + t[0]
                t[3] += '\ns_add_u32 s33, s33, 16384\ns_add_u32 s34, s34, 16384'
                return t
            seq = []
            for ch in range(5):
                seq += [(x, 16 * ch - DW) for x in chunk(ch)]
                if ch == 1:
                    seq += [(self.colsum_dma(CSQ, 35, SP, 'csq'), 16)]
                if ch == 2:
                    seq += [(x, 32) for x in stat_ld]
                seq += [(load_a(n), 2 * n) for n in range(8 * ch, 8 * ch + 8)]
            e(f's_mul_i32 s37, s{sC}, 61440')
            e(f's_mul_i32 s38, s{sW}, 15360')
            e('s_add_u32 s37, s37, s38')
            e(f's_add_u32 s37, s37, {W1F}')
            e(f's_add_u32 s38, s38, {LDS_W1}')
            w1 = []
            for i in range(15):
                t = f'buffer_load_dwordx4 {v(vL16)}, {WS}, s37 offen offset:{(i % 4) * 1024} sc1 lds #w1'
                t = ('s_mov_b32 m0, s38\n' if i % 4 == 0 else '') + t
                w1.append(t + ('\ns_add_u32 s37, s37, 4096\ns_add_u32 s38, s38, 4096' if i % 4 == 3 else ''))
            for n in range(40, 80):
                seq.append((load_a(n), 2 * n))
                if n >= 48 and n % 2 == 0 and w1:
                    seq.append((w1.pop(0), 2 * n))
            assert not w1
            D = cfg.d1x
            for x, _ in seq[:D]:
                e(x)
            at = 0
            for k in range(D, len(seq)):
                at = max(seq[k - D][1] + 1, at)
                assert '#w1' not in seq[k][0] or at > 72
                spread(after, [seq[k][0]], at)
            e('@wait wq0')
            e('s_barrier')
            e(f's_lshl_b32 s39, s2, 2')
            e(f's_add_u32 s39, s39, {G2}')
            e(f's_add_u32 s{sVAL}, s{sTAG}, {SEQ_G2}')
            e(f'v_mov_b32 {v(vT0)}, s{sVAL}')
            e(f's_cmp_eq_u32 s{sW}, 0')
            e(f's_cselect_b32 s40, 0, {OOB}')
            e(f'v_mov_b32 {v(vT1)}, s40')
            e('s_mov_b64 exec, 1')
            e(f'buffer_store_dword {v(vT0)}, {v(vT1)}, {WS}, s39 offen sc1')
            e('s_mov_b64 exec, -1')
            for n in range(DW):
                e(load_w(n))
            for ch in range(1, 5):
                spread(after, [f'@wait wq{ch}\ns_barrier'], 16 * ch - DW)

            def cs():
                self.colsum(E, SP + 1)
                self.e(f'v_cmp_gt_u32 vcc, 512, {v(vL16)}')
                self.e(f'v_cndmask_b32 {v(E + 1)}, 0, {v(E)}, vcc')
                self.e(f'v_cndmask_b32 {v(E + 2)}, {v(E)}, 0, vcc')
                for q in range(4):
                    self.e(f'v_accvgpr_write_b32 {a_(aCQ + q)}, {v(E + 1 + q // 2)}')
            fill(after, self.capture(cs), 34, 54)
            fill(after, self.capture(stats), 54, 78)
            g2ld = f'buffer_load_dwordx4 {v(D16, 4)}, {v(vL16)}, {WS}, s39 offen sc1'
            g2ck = '\n'.join([f'v_cmp_ne_u32 vcc, s{sVAL}, {v(D16)}'] +
                             [f'v_cmp_ne_u32 s[40:41], s{sVAL}, {v(D16 + q)}\ns_or_b64 vcc, vcc, s[40:41]' for q in (1, 2, 3)])
            spread(after, [f's_mov_b32 s39, {G2}\n' + g2ld], 50)
            spread(after, [self.late_check(g2ld, g2ck)], 72)
            fill(after, self.capture(late_addresses), 2, 30)
            last = 2 * 79
        else:
            e(f'v_lshrrev_b32 {v(vT1)}, 2, {v(vL16)}')
            e(f'v_and_b32 {v(vT1)}, 124, {v(vT1)}')
            for n in range(DW):
                e(load_w(n))
            self.flag_line(33, 0, sSW)
            self.poll(33, vT1, 4 * L + F_X)
            self.stamp(f'p1_{L}_go')
            for n in range(cfg.d1):
                e(load_a(n))
            spread(after, [load_a(n) for n in range(cfg.d1, 80)], 0, 2)
            spread(after, stat_ld, 9, 6)
            fill(after, self.capture(stats), 50, 78)
            fill(after, self.capture(late_addresses), 2, 48)
            last = 2 * (80 - cfg.d1)
        spread(after, [load_w(n) for n in range(DW, 160)], 0, 1)
        fill(after, self.capture(lambda: self.kpart(0, False)), 83, 158)
        if L == 0:
            spread(after, [f'buffer_load_dwordx2 {v(SP, 2)}, {v(vOM)}, {WS}, s20 offen sc1',
                           f'buffer_load_dwordx2 {v(SP, 2)}, {v(vOM)}, {WS}, s21 offen sc1',
                           f'buffer_load_dwordx2 {v(SP + 2, 2)}, {v(vOR)}, {WS}, s22 offen sc1'], 159, 0)
        self.weave(mf, after)
        self.stamp(f'p1_{L}_gemm')

        def load_wo(i):
            r = WO_E + 4 * i if i < 20 else WO_L + 4 * (i - 20)
            t = f'buffer_load_dwordx4 {v(r, 4)}, {v(vL16)}, {WS}, s18 offen offset:{(i % 4) * 1024} sc1'
            return t + ('\ns_add_u32 s18, s18, 4096' if i % 4 == 3 else '')
        body = self.capture(lambda: self.kpart(1, True))
        after = {}
        fill(after, [load_wo(i) for i in range(12)], 1, len(body) - 8)
        self.weave(body, after)

        KV2 = A00
        e(f's_mul_i32 s33, s{sW}, 5120')
        e(f'v_add_u32 {v(vT0)}, s33, {v(vB3)}')
        e(f's_lshl_b32 s33, s{sW}, 10')
        e(f'v_add_u32 {v(vT1)}, s33, {v(vB3)}')
        e(f's_lshl_b32 s33, s{sW}, 2')
        e(f'v_add_u32 {v(vT2)}, s33, {v(vB3)}')
        e(f's_add_u32 s{sVAL}, s{sTAG}, {SEQ_KV + L}')
        e(f'v_mov_b32 {v(D16 + 3)}, s{sVAL}')
        for q in range(4):
            e(f'ds_write_b128 {v(vT0)}, {v(KV1 + 4 * q, 4)} offset:{EXO + 1024 * q}')
        e(f'ds_write_b128 {v(vT0)}, {v(KV2, 4)} offset:{EXO + 4096}')
        e('s_waitcnt lgkmcnt(0)')
        e('s_barrier')
        for src in range(4):
            e(f'ds_read_b128 {v(E + 4 * src, 4)}, {v(vT1)} offset:{EXO + 5120 * src}')
            e(f'ds_read_b32 {v(E + 16 + src)}, {v(vT2)} offset:{EXO + 5120 * src + 4096}')
        for h in range(2):
            e(f'v_pk_add_f32 {v(E + 2 * h, 2)}, {v(E + 2 * h, 2)}, {v(E + 4 + 2 * h, 2)}')
        for h in range(2):
            e(f'v_pk_add_f32 {v(E + 8 + 2 * h, 2)}, {v(E + 8 + 2 * h, 2)}, {v(E + 12 + 2 * h, 2)}')
        e(f'v_pk_add_f32 {v(E + 16, 2)}, {v(E + 16, 2)}, {v(E + 18, 2)}')
        for h in range(2):
            e(f'v_pk_add_f32 {v(E + 2 * h, 2)}, {v(E + 2 * h, 2)}, {v(E + 8 + 2 * h, 2)}')
        e(f'v_add_f32 {v(E + 16)}, {v(E + 16)}, {v(E + 17)}')
        e(f'v_cvt_pk_bf16_f32 {v(D16)}, {v(E)}, {v(E + 1)}')
        e(f'v_cvt_pk_bf16_f32 {v(D16 + 1)}, {v(E + 2)}, {v(E + 3)}')
        e(f'v_cvt_pk_bf16_f32 {v(D16 + 2)}, {v(E + 16)}, 0')
        e(f'buffer_store_dwordx4 {v(D16, 4)}, {v(vKVS)}, {WS}, s24 offen sc1')
        e('s_barrier')
        self.stamp(f'p1_{L}_kvpub')
        body = self.capture(lambda: [self.softmax(acc[1][mt], STT + 4 * mt, acc[0][mt], True) for mt in range(2)])
        extra = [load_wo(i) for i in range(12, 25)]
        if L == 0:
            e(f's_mul_i32 s47, s{sJ}, 245760')
            e(f's_mul_i32 s33, s{sW}, 61440')
            e('s_add_u32 s47, s47, s33')
            e(f's_add_u32 s47, s47, {W2F}')
            self.w2n = 0
            extra += self.w2_loads(cfg.w2split[0])
        after = {}
        fill(after, extra, 0, len(body) - 20)
        self.weave(body, after)
        self.stamp(f'p1_{L}_smq')

        G = A10
        tg = [G + 4 * x + 3 for x in range(7)]
        ld = '\n'.join(f'buffer_load_dwordx4 {v(G + 4 * x, 4)}, {v(vKVL)}, {WS}, s{25 + x} offen sc1' for x in range(7))
        ck = [f'v_min3_u32 {v(vT0)}, {v(tg[0])}, {v(tg[1])}, s{sVAL}', f'v_max3_u32 {v(vT1)}, {v(tg[0])}, {v(tg[1])}, s{sVAL}']
        for x in (2, 4):
            ck += [f'v_min3_u32 {v(vT0)}, {v(vT0)}, {v(tg[x])}, {v(tg[x + 1])}', f'v_max3_u32 {v(vT1)}, {v(vT1)}, {v(tg[x])}, {v(tg[x + 1])}']
        ck += [f'v_min_u32 {v(vT0)}, {v(vT0)}, {v(tg[6])}', f'v_max_u32 {v(vT1)}, {v(vT1)}, {v(tg[6])}',
               f'v_cmp_ne_u32 vcc, {v(vT0)}, {v(vT1)}']
        for i in range(5):
            if i % 2 == 0:
                e(f'v_lshlrev_b32 {v(E + i)}, 16, {v(D16 + i // 2)}')
            else:
                e(f'v_and_b32 {v(E + i)}, 0xffff0000, {v(D16 + i // 2)}')
        e(f's_lshr_b32 s33, s{sW}, 1')
        e('s_lshl_b32 s33, s33, 10')
        e(f's_and_b32 s34, s{sW}, 1')
        e('s_lshl_b32 s34, s34, 3')
        e('s_add_u32 s33, s33, s34')
        e(f'v_add_u32 {v(E + 10)}, s33, {v(vB3)}')
        e(f'v_lshrrev_b32 {v(E + 11)}, 1, {v(vL16)}')
        e(f'v_add_u32 {v(E + 11)}, {LDS_EX + 2048}, {v(E + 11)}')
        e(f's_lshl_b32 s33, s{sW}, 1')
        e(f'v_add_u32 {v(E + 12)}, s33, {v(E + 11)}')
        self.spin(ld, '\n'.join(ck))
        self.stamp(f'p1_{L}_kvgot')
        for x in range(7):
            for i in range(5):
                e(f'v_dot2c_f32_bf16 {v(E + i)}, s{sHI if i % 2 else sLO}, {v(G + 4 * x + i // 2)}')
        e(f'v_cvt_pk_bf16_f32 {v(E + 6)}, {v(E)}, {v(E + 1)}')
        e(f'v_cvt_pk_bf16_f32 {v(E + 7)}, {v(E + 2)}, {v(E + 3)}')
        e(f'v_cvt_pk_bf16_f32 {v(E + 8)}, {v(E + 4)}, {v(E + 4)}')
        e(f'ds_write_b64 {v(E + 10)}, {v(E + 6, 2)} offset:{EXO}')
        e(f'ds_write_b16 {v(E + 12)}, {v(E + 8)}')
        e('s_waitcnt lgkmcnt(0)')
        e('s_barrier')
        e(f'ds_read_b128 {v(D16, 4)}, {v(vB3)} offset:{EXO}')
        e(f'ds_read_b128 {v(D16 + 4, 4)}, {v(vB3)} offset:{EXO + 1024}')
        e(f'ds_read_b64 {v(D16 + 8, 2)}, {v(E + 11)}')
        for mt in range(2):
            O, Q = acc[1][mt], acc[0][mt]
            e(f'{M32} {v(O, 16)}, {v(D16, 4)}, {v(Q, 4)}, 0')
            e(f'{M32} {v(O, 16)}, {v(D16 + 4, 4)}, {v(Q + 4, 4)}, {v(O, 16)}')
        for mt in range(2):
            O, Q = acc[1][mt], acc[0][mt]
            e(f'{M32H} {v(O, 16)}, {v(D16 + 8, 2)}, {v(Q + 8, 2)}, {v(O, 16)}')
        for mt in range(2):
            O, P = acc[1][mt], E + 4 * mt
            e(f'v_add_f32 {v(O + 14)}, {hex(EPS_DEN)}, {v(O + 14)}')
            e(f'v_rcp_f32 {v(O + 14)}, {v(O + 14)}')
            for i in range(5):
                e(f'v_pk_mul_f32 {v(O + 4 + 2 * i, 2)}, {v(O + 4 + 2 * i, 2)}, {v(O + 14, 2)} op_sel_hi:[1,0]')
            for i in range(5):
                e(f'v_cvt_pk_bf16_f32 {v(P + i if i < 4 else E + 8 + mt)}, {v(O + 4 + 2 * i)}, {v(O + 5 + 2 * i)}')
            e(f'buffer_store_dwordx4 {v(P, 4)}, {v(vOM)}, {WS}, s{20 + mt} offen {self.st} #o{L}')
        e(f'v_permlane32_swap_b32 {v(E + 8)}, {v(E + 9)}')
        e(f'buffer_store_dwordx2 {v(E + 8, 2)}, {v(vOR)}, {WS}, s22 offen {self.st} #o{L}')
        e(self.flag_store(23, 4 * L + F_O, vT0, f'o{L}'))
        self.stamp(f'p1_{L}_end')

    def k_addresses(self, d, nk, abase, gstride, mstride):
        e = self.e
        e(f's_mul_i32 s{d + 4}, s{sSG}, {gstride}')
        e(f's_add_u32 s{d + 4}, s{d + 4}, {abase}')
        e(f's_mul_i32 s{d + 5}, s{sW}, {nk * 1024}')
        e(f's_add_u32 s{d + 4}, s{d + 4}, s{d + 5}')
        for s in range(4):
            e(f's_add_u32 s{d + s}, s{sW}, {s + 1}')
            e(f's_and_b32 s{d + s}, s{d + s}, 3')
            e(f's_mul_i32 s{d + s}, s{d + s}, {mstride}')
            e(f's_add_u32 s{d + s}, s{d + s}, s{d + 4}')
        for s in range(3):
            e(f's_sub_u32 s{d + 4 + s}, s{sW}, {s + 1}')
            e(f's_and_b32 s{d + 4 + s}, s{d + 4 + s}, 3')
            e(f's_mul_i32 s{d + 4 + s}, s{d + 4 + s}, 5120')

    def k_body(self, nk, d, wreg, areg, X, Z, init3, pos, after, base, vw, vr):
        mf = []
        w0, ws, r0, a0, a1 = pos
        for s in range(4):
            acc, prev = X[s % 2], X[(s - 1) % 2]
            for k in range(nk):
                for t in range(5):
                    c = v(acc + 4 * t, 4) if (k or (s == 3 and init3)) else '0'
                    mf.append(f'{M16} {v(acc + 4 * t, 4)}, {wreg(k, t)}, {v(areg(s * nk + k), 4)}, {c}')
            if s > 0:
                b = base + s * nk * 5
                spread(after, ['s_waitcnt lgkmcnt(0)\ns_barrier'], b + w0 - 1)
                spread(after, [f'ds_write_b128 {v(vw)}, {v(prev + 4 * t, 4)} offset:{EXO + 1024 * t}' for t in range(5)], b + w0, ws)
                spread(after, [f'v_add_u32 {v(vr)}, s{d + 3 + s}, {v(vB3)}'], b + r0 - 1)
                spread(after, ['s_waitcnt lgkmcnt(0)\ns_barrier'], b + r0)
                spread(after, [f'ds_read_b128 {v(Z + 4 * t, 4)}, {v(vr)} offset:{EXO + 1024 * t}' for t in range(5)], b + r0 + 1, 1, 2)
                if s < 3 or a1 <= nk * 5:
                    fill(after, [f'v_add_f32 {v(R + q)}, {v(R + q)}, {v(Z + q)}' for q in range(20)], b + a0, b + a1)
        return mf

    def k_load(self, i, nk, d, areg):
        s, k = divmod(i, nk)
        t = f'buffer_load_dwordx4 {v(areg(i), 4)}, {v(vL16)}, {WS}, s{d + s} offen offset:{(k % 4) * 1024} sc1'
        return t + (f'\ns_add_u32 s{d + s}, s{d + s}, 4096' if k % 4 == 3 and k + 1 < nk else '')

    def add_tile(self, src):
        for q in range(10):
            self.e(f'v_pk_add_f32 {v(R + 2 * q, 2)}, {v(R + 2 * q, 2)}, {v(src + 2 * q, 2)}')

    def stats_addr(self, d, base):
        e = self.e
        e(f's_lshl_b32 s{d}, s{sSG}, 2')
        e(f's_add_u32 s{d}, s{d}, s{sW}')
        e(f's_lshl_b32 s{d}, s{d}, 8')
        e(f's_add_u32 s{d}, s{d}, s{sJ}')
        e(f's_lshl_b32 s{d}, s{d}, 2')
        e(f's_add_u32 s{d}, s{d}, {base}')
        e(f's_lshl_b32 s{d + 1}, s{sSG}, 3')
        e(f's_add_u32 s{d + 1}, s{d + 1}, s{sJ}')
        e(f's_lshl_b32 s{d + 1}, s{d + 1}, 2')
        e(f's_add_u32 s{d + 1}, s{d + 1}, s{sW}')
        e(f's_lshl_b32 s{d + 1}, s{d + 1}, 2')
        e(f's_add_u32 s{d + 1}, s{d + 1}, {FL}')

    def publish_tile(self, P, d, vpair, step, vsingle, seq):
        e, st, t = self.e, self.st, P + 12
        for q in range(12):
            e(f'v_cvt_pk_bf16_f32 {v(P + q)}, {v(R + 2 * (q if q < 10 else q - 2))}, {v(R + 2 * (q if q < 10 else q - 2) + 1)}')
            if q == 3:
                e(f'buffer_store_dwordx4 {v(P, 4)}, {v(vpair)}, {WS}, s{d} offen {st} #x{seq}')
            if q == 7:
                e(f'buffer_store_dwordx4 {v(P + 4, 4)}, {v(vpair)}, {WS}, s{d} offen offset:{step} {st} #x{seq}')
        e(f'v_pk_add_f32 {v(t, 2)}, {v(R, 2)}, {v(R + 2, 2)}')
        e(f'v_pk_mul_f32 {v(t + 2, 2)}, {v(R, 2)}, {v(R, 2)}')
        e(f'v_permlane16_swap_b32 {v(P + 8)}, {v(P + 10)}')
        e(f'v_permlane16_swap_b32 {v(P + 9)}, {v(P + 11)}')
        e(f'buffer_store_dwordx4 {v(P + 8, 4)}, {v(vsingle)}, {WS}, s{d + 1} offen {st} #x{seq}')
        for i in range(1, 10):
            if i > 1:
                e(f'v_pk_add_f32 {v(t, 2)}, {v(t, 2)}, {v(R + 2 * i, 2)}')
            e(f'v_pk_fma_f32 {v(t + 2, 2)}, {v(R + 2 * i, 2)}, {v(R + 2 * i, 2)}, {v(t + 2, 2)}')
        e(f'v_add_f32 {v(t)}, {v(t)}, {v(t + 1)}')
        e(f'v_add_f32 {v(t + 2)}, {v(t + 2)}, {v(t + 3)}')
        e(f'v_permlane32_swap_b32 {v(t)}, {v(t + 2)}')
        e(f'v_add_f32 {v(t + 1)}, {v(t)}, {v(t + 2)}')
        e(f'v_add_f32 {v(t)}, {v(t)}, {v(t + 2)}')
        e(f'v_permlane16_swap_b32 {v(t)}, {v(t + 1)}')
        e(f'v_add_f32 {v(t)}, {v(t)}, {v(t + 1)}')
        e(f'buffer_store_dword {v(t)}, {v(vST)}, {WS}, s{d + 2} offen {st} #x{seq}')
        e(self.flag_store(d + 3, seq, vT0, f'x{seq}'))

    def p2(self, L):
        e, cfg = self.e, self.cfg
        wreg = lambda k, t: v(WO_E + 4 * (5 * k + t), 4) if k < 4 else v(WO_L + 4 * t, 4)
        areg = lambda i: 44 + 4 * (i % 10)
        if L == 0:
            for x in self.w2_loads(cfg.w2split[1]):
                e(x)
        self.k_addresses(16, 5, self.act(L, OF_O), self.ostride(), 20480)
        self.flag_line(23, 1, sSG)
        e(f's_lshl_b32 s24, s{sW}, 5')
        e('s_add_u32 s23, s23, s24')
        e(f'v_lshrrev_b32 {v(vT1)}, 2, {v(vL16)}')
        e(f'v_and_b32 {v(vT1)}, 28, {v(vT1)}')
        self.poll(23, vT1, 4 * L + F_O)
        self.stamp(f'p2_{L}_go')
        for i in range(cfg.d2):
            e(self.k_load(i, 5, 16, areg))
        e(f's_mul_i32 s24, s{sW}, 5120')
        e(f'v_add_u32 {v(vT1)}, s24, {v(vB3)}')
        e(f's_lshl_b32 s24, s{sSG}, 2')
        e(f's_add_u32 s24, s24, s{sW}')
        e('s_mul_i32 s24, s24, 20480')
        e(f's_add_u32 s24, s24, {self.act(L, X1F_O)}')
        e(f's_lshl_b32 s25, s{sKSS}, 1')
        e(f's_add_u32 s25, s25, s{sPAR}')
        e('s_lshl_b32 s25, s25, 9')
        e('s_add_u32 s25, s25, s24')
        e(f's_lshl_b32 s26, s{sKSA}, 10')
        e('s_add_u32 s24, s24, s26')
        self.stats_addr(26, self.act(L, ST1_O))
        after = {}
        mf = self.k_body(5, 16, wreg, areg, (84, 104), 124, False, (2, 3, 19, 27, 42), after, 0, vT1, vT2)
        spread(after, [self.k_load(i, 5, 16, areg) for i in range(cfg.d2, 20)], 0, 5)
        self.weave(mf, after)
        self.add_tile(124)
        self.add_tile(104)
        self.stamp(f'p2_{L}_gemm')
        self.publish_tile(44, 24, vL16, 1024, vXS1, 4 * L + F_X1)
        self.stamp(f'p2_{L}_end')

    def p34(self, L):
        e, cfg = self.e, self.cfg
        ACC, WB, SB, PK, RING, X0, X1, T8 = 44, 92, 128, 144, 160, 208, 228, 248
        acc = lambda lt, n: ACC + 4 * (3 * n + lt)
        wreg = lambda n: WB + (n % 9) * 4
        areg = lambda n: RING + (n % 12) * 4
        if L == 0:
            e('s_barrier')
            e(self.colsum_dma(CS1, 16, vT1, 'cs'))
            for x in self.w2_loads(cfg.w2split[2]):
                e(x)
        e(f's_mul_i32 s24, s{sSW}, 81920')
        e(f's_add_u32 s24, s24, {self.act(L, X1F_O)}')
        e(f's_lshl_b32 s25, s{sSW}, 12')
        e(f's_add_u32 s25, s25, {self.act(L, ST1_O)}')
        for n in range(4):
            e(f's_add_u32 s{28 + n}, s{sGI}, {n + 1}')
            e(f's_and_b32 s{28 + n}, s{28 + n}, 3')
            e(f's_mul_i32 s{16 + n}, s{28 + n}, 20480')
            e(f's_add_u32 s{16 + n}, s{16 + n}, s24')
            e(f's_lshl_b32 s{20 + n}, s{28 + n}, 10')
            e(f's_add_u32 s{20 + n}, s{20 + n}, s25')
        e(f'v_lshrrev_b32 {v(vT1)}, 2, {v(vL16)}')
        e(f'v_and_b32 {v(vT1)}, 124, {v(vT1)}')

        def load_w(n):
            b, off = lds(LDS_W1 + (n % 60) * 1024)
            return f'ds_read_b128 {v(wreg(n), 4)}, {v(b)} offset:{off}'

        def load_a(n):
            if n >= 80:
                return self.k_load(n - 80, 12, 36, lambda i: areg(80 + i))
            h, r = divmod(n, 40)
            ks, m = divmod(r, 2)
            t = f'buffer_load_dwordx4 {v(areg(n), 4)}, {v(vL16)}, {WS}, s{16 + 2 * h + m} offen offset:{(ks % 4) * 1024} sc1'
            return t + (f'\ns_add_u32 s{16 + 2 * h + m}, s{16 + 2 * h + m}, 4096' if ks % 4 == 3 else '')
        DW = 5
        for n in range(DW):
            e(load_w(n))
        self.flag_line(24, 0, sSW)
        self.poll(24, vT1, 4 * L + F_X1)
        self.stamp(f'p3_{L}_go')
        for n in range(cfg.d3):
            e(load_a(n))

        def addresses():
            e = self.e
            e(f's_mul_i32 s32, s{sSW}, 196608')
            e(f's_add_u32 s32, s32, {self.act(L, HF_O)}')
            e(f's_lshr_b32 s33, s{sC}, 1')
            e('s_mul_i32 s33, s33, 3072')
            e('s_add_u32 s32, s32, s33')
            e(f's_lshl_b32 s33, s{sPAR}, 11')
            e('s_add_u32 s33, s33, s32')
            e(f'v_bfe_u32 {v(vT2)}, {v(vL16)}, 8, 1')
            e(f'v_cmp_eq_u32 vcc, 1, {v(vT2)}')
            e(f'v_and_b32 {v(vT2)}, 0x1ff, {v(vXS1)}')
            for n in range(4):
                e(f's_mul_i32 s{28 + n}, s{28 + n}, 49152')
                if n % 2 == 0:
                    e(f'v_mov_b32 {v(T8 + n // 2)}, s{28 + n}')
                else:
                    e(f'v_mov_b32 {v(vT3)}, s{28 + n}')
                    e(f'v_cndmask_b32 {v(T8 + n // 2)}, {v(T8 + n // 2)}, {v(vT3)}, vcc')
                    e(f'v_add_u32 {v(T8 + n // 2)}, {v(T8 + n // 2)}, {v(vT2)}')
                e(f's_add_u32 s{28 + n}, s{28 + n}, s33')
            e(f's_lshl_b32 s33, s{sPAR}, 9')
            e('s_add_u32 s32, s32, s33')
            self.flag_line(33, 1, sSW)
            e(f's_lshl_b32 s34, s{sC}, 2')
            e('s_add_u32 s33, s33, s34')
            e('s_add_u32 s34, s33, 4096')
            self.k_addresses(36, 12, self.act(L, HF_O), 196608, 49152)
            self.flag_line(35, 1, sSG)
            e(f's_lshl_b32 s43, s{sW}, 5')
            e('s_add_u32 s35, s35, s43')
            e(f'v_lshrrev_b32 {v(T8 + 2)}, 2, {v(vL16)}')
            e(f'v_and_b32 {v(T8 + 2)}, 28, {v(T8 + 2)}')
            e(f's_mul_i32 s43, s{sW}, 5120')
            e(f'v_add_u32 {v(T8 + 3)}, s43, {v(vB3)}')
            e('s_mov_b32 s44, 0')
            e('s_mov_b32 s45, 0xffff0000')
            e(f's_add_u32 s{sVAL}, s{sTAG}, {4 * L + F_H}')

        def stats(h):
            e = self.e
            a, b = SB + 8 * h, SB + 8 * h + 4
            self.pair_stats(a, b)
            e(f'v_mul_f32 {v(a + 1)}, {v(a + 1)}, {v(a + 2)}')
            for q in range(3):
                e(f'v_mov_b32 {v(b + q)}, {v(a + q)}')
            for q in range(3):
                e(f'v_permlane16_swap_b32 {v(a + q)}, {v(b + q)}')
            for x in (a, b):
                e(f'v_cndmask_b32 {v(vT2)}, {v(x)}, {v(x + 1)}, s[44:45]')
                self.hi_lo(x, vT2, x + 3)

        def cs():
            e = self.e
            self.colsum(PK, vT3)
            e(f'v_lshrrev_b32 {v(PK + 1)}, 8, {v(vL16)}')
            for lt in range(3):
                e(f'v_cmp_eq_u32 vcc, {lt}, {v(PK + 1)}')
                e(f'v_accvgpr_read_b32 {v(PK + 3)}, {a_(aB1 + lt)}')
                e(f'v_cndmask_b32 {v(PK + 2)}, 0, {v(PK)}, vcc')
                e(f'v_cndmask_b32 {v(PK + 2)}, {v(PK + 2)}, {v(PK + 3)}, s[44:45]')
                e(f'v_accvgpr_write_b32 {a_(aC1 + 2 * lt)}, {v(PK + 2)}')
                e(f'v_accvgpr_write_b32 {a_(aC1 + 2 * lt + 1)}, {v(PK + 2)}')

        def finish(h):
            e, st = self.e, self.st
            for m in range(2):
                for lt in range(3):
                    n = 2 * h + m
                    e(f'{M16H} {v(acc(lt, n), 4)}, {a_(aC1 + 2 * lt, 2)}, {v(SB + 4 * n, 2)}, {v(acc(lt, n), 4)}')
            for m in range(2):
                n = 2 * h + m
                a = acc(0, n)
                for q in range(6):
                    for z in range(2):
                        x = a + 2 * q + z
                        e(f'v_mul_f32 {v(x)}, {v(x)}, {v(SB + 4 * n + 2)}')
                        e(f'v_max_f32 {v(x)}, 0, {v(x)}')
                        e(f'v_mul_f32 {v(x)}, {v(x)}, {v(x)}')
                    dst = PK + 4 * m + q if q < 4 else PK + 8 + 2 * m + q - 4
                    e(f'v_cvt_pk_bf16_f32 {v(dst)}, {v(a + 2 * q)}, {v(a + 2 * q + 1)}')
                    if q == 3:
                        e(f'buffer_store_dwordx4 {v(PK + 4 * m, 4)}, {v(vL16)}, {WS}, s{28 + n} offen {st} #h{h}{L}')
            e(f'v_permlane16_swap_b32 {v(PK + 8)}, {v(PK + 10)}')
            e(f'v_permlane16_swap_b32 {v(PK + 9)}, {v(PK + 11)}')
            e(f'buffer_store_dwordx4 {v(PK + 8, 4)}, {v(T8 + h)}, {WS}, s32 offen offset:1024 {st} #h{h}{L}')

        mf, after = [], {}
        for h in range(2):
            for ks in range(20):
                for m in range(2):
                    for lt in range(3):
                        n, wn = 2 * h + m, 60 * h + 3 * ks + lt
                        c = v(acc(lt, n), 4) if ks else '0'
                        pre = ''
                        if lt == 0:
                            regs = [v(areg(40 * h + 2 * ks + m), 4)] + ([v(wreg(wn + q), 4) for q in range(3)] if m == 0 else [])
                            pre = '@need ' + ' '.join(regs) + '\n'
                        mf.append(f'{pre}{M16} {v(acc(lt, n), 4)}, {v(wreg(wn), 4)}, {v(areg(40 * h + 2 * ks + m), 4)}, {c}')
        spread(after, [load_w(n) for n in range(DW, 120)], 1, 2)
        fill(after, self.capture(addresses), 0, 40)
        spread(after, [f'buffer_load_dwordx4 {v(SB + 4 * n, 4)}, {v(vSTL)}, {WS}, s{20 + n} offen sc1' for n in range(4)], 14, 6)
        if L == 0:
            spread(after, ['@wait cs\ns_barrier'], 40)
            fill(after, self.capture(cs), 41, 75)
            rest = self.w2_loads(60)
            if rest:
                fill(after, rest, 60, 200)
            for h in range(2):
                spread(after, [f'buffer_load_dwordx2 {v(T8 + 4, 2)}, {v(vL16)}, {WS}, s{28 + 2 * h + m} offen sc1' for m in range(2)] +
                       [f'buffer_load_dwordx2 {v(T8 + 6, 2)}, {v(T8 + h)}, {WS}, s32 offen offset:1024 sc1'], 80 + 120 * h, 3)
        fill(after, self.capture(lambda: stats(0)), 76, 116)
        fill(after, self.capture(lambda: finish(0)), cfg.fa[0], cfg.fa[1])
        spread(after, [self.flag_store(33, 4 * L + F_H, vT3, f'h0{L}')], cfg.fa[2])
        fill(after, self.capture(lambda: stats(1)), cfg.fa[1] + 1, 225)
        mf += self.k_body(12, 36, lambda k, t: a_(4 * (5 * k + t), 4), lambda i: areg(80 + i), (X0, X1), ACC, True,
                          (3, 4, 27, 36, 58), after, 240, T8 + 3, vT1)
        need = lambda n: 3 * n if n < 80 else 240 + 5 * (n - 80)
        D = cfg.d3
        pl = f'buffer_load_dword {v(vT0)}, {v(T8 + 2)}, {WS}, s35 offen sc1'
        pc = f'v_cmp_ne_u32 vcc, s{sVAL}, {v(vT0)}'
        spread(after, [pl], cfg.ga[0])
        spread(after, [self.late_check(pl, pc) + '\ns_add_u32 s35, s35, 4096'], cfg.ga[1])
        spread(after, [pl], cfg.gb[0])
        spread(after, [self.late_check(pl, pc)], cfg.gb[1])
        for n in range(D, 128):
            at = need(n - D)
            if n >= 80:
                at = max(at, cfg.ga[1] + n - 80)
            if n >= 104:
                at = max(at, cfg.gb[1] + n - 104)
            spread(after, [load_a(n)], at)
        fill(after, self.capture(lambda: finish(1)), cfg.fb[0], cfg.fb[1])
        spread(after, [self.flag_store(34, 4 * L + F_H, vT3, f'h1{L}')], cfg.fb[2])

        def bias_addr():
            e = self.e
            e(f'v_lshrrev_b32 {v(SB)}, 8, {v(vL16)}')
            e(f'v_lshlrev_b32 {v(SB + 1)}, 3, {v(SB)}')
            e(f'v_lshlrev_b32 {v(SB)}, 4, {v(SB)}')
            e(f's_lshl_b32 s16, s{sKSA}, 6')
            e(f's_lshl_b32 s17, s{sKSS}, 1')
            e(f's_add_u32 s17, s17, s{sPAR}')
            e('s_lshl_b32 s17, s17, 5')
            e(f'buffer_load_dwordx4 {v(WB, 4)}, {v(SB)}, {B2}, s16 offen')
            e(f'buffer_load_dwordx4 {v(WB + 4, 4)}, {v(SB)}, {B2}, s16 offen offset:64')
            e(f'buffer_load_dwordx2 {v(WB + 8, 2)}, {v(SB + 1)}, {B2}, s17 offen')
            if L == 1:
                self.rowmajor(24, 25, SB + 2, SB + 3, SB)
            else:
                self.xf_offsets(24, L + 1)
                self.stats_addr(26, self.act(L + 1, ST_O))
        fill(after, self.capture(bias_addr), 306, 352)
        fill(after, self.capture(lambda: self.unpack(X1, WB, 10)), 392, 416)
        self.weave(mf, after)
        self.add_tile(X1)
        self.stamp(f'p4_{L}_gemm')
        if L == 1:
            for q in range(10):
                e(f'v_cvt_pk_bf16_f32 {v(PK + q)}, {v(R + 2 * q)}, {v(R + 2 * q + 1)}')
            e(f'buffer_store_dwordx4 {v(PK, 4)}, {v(SB + 2)}, {OUT}, s24 offen')
            e(f'buffer_store_dwordx4 {v(PK + 4, 4)}, {v(SB + 2)}, {OUT}, s24 offen offset:64')
            e(f'buffer_store_dwordx2 {v(PK + 8, 2)}, {v(SB + 3)}, {OUT}, s25 offen')
        else:
            self.publish_tile(PK, 24, vXF, 2048, vXS2, 4 * (L + 1) + F_X)
            e('s_barrier')
        self.stamp(f'p4_{L}_end')

    def body(self):
        e = self.e
        for L in range(2):
            self.p1(L)
            self.p2(L)
            self.p34(L)
        e(f's_add_u32 s{sVAL}, s{sTAG}, 16')
        e(f'v_mov_b32 {v(vT0)}, s{sVAL}')
        e(f's_mov_b32 s16, {EPOCH}')
        e(f's_or_b32 s17, s2, s{sW}')
        e('s_cmp_eq_u32 s17, 0')
        e(f's_cselect_b32 s17, 0, {OOB}')
        e(f'v_mov_b32 {v(vT1)}, s17')
        e('s_mov_b64 exec, 1')
        e(f'buffer_store_dword {v(vT0)}, {v(vT1)}, {WS}, s16 offen sc1')
        e('s_mov_b64 exec, -1')
        if self.stamping:
            e('s_waitcnt vmcnt(0)')
            self.stamp('done')
            e('s_memrealtime s[62:63]')
            e('s_waitcnt lgkmcnt(0)')
            e('s_mov_b32 s101, s62')
            e('s_lshl_b32 s16, s2, 2')
            e(f's_add_u32 s16, s16, s{sW}')
            e('s_lshl_b32 s16, s16, 8')
            e(f's_add_u32 s16, s16, {STAMP}')
            for i in range(38):
                e(f'v_mov_b32 {v(44 + i)}, s{sSTAMP + i}')
            e('s_mov_b64 exec, 1')
            for i in range(10):
                e(f'buffer_store_dwordx4 {v(44 + 4 * i, 4)}, {v(vL16)}, {WS}, s16 offen offset:{16 * i}')
        e('s_endpgm')
        tails, self.tails = self.tails, []
        for t in tails:
            e.reset()
            e.extend(t)

    def build(self):
        e, cfg = self.e, self.cfg
        self.prologue()
        self.st = 'sc1' if cfg.force_slow else ''
        self.body()
        e('Lfast_end:')
        e('Lend:')
        e('s_endpgm')
        if cfg.both:
            e.reset()
            e('Lslow:')
            self.st, self.stamping = 'sc1', False
            self.body()
        txt = f'; @launch grid=(256,1,1) block=(256,1,1) lds={LDS_TOTAL}\n'
        txt += '.amdgcn_target "amdgcn-amd-amdhsa--gfx950"\n.text\n' + e.finalize().replace(' offset:0', '').replace('    ', ' ')
        txt += f""".section .rodata,"a"
.p2align 6
.amdhsa_kernel {NAME}_kernel
  .amdhsa_next_free_vgpr 512
  .amdhsa_next_free_sgpr 102
  .amdhsa_accum_offset 256
  .amdhsa_group_segment_fixed_size 0
  .amdhsa_kernarg_size 96
  .amdhsa_user_sgpr_count 2
  .amdhsa_user_sgpr_kernarg_segment_ptr 1
  .amdhsa_system_sgpr_workgroup_id_x 1
.end_amdhsa_kernel
"""
        return txt


def parse_cfg(args):
    cfg = Cfg()
    for a in args:
        if '=' in a:
            k, val = a.split('=')
            assert hasattr(cfg, k), k
            setattr(cfg, k, val if isinstance(getattr(cfg, k), str) else eval(val))
    return cfg


def build(cfg):
    g = Gen(cfg)
    return g.build(), g.e, g


if __name__ == '__main__':
    txt, e, g = build(parse_cfg(sys.argv[2:]))
    open(sys.argv[1], 'w').write(txt)
    print('instructions', len(e.ins), e.stats, 'bytes', len(txt), 'pending at labels:', e.pending)
```

```python
import sys
from asmlib import *
from layout import *

NAME = 'interleave_layers__linear_kernel_hedgehog__dense_activation_squared_relu__prompt'
M32 = 'v_mfma_f32_32x32x16_bf16'
M32H = 'v_mfma_f32_32x32x8_bf16'
M16 = 'v_mfma_f32_16x16x32_bf16'
M16H = 'v_mfma_f32_16x16x16_bf16'

P_X, P_WQKV, P_WPHI, P_WO, P_BX, P_W1, P_B1, P_W2, P_B2, P_OUT, P_DBG, P_WS = [64 + 2 * i for i in range(12)]
S_WS, S_OUT, S_B2, S_W1, S_WQKV, S_WPHI, S_WO, S_B1, S_W2, S_X = range(4, 44, 4)
WS, OUT, B2 = s_(S_WS, 4), s_(S_OUT, 4), s_(S_B2, 4)
sW = 3
sSET, sC, sGI, sJ, sTAG, sSG, sSW, sCNT, sVAL, sKSA, sKSS, sPAR, sLO, sHI = range(48, 62)
sSTAMP = 64
STAMP_SKIP = ('consts', 'nc_iss')

vL16, vB2, vB3, vXF, vXS1, vXS2, vU0, vU1, vOM, vOR, vKVS, vKVL, vT0, vT1, vT2, vT3 = range(16)
vST, vSTL = vXS2, vL16
R = 16
PA, PB = 36, 40
A00, A01, A10, A11 = 44, 60, 76, 92
E, D16, KV1, CB, SP, STT = 108, 128, 144, 160, 164, 168
WO_E, WO_L = 176, 144
aCQ, aC1, aB1 = 240, 244, 250
LOG2E, INV640, EPS_LN, EPS_DEN = 0x3fb8aa3b, 0x3acccccd, 0x3727c5ac, 0x358637bd
EXO = LDS_EX - 131072
SEQ_G1, SEQ_G2, SEQ_KV = 11, 12, 9
F_X, F_O, F_X1, F_H = range(4)
vXG, vXL, XB = R, R + 4, 49152
sXG, sXL = 44, 45
NCF, vG2 = 184, 205
KVS = 768


class Cfg:
    stamps = False
    rt = False
    alias = True
    force_slow = False
    both = True
    d1 = 7
    d1x = 10
    d2 = 5
    d3 = 7
    w2split = (0, 0, 10)
    wb = False
    tlb = False
    wlead = 8
    xstep = 12
    wo0 = 10
    ntt = ''
    w1split = (4, 5)
    fine = -1
    skip = ''
    nt = 'nt'
    ntx = ''
    xpre = (3, 10)
    nc_at = 130
    diag = 0
    diag_at = 'start'
    fa = (123, 165, 180)
    ga = (200, 218)
    fb = (242, 276, 290)
    gb = (312, 334)


def lds(off):
    return (vL16, vB2, vB3)[off >> 16], off & 0xffff


def spread(after, items, start, step=1, per=1):
    for n, x in enumerate(items):
        after.setdefault(start + (n // per) * step, []).append(x)


def fill(after, items, start, end):
    n = len(items)
    for k, x in enumerate(items):
        after.setdefault(start + k * (end - start) // n, []).append(x)


class Gen:
    def __init__(self, cfg):
        self.e, self.cfg = Asm(), cfg
        self.nstamp, self.nlab, self.stamp_names, self.tails = 0, 0, [], []
        self.st, self.stamping = '', cfg.stamps

    def act(self, L, off):
        if self.cfg.alias:
            return ACT + {XF_O: XF_O, X1F_O: XF_O, OF_O: HF_O, HF_O: HF_O, ST_O: ST_O, ST1_O: ST_O}[off]
        return ACT + L * ACT_STRIDE + off

    def ostride(self):
        return 196608 if self.cfg.alias else 81920

    def stamp(self, name):
        if self.cfg.diag and name == self.cfg.diag_at:
            self.e('s_memrealtime s[100:101]')
            self.e('s_waitcnt lgkmcnt(0)')
        if not self.stamping or name in STAMP_SKIP or (self.cfg.skip and self.cfg.skip in name):
            return
        e = self.e
        e(('s_memrealtime' if self.cfg.rt else 's_memtime') + ' s[62:63]')
        e('s_waitcnt lgkmcnt(0)')
        e(f's_mov_b32 s{sSTAMP + self.nstamp}, s62')
        self.stamp_names.append(name)
        self.nstamp += 1
        assert self.nstamp <= 36

    def label(self, base):
        self.nlab += 1
        return f'L{base}_{self.nlab}'

    def srd(self, d, p, nbytes):
        e = self.e
        e(f's_mov_b32 s{d}, s{p}')
        e(f's_and_b32 s{d + 1}, s{p + 1}, 0xffff')
        e(f's_mov_b32 s{d + 2}, {nbytes}')
        e(f's_mov_b32 s{d + 3}, 0x20000')

    def sdiv(self, q, r, x, d):
        e = self.e
        e(f's_mul_i32 s{q}, s{x}, {(1 << 16) // d + 1}')
        e(f's_lshr_b32 s{q}, s{q}, 16')
        e(f's_mul_i32 s{r}, s{q}, {d}')
        e(f's_sub_u32 s{r}, s{x}, s{r}')

    def capture(self, fn):
        keep, self.e = self.e, Asm()
        fn()
        out, self.e = self.e.ins, keep
        return out

    def weave(self, main, after):
        for i, m in enumerate(main):
            self.e(m)
            for x in after.pop(i, ()):
                self.e(x)
        assert not after, sorted(after)

    def flag_line(self, d, line, sidx):
        self.e(f's_lshl_b32 s{d}, s{sidx}, 7')
        self.e(f's_add_u32 s{d}, s{d}, {FL + line * 4096}')

    def spin(self, load, check):
        e, lab = self.e, self.label('poll')
        e(f's_mov_b32 s{sCNT}, 0')
        e(f'{lab}:')
        e(load)
        e(f's_add_u32 s{sCNT}, s{sCNT}, 1')
        e(f's_cmp_gt_u32 s{sCNT}, 0x80000')
        e('s_cbranch_scc1 Lend')
        e('s_waitcnt vmcnt(0)')
        e(check)
        e(f's_cbranch_vccnz {lab}')

    def late_check(self, load, check):
        out, back = self.label('retry'), self.label('back')

        def tail():
            self.e(f'{out}:')
            self.e('s_nop 7')
            self.e('s_nop 3')
            self.spin(load, check)
            self.e(f's_branch {back}')
        self.tails.append(self.capture(tail))
        return check + f'\ns_cbranch_vccnz {out}\n{back}:'

    def poll(self, sflag, vpoll, seq):
        self.e(f's_add_u32 s{sVAL}, s{sTAG}, {seq}')
        self.spin(f'buffer_load_dword {v(vT0)}, {v(vpoll)}, {WS}, s{sflag} offen sc1',
                  f'v_cmp_ne_u32 vcc, s{sVAL}, {v(vT0)}')

    def flag_store(self, sflag, seq, t, tag):
        return (f'v_mov_b32 {v(t)}, {seq}\nv_add_u32 {v(t)}, s{sTAG}, {v(t)}\n@wait {tag}\ns_mov_b64 exec, 1\n'
                f'buffer_store_dword {v(t)}, {v(vL16)}, {WS}, s{sflag} offen {self.st}\ns_mov_b64 exec, -1')

    def unpack(self, dst, src, n):
        for i in range(n):
            self.e(f'v_lshlrev_b32 {v(dst + 2 * i)}, 16, {v(src + i)}')
            self.e(f'v_and_b32 {v(dst + 2 * i + 1)}, 0xffff0000, {v(src + i)}')

    def hi_lo(self, dst, x, t):
        e = self.e
        e(f'v_cvt_pk_bf16_f32 {v(dst)}, {v(x)}, {v(x)}')
        e(f'v_lshlrev_b32 {v(t)}, 16, {v(dst)}')
        e(f'v_sub_f32 {v(t)}, {v(x)}, {v(t)}')
        e(f'v_cvt_pk_bf16_f32 {v(dst + 1)}, {v(t)}, {v(t)}')

    def pair_stats(self, a, b):
        e = self.e
        for q in range(1, 4):
            e(f'v_add_f32 {v(a)}, {v(a)}, {v(a + q)}')
            e(f'v_add_f32 {v(b)}, {v(b)}, {v(b + q)}')
        e(f'v_permlane16_swap_b32 {v(a)}, {v(b)}')
        e(f'v_add_f32 {v(a)}, {v(a)}, {v(b)}')
        e(f'v_mov_b32 {v(a + 1)}, {v(a)}')
        e(f'v_permlane32_swap_b32 {v(a)}, {v(a + 1)}')
        e(f'v_mul_f32 {v(a)}, {hex(INV640 | 0x80000000)}, {v(a)}')
        e(f'v_mul_f32 {v(a + 1)}, {hex(INV640)}, {v(a + 1)}')
        e(f'v_fma_f32 {v(a + 1)}, -{v(a)}, {v(a)}, {v(a + 1)}')
        e(f'v_max_f32 {v(a + 1)}, 0, {v(a + 1)}')
        e(f'v_add_f32 {v(a + 1)}, {hex(EPS_LN)}, {v(a + 1)}')
        e(f'v_rsq_f32 {v(a + 2)}, {v(a + 1)}')

    def colsum(self, t, addr):
        e = self.e
        e(f'v_lshrrev_b32 {v(addr)}, 2, {v(vL16)}')
        e(f'v_add_u32 {v(addr)}, {LDS_EX}, {v(addr)}')
        for h in range(2):
            for q in range(4 if h else 5):
                e(f'ds_read2st64_b32 {v(t + 2 * q + 2 * h, 2)}, {v(addr)} offset0:{10 * h + 2 * q} offset1:{10 * h + 2 * q + 1}')
            for q in range(2 if h else 1, 10):
                e(f'v_add_f32 {v(t)}, {v(t)}, {v(t + q)}')
        e(f'ds_read2st64_b32 {v(t + 2, 2)}, {v(addr)} offset0:18 offset1:19')
        e(f'v_add_f32 {v(t)}, {v(t)}, {v(t + 2)}')
        e(f'v_add_f32 {v(t)}, {v(t)}, {v(t + 3)}')
        e(f'v_cvt_pk_bf16_f32 {v(t + 1)}, {v(t)}, {v(t)}')
        e(f'v_lshlrev_b32 {v(t + 1)}, 16, {v(t + 1)}')
        e(f'v_sub_f32 {v(t + 2)}, {v(t)}, {v(t + 1)}')
        e(f'v_cvt_pk_bf16_f32 {v(t)}, {v(t + 1)}, {v(t + 2)}')

    def colsum_dma(self, base, s0, t, tag):
        return (f's_mul_i32 s{s0}, s{sC}, 5120\ns_mul_i32 s{s0 + 1}, s{sW}, 1280\ns_add_u32 s{s0}, s{s0}, s{s0 + 1}\n'
                f's_add_u32 s{s0}, s{s0}, {base}\ns_add_u32 m0, s{s0 + 1}, {LDS_EX}\n'
                f'v_lshrrev_b32 {v(t)}, 2, {v(vL16)}\n'
                f'buffer_load_dwordx4 {v(vL16)}, {WS}, s{s0} offen sc1 lds #{tag}\n'
                f'buffer_load_dword {v(t)}, {WS}, s{s0} offen offset:1024 sc1 lds #{tag}')

    def rowmajor(self, d0, d1, va, vb, t):
        e = self.e
        e(f's_lshl_b32 s{d1}, s{sSG}, 2')
        e(f's_add_u32 s{d1}, s{d1}, s{sW}')
        e(f's_mul_i32 s{d1}, s{d1}, {16 * 1280}')
        e(f's_lshl_b32 s{d0}, s{sKSA}, 6')
        e(f's_add_u32 s{d0}, s{d0}, s{d1}')
        e(f's_lshl_b32 s62, s{sKSS}, 6')
        e(f's_add_u32 s{d1}, s{d1}, s62')
        e(f's_lshl_b32 s62, s{sPAR}, 5')
        e(f's_add_u32 s{d1}, s{d1}, s62')
        e(f'v_bfe_u32 {v(va)}, {v(vL16)}, 4, 4')
        e(f'v_mul_u32_u24 {v(va)}, 1280, {v(va)}')
        e(f'v_lshrrev_b32 {v(t)}, 8, {v(vL16)}')
        e(f'v_lshl_add_u32 {v(vb)}, {v(t)}, 3, {v(va)}')
        e(f'v_lshl_add_u32 {v(va)}, {v(t)}, 4, {v(va)}')

    def xf_offsets(self, d, L):
        e = self.e
        e(f's_lshl_b32 s{d}, s{sSG}, 1')
        e(f's_lshr_b32 s{d + 1}, s{sW}, 1')
        e(f's_add_u32 s{d}, s{d}, s{d + 1}')
        e(f's_mul_i32 s{d}, s{d}, 40960')
        e(f's_and_b32 s{d + 1}, s{sW}, 1')
        e(f's_lshl_b32 s{d + 1}, s{d + 1}, 8')
        e(f's_add_u32 s{d}, s{d}, s{d + 1}')
        e(f's_add_u32 s{d}, s{d}, {self.act(L, XF_O)}')
        e(f's_lshl_b32 s{d + 1}, s{sKSS}, 1')
        e(f's_add_u32 s{d + 1}, s{d + 1}, s{sPAR}')
        e(f's_lshl_b32 s{d + 1}, s{d + 1}, 10')
        e(f's_add_u32 s{d + 1}, s{d + 1}, s{d}')
        e(f's_lshl_b32 s62, s{sKSA}, 11')
        e(f's_add_u32 s{d}, s{d}, s62')

    def x_slot(self, u):
        n0, n1 = self.cfg.xpre
        return u if u < n0 else (u - n0 if u < n1 else 2 + (u - n1) % 3)

    def x_dma(self, u):
        kq, mt = divmod(u, 2)
        pre = f's_add_u32 s46, s{sXG}, {40960 * mt + 128 * kq}\n'
        m0 = f's_add_u32 m0, s{sXL}, {16384 * self.x_slot(u)}\n'
        return [(pre if i == 0 else '') + m0 +
                f'buffer_load_dwordx4 {v(vXG + i)}, {s_(S_X, 4)}, s46 offen offset:{1024 * i} lds #xa{u}' for i in range(4)]

    def x_reg(self, ks, mt):
        return 4 * ((2 * ks + mt) % 60)

    def x_read(self, u, wait=True):
        kq, mt = divmod(u, 2)
        sl = self.x_slot(u)
        t = [f'ds_read_b128 {a_(self.x_reg(4 * kq + q, mt), 4)}, {v(vXL + q + 4 * (sl // 4))} offset:{16384 * (sl % 4)}' for q in range(4)]
        if wait:
            t[0] = f'@wait xa{u}\n' + t[0]
        return t

    def x_done(self, u):
        kq, mt = divmod(u, 2)
        return f'@need {a_(self.x_reg(4 * kq + 3, mt), 4)}'

    def prologue(self):
        e, cfg = self.e, self.cfg
        name = NAME + '_kernel'
        nt = cfg.nt
        RQ, RS, R1, R2, RO = 0, 17408, 18432, 30720, 38912
        e(f'.globl {name}\n.p2align 8\n.type {name},@function\n{name}:')
        e('s_cmp_ge_u32 s2, 256')
        e('s_cbranch_scc1 Lend')
        e('s_getpc_b64 s[44:45]')
        e('Lpc:')
        e('s_load_dwordx16 s[64:79], s[0:1], 0')
        e('s_load_dwordx8 s[80:87], s[0:1], 64')
        if cfg.diag:
            e('s_memrealtime s[100:101]')
        if cfg.stamps:
            e('s_memrealtime s[100:101]')
            e(('s_memrealtime' if cfg.rt else 's_memtime') + ' s[98:99]')
        e(f's_lshr_b32 s{sC}, s2, 3')
        e('v_lshrrev_b32 v44, 6, v0')
        e('v_and_b32 v45, 3, v0')
        e('v_lshl_add_u32 v45, v44, 2, v45')
        e(f's_lshl_b32 s46, s{sC}, 4')
        e('v_add_u32 v45, s46, v45')
        e('v_lshlrev_b32 v45, 7, v45')
        e('v_min_u32 v45, Lfast_end-Lpc, v45')
        e('s_mov_b64 exec, 15')
        e('global_load_dword v46, v45, s[44:45]')
        e('s_mov_b64 exec, -1')
        e(f'v_readfirstlane_b32 s{sW}, v44')
        LANE, M16_, G4, M32_, G2 = 47, 48, 49, 50, 51
        e(f'v_and_b32 {v(LANE)}, 63, v0')
        e(f'v_and_b32 {v(M32_)}, 31, v0')
        e(f'v_bfe_u32 {v(G2)}, v0, 5, 1')
        e(f's_and_b32 s{sSET}, s2, 7')
        e(f'v_mul_u32_u24 v52, 205, {v(LANE)}')
        e('v_lshrrev_b32 v52, 11, v52')
        e('v_mul_u32_u24 v53, 1120, v52')
        e(f'v_lshl_add_u32 v53, {v(LANE)}, 4, v53')
        e('s_cmp_lt_u32 s2, 160')
        e(f's_cselect_b32 s88, 0, {OOB}')
        e(f'v_mov_b32 v54, {OOB}')
        e(f'v_cmp_gt_u32 vcc, 60, {v(LANE)}')
        e('v_add_u32 v53, s88, v53')
        e('v_cndmask_b32 v53, v54, v53, vcc')
        e(f's_lshl_b32 s89, s{sC}, 2')
        e(f's_add_u32 s89, s89, s{sW}')
        e(f's_mul_i32 s89, s89, {8 * 3840}')
        e(f's_mul_i32 s90, s{sSET}, 160')
        e('s_add_u32 s89, s89, s90')
        e(f's_mul_i32 s90, s{sW}, 4160')
        e(f'v_and_b32 v55, 7, {v(LANE)}')
        e(f'v_lshrrev_b32 v56, 3, {v(LANE)}')
        e('v_mul_u32_u24 v63, 1280, v56')
        e('v_lshl_add_u32 v57, v55, 4, v63')
        e(f's_lshl_b32 s93, s{sSET}, 5')
        e(f's_add_u32 s93, s93, s{sC}')
        e('s_mul_i32 s94, s93, 10240')
        e(f's_lshl_b32 s95, s{sW}, 7')
        e('s_add_u32 s94, s94, s95')
        e(f's_cmp_lt_u32 s{sW}, 2')
        e(f's_cselect_b32 s95, 0, {OOB}')
        e('v_add_u32 v58, s95, v57')
        e(f'v_and_b32 v59, 19, {v(M32_)}')
        e(f'v_bfe_u32 v60, {v(M32_)}, 2, 1')
        e('v_lshl_add_u32 v59, v60, 3, v59')
        e(f'v_bfe_u32 v61, {v(M32_)}, 3, 1')
        e('v_lshl_add_u32 v59, v61, 2, v59')
        e('v_mul_u32_u24 v61, 40, v59')
        e('v_cmp_gt_u32 vcc, 20, v59')
        e(f's_lshl_b32 s{sSG}, s{sSET}, 2')
        e(f's_add_u32 s{sSW}, s{sSG}, s{sW}')
        e('v_cndmask_b32 v61, v54, v61, vcc')
        e(f'v_lshl_add_u32 v62, {v(G2)}, 30, v61')
        e(f'v_lshl_add_u32 v61, {v(G2)}, 4, v61')
        e(f's_mul_i32 s91, s{sSW}, 800')
        e('s_waitcnt lgkmcnt(0)')
        self.srd(S_WQKV, P_WQKV, 640 * 3840)
        AQ, AK, AV, AT0, AT1, AP, APT, XR = 64, 68, 72, 76, 78, 80, 84, 88
        for q in range(4):
            e('s_mov_b32 m0, s90')
            e('s_add_u32 s90, s90, 1040')
            e(f'buffer_load_dwordx4 v53, {s_(S_WQKV, 4)}, s89 offen {nt} lds #rq')
            e('s_add_u32 s89, s89, 7680')
        self.srd(S_WPHI, P_WPHI, 32 * 800)
        e(f'buffer_load_dwordx4 {v(AP, 4)}, v61, {s_(S_WPHI, 4)}, s91 offen')
        e(f'buffer_load_dwordx2 {v(APT, 2)}, v62, {s_(S_WPHI, 4)}, s91 offen offset:32')
        self.srd(S_X, P_X, 2048 * 1280)
        xs = s_(S_X, 4)
        e(f'buffer_load_dwordx4 {v(XR, 4)}, v57, {xs}, s94 offen {cfg.ntx}')
        e(f'buffer_load_dwordx4 {v(XR + 4, 4)}, v57, {xs}, s94 offen offset:512 {cfg.ntx}')
        e(f'buffer_load_dwordx4 {v(XR + 8, 4)}, v58, {xs}, s94 offen offset:1024 {cfg.ntx}')
        e(f's_add_u32 s46, s{P_WS}, {EPOCH}')
        e(f's_addc_u32 s47, s{P_WS + 1}, 0')
        e(f's_load_dword s{sTAG}, s[46:47], 0')
        self.srd(S_WS, P_WS, WS_USED)
        self.srd(S_OUT, P_OUT, 2048 * 1280)
        self.srd(S_B2, P_B2, 1280)
        self.srd(S_WO, P_WO, 640 * 1280)
        self.srd(S_W1, P_W1, 640 * 3072)
        self.srd(S_W2, P_W2, 1536 * 1280)
        self.srd(S_B1, P_B1, 3072)
        if cfg.stamps:
            e(f's_mov_b32 s{sSTAMP}, s98')
            self.stamp_names.append('start')
            self.nstamp = 1
        self.stamp('issued')
        e(f'v_and_b32 {v(M16_)}, 15, {v(LANE)}')
        e(f'v_lshrrev_b32 {v(G4)}, 4, {v(LANE)}')
        e(f'v_lshlrev_b32 {v(vL16)}, 4, {v(LANE)}')
        e(f's_lshr_b32 s{sGI}, s2, 6')
        e(f's_and_b32 s{sJ}, s{sC}, 7')
        e(f's_add_u32 s{sSG}, s{sSG}, s{sGI}')
        e(f's_lshr_b32 s{sKSS}, s{sJ}, 1')
        e(f's_mul_i32 s{sKSS}, s{sKSS}, 5')
        e(f's_and_b32 s{sPAR}, s{sJ}, 1')
        e(f's_mul_i32 s{sKSA}, s{sPAR}, 3')
        e(f's_add_u32 s{sKSA}, s{sKSA}, s{sKSS}')
        e(f's_add_u32 s{sKSS}, s{sKSS}, 2')
        e(f's_mov_b32 s{sLO}, 0x3f80')
        e(f's_mov_b32 s{sHI}, 0x3f800000')
        e('s_lshr_b32 s80, s93, 1')
        e('s_lshl_b32 s80, s80, 2')
        e(f's_add_u32 s80, s80, s{sW}')
        e('s_lshl_b32 s80, s80, 1')
        e(f's_add_u32 s80, s80, s{sPAR}')
        e('s_lshl_b32 s80, s80, 7')
        e(f's_add_u32 s80, s80, {self.act(0, ST_O)}')
        e(f's_mul_i32 s81, s{sSW}, 81920')
        e(f's_lshl_b32 s82, s{sC}, 12')
        e('s_add_u32 s81, s81, s82')
        e(f's_mul_i32 s82, s{sSW}, 5120')
        e(f's_lshl_b32 s83, s{sC}, 8')
        e('s_add_u32 s82, s82, s83')
        e(f's_add_u32 s82, s82, {CSQ}')
        e(f'v_add_u32 v100, s88, {v(vL16)}')
        e(f'v_lshl_add_u32 v101, {v(LANE)}, 2, s88')

        def second_stage_loads():
            def colblock(src, base, jstride, stage, vst, vrd, so, tag):
                e('s_mul_i32 s93, s93, 1280')
                e('s_mul_i32 s94, s94, 1280')
                e('s_lshl_b32 s95, s92, 8')
                e('s_add_u32 s93, s93, s95')
                e('s_add_u32 s94, s94, s95')
                e('s_sub_u32 s94, s94, 1024')
                e('v_mul_u32_u24 v52, 1280, v52')
                e(f'v_lshl_add_u32 v52, {v(M16_)}, 4, v52')
                e('v_add_u32 v52, s88, v52')
                e(f's_lshl_b32 s95, s{sW}, 11')
                e(f's_add_u32 m0, s95, {stage}')
                e('s_lshl_b32 s92, s92, 2')
                e(f'buffer_load_dwordx4 v52, {src}, s93 offen {nt} lds #{tag}')
                e(f'buffer_load_dwordx4 v52, {src}, s94 offen offset:1024 {nt} lds #{tag}')
                e(f's_add_u32 s92, s92, s{sW}')
                self.sdiv(89, 96, 92, 5)
                e('s_cmp_eq_u32 s96, 2')
                e('s_cselect_b32 s92, 3, 4')
                e('s_cselect_b32 s95, 32, 8')
                e(f's_mov_b32 s{so + 1}, {jstride}')
                e(f's_cselect_b32 s{so + 1}, s{so + 1}, 1024')
                e(f'v_lshl_add_u32 {v(vrd)}, v219, s92, v220')
                e(f'v_add_u32 {v(vrd + 1)}, s95, {v(vrd)}')
                e(f'v_add_u32 {v(vst)}, s88, {v(vL16)}')
                e('s_lshl_b32 s89, s89, 1')
                e('s_sub_u32 s92, s96, 3')
                e('s_cmp_gt_u32 s96, 2')
                e('s_cselect_b32 s92, s92, s96')
                e('s_addc_u32 s89, s89, 0')
                e(f's_mul_i32 s89, s89, {jstride}')
                e('s_lshl_b32 s92, s92, 11')
                e('s_add_u32 s89, s89, s92')
                e('s_mul_i32 s92, s91, 5120')
                e('s_add_u32 s89, s89, s92')
                e(f's_add_u32 s{so}, s89, {base}')
                e(f's_add_u32 s{so + 1}, s{so + 1}, s{so}')

            e(f'v_and_b32 v219, 3, {v(LANE)}')
            e(f'v_bfe_u32 v218, {v(LANE)}, 2, 2')
            e(f'v_lshl_add_u32 v218, {v(G4)}, 3, v218')
            e('v_lshlrev_b32 v220, 8, v218')
            e(f's_lshl_b32 s95, s{sW}, 6')
            e('v_add_u32 v220, s95, v220')
            e('s_sub_u32 s96, s2, 156')
            e(f's_cselect_b32 s88, {OOB}, 0')
            e('s_cselect_b32 s96, 0, s96')
            self.sdiv(91, 92, 96, 5)
            self.sdiv(89, 90, 91, 5)
            e('s_mul_i32 s93, s89, 160')
            e('s_mul_i32 s95, s90, 40')
            e('s_cmp_eq_u32 s90, 4')
            e('s_cselect_b32 s95, 8, s95')
            e('s_cselect_b32 s94, 20, 4')
            e('s_cselect_b32 s96, 40, 10')
            e('s_cselect_b32 s90, 8, 0')
            e(f's_mul_i32 s96, s96, s{sW}')
            e('s_add_u32 s93, s93, s95')
            e('s_add_u32 s93, s93, s96')
            e('s_add_u32 s94, s94, s93')
            e(f'v_mul_u32_u24 v52, s90, {v(G2)}')
            e(f'v_add_u32 v52, v52, {v(G4)}')
            colblock(s_(S_WO, 4), WOF, 102400, RO, 208, 212, 84, 'ro')
            e(f's_sub_u32 s91, s{sC}, 12')
            e(f's_cselect_b32 s88, {OOB}, 0')
            e('s_cselect_b32 s91, 0, s91')
            e('s_lshl_b32 s92, s91, 2')
            e(f's_add_u32 s92, s92, s{sW}')
            e(f's_mul_i32 s92, s92, {8 * 3072}')
            e(f's_mul_i32 s93, s{sSET}, 384')
            e('s_add_u32 s92, s92, s93')
            e(f's_mul_i32 s93, s{sW}, 3072')
            e(f's_add_u32 m0, s93, {R1}')
            for q in range(3):
                e(f'v_add_u32 v52, {64 * q}, {v(LANE)}')
                e('v_mul_u32_u24 v52, 171, v52')
                e('v_lshrrev_b32 v52, 12, v52')
                e(f'v_mul_u32_u24 v52, {3072 - 384}, v52')
                e(f'v_add3_u32 v52, v52, {v(vL16)}, s88')
                e(f'buffer_load_dwordx4 v52, {s_(S_W1, 4)}, s92 offen offset:{1024 * q} {nt} lds #rn')
            e('v_mul_u32_u24 v216, 384, v218')
            e(f's_mul_i32 s93, s{sW}, 96')
            e('v_add_u32 v216, s93, v216')
            e('v_lshl_add_u32 v217, v219, 3, v216')
            e('v_lshl_add_u32 v216, v219, 4, v216')
            e(f'v_add_u32 v210, s88, {v(vL16)}')
            e(f'v_lshl_add_u32 v211, {v(LANE)}, 2, s88')
            e(f's_mul_i32 s78, s{sSW}, 61440')
            e('s_mul_i32 s79, s91, 3072')
            e('s_add_u32 s78, s78, s79')
            e(f's_add_u32 s78, s78, {W1F}')
            e(f's_mul_i32 s79, s{sSW}, 5120')
            e('s_lshl_b32 s91, s91, 8')
            e('s_add_u32 s79, s79, s91')
            e(f's_add_u32 s79, s79, {CS1}')
            e('s_cmp_lt_u32 s2, 240')
            e(f's_cselect_b32 s88, 0, {OOB}')
            e('s_cselect_b32 s96, s2, 0')
            self.sdiv(91, 92, 96, 5)
            self.sdiv(89, 90, 91, 3)
            e('s_mul_i32 s93, s89, 96')
            e('s_mul_i32 s95, s90, 24')
            e('s_cmp_eq_u32 s90, 1')
            e('s_cselect_b32 s95, 32, s95')
            e('s_cselect_b32 s94, 32, 0')
            e('s_add_u32 s93, s93, s95')
            e(f's_lshr_b32 s95, s{sW}, 1')
            e('s_mul_i32 s94, s94, s95')
            e('s_add_u32 s93, s93, s94')
            e(f's_lshl_b32 s95, s{sW}, 3')
            e('s_add_u32 s93, s93, s95')
            e('s_add_u32 s94, s93, 4')
            e(f'v_mov_b32 v52, {v(G4)}')
            colblock(s_(S_W2, 4), W2F, 245760, R2, 209, 214, 86, 'rn')
            e(f'v_lshrrev_b32 v52, 2, {v(M16_)}')
            e('v_lshl_add_u32 v52, v52, 3, v219')
            e('v_lshlrev_b32 v52, 1, v52')
            e(f'v_lshlrev_b32 v221, 1, {v(M16_)}')
            e(f's_mul_i32 s89, s{sC}, 96')
            e(f'buffer_load_ushort {a_(aB1)}, v52, {s_(S_B1, 4)}, s89 offen')
            e(f'buffer_load_ushort {a_(aB1 + 1)}, v52, {s_(S_B1, 4)}, s89 offen offset:8')
            e(f'buffer_load_ushort {a_(aB1 + 2)}, v221, {s_(S_B1, 4)}, s89 offen offset:64')

        SEL, SELT, BV0, BV1, BT0, BT1, BP, ONES = 112, 116, 120, 124, 128, 130, 132, 136
        e(f'v_lshrrev_b32 v52, 3, {v(M32_)}')
        e(f'v_and_b32 v53, 3, {v(M32_)}')
        e('v_lshl_add_u32 v52, v52, 2, v53')
        e('v_mul_u32_u24 v60, 10, v60')
        e('v_add_u32 v60, v60, v52')
        e(f'v_and_b32 v53, 1, {v(M32_)}')
        e('v_lshlrev_b32 v53, 4, v53')
        e(f'v_lshlrev_b32 v53, v53, s{sLO}')
        e(f'v_lshlrev_b32 v61, 2, {v(G2)}')
        for (b4, b2, off, lo, hi, tg) in ((SEL, SELT, 0, 0, 10, 0), (BV0, BT0, 10, 10, 16, 1), (BV1, BT1, 4, 10, 14, 1)):
            e(f'v_subrev_u32 v57, {off}, v60')
            e('v_lshrrev_b32 v57, 1, v57')
            e(f'v_subrev_u32 v58, {lo}, v52')
            e(f'v_cmp_gt_u32 vcc, {hi - lo}, v58')
            e(f'v_cmp_eq_u32 s[46:47], {tg}, {v(G2)}')
            e('v_cndmask_b32 v57, 32, v57, vcc')
            e('v_sub_u32 v58, v57, v61')
            e('v_cndmask_b32 v57, 32, v57, s[46:47]')
            for h in range(2):
                for q in range(3 * h, 3 * h + 3):
                    e(f'v_cmp_eq_u32 s[{20 + 2 * (q % 3)}:{21 + 2 * (q % 3)}], {q if q < 4 else q + 4}, {"v58" if q < 4 else "v57"}')
                for q in range(3 * h, 3 * h + 3):
                    e(f'v_cndmask_b32 {v(b4 + q if q < 4 else b2 + q - 4)}, 0, v53, s[{20 + 2 * (q % 3)}:{21 + 2 * (q % 3)}]')
        for i in range(4):
            e(f'v_mov_b32 {v(ONES + i)}, 0x3f803f80')
        e('v_lshrrev_b32 v57, 1, v59')
        e('v_mul_u32_u24 v57, 1040, v57')
        e('v_and_b32 v58, 1, v59')
        e('v_mul_u32_u24 v58, 480, v58')
        e(f's_mul_i32 s89, s{sW}, 40')
        e('v_add3_u32 v57, v57, v58, s89')
        e(f'v_mul_u32_u24 v58, 160, {v(G2)}')
        e('v_add_u32 v59, v57, v58')
        e('v_add_u32 v58, v59, v58')
        e(f'v_lshl_add_u32 v57, {v(G2)}, 4, v57')
        e('v_and_b32 v61, 3, v55')
        e('v_lshlrev_b32 v60, 7, v61')
        e('v_lshl_add_u32 v60, v56, 4, v60')
        e(f's_lshl_b32 s89, s{sW}, 2')
        e(f's_add_u32 s89, s89, {RS}')
        e('v_add_u32 v60, s89, v60')
        e('v_cmp_eq_u32 s[20:21], 0, v61')
        e('v_cmp_eq_u32 s[22:23], 2, v61')
        e(f'v_lshlrev_b32 v102, 2, {v(M32_)}')
        e(f's_lshl_b32 s89, s{sW}, 7')
        e(f's_add_u32 s89, s89, {RS}')
        e('v_add_u32 v103, s89, v102')
        e(f'v_lshl_add_u32 v102, {v(G2)}, 30, v102')
        e('v_lshrrev_b32 v61, 1, v56')
        e('v_xor_b32 v61, v61, v55')
        for i in range(4):
            if i:
                e('v_xor_b32 v61, 4, v61')
            e(f'v_lshl_add_u32 {v(vXG + i)}, v61, 4, v63')
            if i:
                e(f'v_add_u32 {v(vXG + i)}, {9216 * i}, {v(vXG + i)}')
        e(f's_mul_i32 s{sXG}, s{sSW}, {64 * 1280}')
        e(f's_lshl_b32 s{sXL}, s{sW}, 12')
        e(f's_add_u32 s{sXL}, s{sXL}, {XB}')
        e(f'v_bfe_u32 v61, {v(M32_)}, 1, 3')
        e(f'v_xor_b32 v61, v61, {v(G2)}')
        e(f'v_lshl_add_u32 v63, {v(M32_)}, 7, s{sXL}')
        for q in range(4):
            e(f'v_xor_b32 v62, {2 * q}, v61')
            e(f'v_lshl_add_u32 {v(vXL + q)}, v62, 4, v63')
            e(f'v_add_u32 {v(vXL + 4 + q)}, 0x10000, {v(vXL + q)}')
        second_stage_loads()
        e('v_mov_b32 v62, 0')
        e('v_mov_b32 v63, 0')
        D0, D1, FR = 144, 160, 176
        e(f'{M32} {v(D0, 16)}, {v(AP, 4)}, {v(SEL, 4)}, 0')
        e(f'{M32H} {v(D0, 16)}, {v(APT, 2)}, {v(SELT, 2)}, {v(D0, 16)}')
        e('s_barrier')
        self.stamp('landed')
        e(f'ds_read2_b64 {v(AV, 4)}, v57 offset0:40 offset1:41')
        e(f'ds_read2_b64 {v(AK, 4)}, v57 offset0:20 offset1:21')
        e(f'ds_read2_b64 {v(AQ, 4)}, v57 offset0:0 offset1:1')
        e(f'ds_read_b64 {v(AT0, 2)}, v59 offset:192')
        e(f'ds_read_b64 {v(AT1, 2)}, v58 offset:32')
        for q in range(4):
            e(f'v_cvt_pk_bf16_f32 {v(BP + q)}, {v(D0 + 2 * q)}, {v(D0 + 2 * q + 1)}')
        for q in range(2):
            e(f'v_cvt_pk_bf16_f32 v61, {v(D0 + 8 + 2 * q)}, {v(D0 + 9 + 2 * q)}')
            e(f'v_or_b32 {v(BT0 + q)}, {v(BT0 + q)}, v61')
            e(f'v_or_b32 {v(BT1 + q)}, {v(BT1 + q)}, v61')
        e(f'{M32} {v(D0, 16)}, {v(AV, 4)}, {v(BV0, 4)}, 0')
        e(f'{M32} {v(D1, 16)}, {v(AV, 4)}, {v(BV1, 4)}, 0')
        e(f'{M32} {v(D0, 16)}, {v(AK, 4)}, {v(BP, 4)}, {v(D0, 16)}')
        e(f'{M32} {v(D1, 16)}, {v(AQ, 4)}, {v(BP, 4)}, {v(D1, 16)}')
        e(f'{M32H} {v(D0, 16)}, {v(AT0, 2)}, {v(BT0, 2)}, {v(D0, 16)}')
        e(f'{M32H} {v(D1, 16)}, {v(AT1, 2)}, {v(BT1, 2)}, {v(D1, 16)}')
        for T, D in ((0, D0), (1, D1)):
            for half in range(2):
                f = FR + 8 * T + 4 * half
                for q in range(4):
                    e(f'v_cvt_pk_bf16_f32 {v(f + q)}, {v(D + 8 * half + 2 * q)}, {v(D + 8 * half + 2 * q + 1)}')
                e(f'buffer_store_dwordx4 {v(f, 4)}, v100, {WS}, s81 offen offset:{2048 * half + 1024 * T} sc1 #c')
            e(f'{M32} {v(D, 16)}, {v(ONES, 4)}, {v(FR + 8 * T, 4)}, 0')
            e(f'{M32} {v(D, 16)}, {v(ONES, 4)}, {v(FR + 8 * T + 4, 4)}, {v(D, 16)}')
        for q in range(12):
            e(f'v_dot2c_f32_bf16 v62, {v(ONES)}, {v(XR + q)}')
            e(f'v_dot2c_f32_bf16 v63, {v(XR + q)}, {v(XR + q)}')
        e(f'v_cmp_eq_u32 vcc, 1, {v(G2)}')
        e(f'v_cndmask_b32 v55, {v(D0)}, {v(D1)}, vcc')
        e(f'buffer_store_dword v55, v101, {WS}, s82 offen sc1 #c')
        for ctl in ('quad_perm:[1,0,3,2]', 'quad_perm:[2,3,0,1]', 'row_half_mirror'):
            e(f'v_add_f32_dpp v62, v62, v62 {ctl} row_mask:0xf bank_mask:0xf')
            e(f'v_add_f32_dpp v63, v63, v63 {ctl} row_mask:0xf bank_mask:0xf')
        e('v_cndmask_b32 v62, 0, v62, s[20:21]')
        e('v_cndmask_b32 v62, v62, v63, s[22:23]')
        e('ds_write_b32 v60, v62')
        e('@wait ro')
        e('s_waitcnt lgkmcnt(0)')
        e('s_barrier')
        e('ds_read_b32 v62, v103')
        for n in range(2):
            for T in range(2):
                e(f'ds_read_b64_tr_b16 {v(64 + 4 * n + 2 * T, 2)}, {v(212 + n)} offset:{RO + 1024 * T}')
        e(f'buffer_store_dword v62, v102, {WS}, s80 offen sc1 #c')
        for n in range(2):
            e(f'buffer_store_dwordx4 {v(64 + 4 * n, 4)}, v208, {WS}, s{84 + n} offen sc1 #c')
        self.stamp('stored')
        units = cfg.xpre
        for u in range(units[0]):
            for x in self.x_dma(u):
                e(x)

        e('s_getreg_b32 s97, hwreg(HW_REG_XCC_ID, 0, 4)')
        e(f's_add_u32 s{sVAL}, s{sTAG}, {SEQ_G1}')
        e(f'v_mov_b32 v56, s{sVAL}')
        e('v_mov_b32 v57, s97')
        e(f'v_mov_b32 v58, s{sVAL}')
        e('v_mov_b32 v59, s97')
        e('s_lshl_b32 s89, s2, 7')
        e(f's_add_u32 s89, s89, {G1}')
        e(f's_cmp_eq_u32 s{sW}, 0')
        e(f's_cselect_b32 s90, 0, {OOB}')
        e(f'v_add_u32 v55, s90, {v(vL16)}')
        e('@wait c')
        e('s_barrier')
        e('s_mov_b64 exec, 0xff')
        e(f'buffer_store_dwordx4 v[56:59], v55, {WS}, s89 offen sc1')
        e('s_mov_b64 exec, -1')
        self.stamp('g1set')

        def constants():
            e = self.e
            e(f'v_add_u32 {v(vB2)}, 0x10000, {v(vL16)}')
            e(f'v_add_u32 {v(vB3)}, 0x20000, {v(vL16)}')
            e(f'v_lshlrev_b32 {v(vXF)}, 9, {v(G4)}')
            e(f'v_lshl_add_u32 {v(vXF)}, {v(M16_)}, 4, {v(vXF)}')
            e(f'v_and_b32 v52, 1, {v(G4)}')
            e(f'v_lshlrev_b32 v60, 4, {v(M16_)}')
            e('v_lshl_add_u32 v61, v52, 30, v60')
            e(f'v_lshl_add_u32 {v(vXS1)}, {v(G2)}, 8, v61')
            e(f'v_lshl_add_u32 {v(vXS2)}, {v(G2)}, 9, v61')
            e(f'v_mul_u32_u24 {v(vOM)}, 20480, v52')
            e(f'v_add_u32 {v(vOM)}, {v(vOM)}, v60')
            e(f'v_lshl_add_u32 {v(vOM)}, {v(G2)}, 8, {v(vOM)}')
            e(f'v_mul_u32_u24 {v(vOR)}, 20480, {v(G4)}')
            e(f'v_add_u32 {v(vOR)}, {v(vOR)}, v60')
            e(f'v_subrev_u32 v60, 8, {v(M32_)}')
            e(f'v_cmp_lt_u32 vcc, 27, {v(M32_)}')
            e('v_subb_co_u32 v60, vcc, v60, 0, vcc')
            e('v_cmp_gt_u32 vcc, 22, v60')
            e(f'v_mul_u32_u24 v62, 22, {v(G2)}')
            e('v_cndmask_b32 v61, 0, v60, vcc')
            e(f'v_add_lshl_u32 {v(vKVL)}, v61, v62, 4')
            e(f'v_cmp_ne_u32 s[20:21], 27, {v(M32_)}')
            e('s_and_b64 vcc, vcc, s[20:21]')
            e(f'v_cndmask_b32 {v(vKVS)}, v54, {v(vKVL)}, vcc')
            e(f'v_bfe_u32 v61, {v(M32_)}, 2, 1')
            e(f'v_cmp_eq_u32 vcc, v61, {v(G2)}')
            e(f'v_bfe_u32 v62, {v(M32_)}, 1, 1')
            e(f'v_lshrrev_b32 v60, 3, {v(M32_)}')
            e('v_cndmask_b32 v61, 0, v53, vcc')
            e('v_lshl_add_u32 v62, v60, 1, v62')
            for h in range(2):
                for q in range(4):
                    e(f'v_cmp_eq_u32 s[{20 + 2 * q}:{21 + 2 * q}], {4 * h + q}, v62')
                for q in range(4):
                    e(f'v_cndmask_b32 {v(PA + 4 * h + q)}, 0, v61, s[{20 + 2 * q}:{21 + 2 * q}]')
            e(f's_lshr_b32 s91, s{sC}, 2')
            e(f's_lshl_b32 s92, s{sW}, 3')
            e('s_add_u32 s92, s92, s91')
            e(f'v_min_u32 v52, 4, {v(M16_)}')
            e('v_lshl_add_u32 v53, v52, 5, s92')
            e(f's_sub_u32 s93, s{sKSA}, s{sPAR}')
            e(f'v_and_b32 v60, 1, {v(LANE)}')
            e('v_lshl_add_u32 v60, v60, 1, s93')
            e('v_lshrrev_b32 v60, 2, v60')
            e(f'v_lshrrev_b32 v61, 1, {v(M16_)}')
            e('v_min_u32 v61, 4, v61')
            e(f's_mul_i32 s93, s{sW}, 25')
            e('s_add_u32 s93, s93, 156')
            e('v_mul_u32_u24 v61, 5, v61')
            e('v_add3_u32 v61, v61, v60, s93')
            e(f'v_cmp_eq_u32 vcc, 3, {v(G4)}')
            e(f'v_cmp_eq_u32 s[20:21], 1, {v(G2)}')
            e(f'v_lshl_add_u32 v62, {v(M32_)}, 3, s{sSET}')
            e('v_cndmask_b32 v53, v53, v61, vcc')
            e('v_cndmask_b32 v53, v62, v53, s[20:21]')
            e(f'v_lshlrev_b32 {v(vT2)}, 7, v53')
            e(f's_mul_i32 s92, s{sW}, 40')
            e('s_add_u32 s92, s92, s91')
            e('s_add_u32 s92, s92, 96')
            e('v_lshl_add_u32 v52, v52, 3, s92')
            e(f'v_lshrrev_b32 v61, 1, {v(M32_)}')
            e('v_min_u32 v61, 11, v61')
            e(f's_mul_i32 s93, s{sW}, 60')
            e('v_mul_u32_u24 v61, 5, v61')
            e('v_add3_u32 v61, v61, v60, s93')
            e('v_cndmask_b32 v52, v52, v61, s[20:21]')
            e(f'v_lshlrev_b32 {v(vG2)}, 7, v52')

        def second_stage():
            e = self.e
            jobs = [(216, R1, 1536, 210, 78, 0), (216, R1 + 8, 1536, 210, 78, 1024), (217, R1 + 64, 1536, 210, 78, 2048),
                    (214, R2, 1024, 209, 86, 0), (215, R2, 1024, 209, 87, 0)]
            for n, (vrd, stage, step, _, _, _) in enumerate(jobs):
                for T in range(2):
                    e(f'ds_read_b64_tr_b16 {v(NCF + 4 * n + 2 * T, 2)}, {v(vrd)} offset:{stage + step * T}')
            self.nc_stores = []
            for n, (_, _, _, vst, so, off) in enumerate(jobs):
                self.nc_stores.append(f'buffer_store_dwordx4 {v(NCF + 4 * n, 4)}, {v(vst)}, {WS}, s{so} offen offset:{off} sc1 #nc')
                if n < 3:
                    e(f'{M16} {v(144 + 4 * n, 4)}, {v(ONES, 4)}, {v(NCF + 4 * n, 4)}, 0')
            e(f'v_cmp_eq_u32 vcc, 1, {v(G4)}')
            e(f'v_cmp_eq_u32 s[20:21], 2, {v(G4)}')
            e('s_waitcnt lgkmcnt(0)')
            e('s_barrier')
            e('v_cndmask_b32 v204, v144, v148, vcc')
            e('v_cndmask_b32 v204, v204, v152, s[20:21]')
            self.nc_stores.append(f'buffer_store_dword v204, v211, {WS}, s79 offen sc1 #nc')

        assert units[1] - units[0] <= 7 and units[1] <= 14
        second_stage()
        for u in range(units[0]):
            for x in self.x_read(u):
                e(x)
        e('s_waitcnt lgkmcnt(0)')
        for u in range(units[0], units[1]):
            for x in self.x_dma(u):
                e(x)
        constants()
        self.stamp('pre_done')
        e(f's_mov_b32 s89, {G1}')
        self.spin(f'buffer_load_dwordx2 {v(vT0, 2)}, {v(vT2)}, {WS}, s89 offen sc1',
                  f'v_cmp_ne_u32 vcc, s{sVAL}, {v(vT0)}')
        e(f'v_cmp_ne_u32 vcc, s97, {v(vT1)}')
        e('s_waitcnt lgkmcnt(0)')
        e('s_cmp_lg_u32 vcc_lo, 0')
        if cfg.both:
            e('s_cbranch_scc1 Lslow')
        self.stamp('g1got')

    def softmax(self, a, sp, dst, pk):
        e = self.e
        t0, t1, t2, t3 = vT0, vT1, vT2, vT3
        e(f'v_max3_f32 {v(t0)}, {v(a)}, {v(a + 1)}, {v(a + 2)}')
        e(f'v_max3_f32 {v(t1)}, -{v(a)}, -{v(a + 1)}, -{v(a + 2)}')
        for i in (3, 5, 7):
            e(f'v_max3_f32 {v(t0)}, {v(t0)}, {v(a + i)}, {v(a + i + 1)}')
            e(f'v_max3_f32 {v(t1)}, {v(t1)}, -{v(a + i)}, -{v(a + i + 1)}')
        e(f'v_max_f32 {v(t0)}, {v(t0)}, {v(a + 9)}')
        e(f'v_max_f32 {v(t1)}, {v(t1)}, -{v(a + 9)}')
        e(f'v_permlane32_swap_b32 {v(t0)}, {v(t1)}')
        e(f'v_max_f32 {v(t0)}, {v(t0)}, {v(t1)}')
        e(f'v_mul_f32 {v(t1)}, {v(t0)}, {v(sp + 1)}')
        e(f'v_mul_f32 {v(t0)}, {v(t0)}, {v(sp + 1)}')
        e(f'v_permlane32_swap_b32 {v(t0)}, {v(t1)}')
        for i in range(10):
            if pk:
                sel = (a + i) & 1
                e(f'v_pk_fma_f32 {v(E + 2 * i, 2)}, {v((a + i) & ~1, 2)}, {v(sp, 2)}, {v(t0, 2)} '
                  f'op_sel:[{sel},0,0] op_sel_hi:[{sel},1,1]')
            else:
                for h in range(2):
                    e(f'v_fma_f32 {v(E + 2 * i + h)}, {v(a + i)}, {v(sp + h)}, {v(t0 + h)}')
        for i in range(20):
            e(f'v_exp_f32 {v(E + i)}, {v(E + i)}')
        if pk:
            e(f'v_pk_add_f32 {v(t2, 2)}, {v(E, 2)}, {v(E + 2, 2)}')
            for i in range(2, 10):
                e(f'v_pk_add_f32 {v(t2, 2)}, {v(t2, 2)}, {v(E + 2 * i, 2)}')
        else:
            for i in range(1, 10):
                for h in range(2):
                    e(f'v_add_f32 {v(t2 + h)}, {v(t2 + h if i > 1 else E + h)}, {v(E + 2 * i + h)}')
        e(f'v_permlane32_swap_b32 {v(t2)}, {v(t3)}')
        e(f'v_add_f32 {v(t2)}, {v(t2)}, {v(t3)}')
        e(f'v_rcp_f32 {v(t2)}, {v(t2)}')
        e(f'v_mov_b32 {v(t3)}, {v(t2)}')
        e(f'v_permlane32_swap_b32 {v(t2)}, {v(t3)}')
        for i in range(10):
            if pk:
                e(f'v_pk_mul_f32 {v(E + 2 * i, 2)}, {v(E + 2 * i, 2)}, {v(t2, 2)}')
            else:
                for h in range(2):
                    e(f'v_mul_f32 {v(E + 2 * i + h)}, {v(E + 2 * i + h)}, {v(t2 + h)}')
            e(f'v_cvt_pk_bf16_f32 {v(dst + i)}, {v(E + 2 * i)}, {v(E + 2 * i + 1)}')

    def kpart(self, mt, pk):
        e = self.e
        a0, a1, st, KV2 = (A00, A01)[mt], (A10, A11)[mt], STT + 4 * mt, A00
        e(f'{M32H} {v(a0, 16)}, {a_(aCQ, 2)}, {v(CB + 2 * mt, 2)}, {v(a0, 16)}')
        e(f'{M32H} {v(a1, 16)}, {a_(aCQ + 2, 2)}, {v(CB + 2 * mt, 2)}, {v(a1, 16)}')
        e(f'v_mov_b32 {v(D16 + 15)}, s{sLO}')
        self.softmax(a0, st, D16, pk)
        X, Y = E, a0
        e(f'{M32} {v(X, 16)}, {v(D16, 4)}, {v(PA, 4)}, 0')
        e(f'{M32} {v(X, 16)}, {v(D16 + 4, 4)}, {v(PB, 4)}, {v(X, 16)}')
        for i, src in enumerate((a0 + 10, a0 + 12, a0 + 14, a1 + 10, a1 + 12)):
            for h in range(2):
                e(f'v_mul_f32 {v(src + h)}, {v(src + h)}, {v(st + 2)}')
            e(f'v_cvt_pk_bf16_f32 {v(D16 + 10 + i)}, {v(src)}, {v(src + 1)}')
        e(f'{M32} {v(Y, 16)}, {v(D16 + 8, 4)}, {v(PA, 4)}, 0')
        e(f'{M32} {v(Y, 16)}, {v(D16 + 12, 4)}, {v(PB, 4)}, {v(Y, 16)}')
        for q in range(8):
            e(f'v_cvt_pk_bf16_f32 {v(D16 + q)}, {v(X + 2 * q)}, {v(X + 2 * q + 1)}')
        for q in range(8):
            e(f'v_cvt_pk_bf16_f32 {v(D16 + 8 + q)}, {v(Y + 2 * q)}, {v(Y + 2 * q + 1)}')
        for h in range(2):
            c = v(KV1, 16) if mt or h else '0'
            e(f'{M32} {v(KV1, 16)}, {v(D16 + 4 * h, 4)}, {v(D16 + 8 + 4 * h, 4)}, {c}')
        for h in range(2):
            c = v(KV2, 16) if mt or h else '0'
            e(f'{M32} {v(KV2, 16)}, {v(D16 + 8 + 4 * h, 4)}, {v(D16 + 8 + 4 * h, 4)}, {c}')

    def w2_loads(self, n):
        out = []
        for i in range(self.w2n, min(60, self.w2n + n)):
            t = f'buffer_load_dwordx4 {a_(4 * i, 4)}, {v(vL16)}, {WS}, s47 offen offset:{(i % 4) * 1024} sc1'
            if i % 4 == 3:
                t += '\ns_add_u32 s47, s47, 4096'
            out.append(t)
        self.w2n += len(out)
        return out

    def p1(self, L):
        e, cfg = self.e, self.cfg
        acc = ((A00, A01), (A10, A11))
        areg = lambda n: 176 + (n % 12) * 4
        wreg = lambda n: 224 + (n % 8) * 4
        e(f's_mul_i32 s16, s{sSW}, 81920')
        e(f's_add_u32 s16, s16, {self.act(L, XF_O)}')
        e(f's_lshl_b32 s17, s{sSW}, 12')
        e(f's_add_u32 s17, s17, {self.act(L, ST_O)}')

        def late_addresses():
            e = self.e
            e(f's_mul_i32 s18, s{sJ}, 102400')
            e(f's_mul_i32 s19, s{sW}, 25600')
            e('s_add_u32 s18, s18, s19')
            e(f's_add_u32 s18, s18, {WOF}')
            e(f's_mul_i32 s20, s{sSW}, {self.ostride()}')
            e(f's_add_u32 s20, s20, {self.act(L, OF_O)}')
            e(f's_mul_i32 s21, s{sGI}, 5120')
            e('s_add_u32 s20, s20, s21')
            e(f's_lshr_b32 s22, s{sJ}, 1')
            e('s_lshl_b32 s22, s22, 5')
            e(f's_add_u32 s22, s22, s{sPAR}')
            e('s_lshl_b32 s22, s22, 3')
            e('s_add_u32 s22, s22, s20')
            e('s_add_u32 s22, s22, 4096')
            e(f's_lshl_b32 s21, s{sJ}, 9')
            e('s_add_u32 s20, s20, s21')
            e('s_add_u32 s21, s20, 40960')
            self.flag_line(23, 1, sSW)
            e(f's_lshl_b32 s24, s{sC}, 2')
            e('s_add_u32 s23, s23, s24')
            e(f's_add_u32 s24, s24, s{sW}')
            e(f's_mul_i32 s24, s24, {8 * KVS}')
            e(f's_add_u32 s24, s24, {KVP + L * 0x100000}')
            for x in range(1, 8):
                e(f's_xor_b32 s{24 + x}, s{sSET}, {x}')
                e(f's_mul_i32 s{24 + x}, s{24 + x}, {KVS}')
                e(f's_add_u32 s{24 + x}, s{24 + x}, s24')
            e(f's_mul_i32 s32, s{sSET}, {KVS}')
            e('s_add_u32 s24, s24, s32')

        def load_a(n):
            t = f'buffer_load_dwordx4 {v(areg(n), 4)}, {v(vL16)}, {WS}, s16 offen offset:{(n % 4) * 1024} sc1'
            return t + ('\ns_add_u32 s16, s16, 4096' if n % 4 == 3 else '')

        def load_w(n):
            b, off = lds((n % 80) * 1024)
            return f'ds_read_b128 {v(wreg(n), 4)}, {v(b)} offset:{off}'

        stat_ld = [f'buffer_load_dwordx4 {v(KV1 + 4 * q, 4)}, {v(vSTL)}, {WS}, s17 offen offset:{1024 * q} sc1' for q in range(4)]

        def stats():
            for mt in range(2):
                b, st = KV1 + 8 * mt, STT + 4 * mt
                self.pair_stats(b, b + 4)
                self.hi_lo(CB + 2 * mt, b, b + 3)
                self.e(f'v_mov_b32 {v(st + 2)}, {v(b + 2)}')
                self.e(f'v_mul_f32 {v(st)}, {hex(LOG2E)}, {v(b + 2)}')
                self.e(f'v_mul_f32 {v(st + 1)}, {hex(LOG2E | 0x80000000)}, {v(b + 2)}')

        mf, after = [], {}
        DW = 5

        def load_wo(i):
            r = WO_E + 4 * i if i < 20 else WO_L + 4 * (i - 20)
            t = f'buffer_load_dwordx4 {v(r, 4)}, {v(vL16)}, {WS}, s18 offen offset:{(i % 4) * 1024} sc1'
            return t + ('\ns_add_u32 s18, s18, 4096' if i % 4 == 3 else '')

        if L == 0:
            for ks in range(40):
                for T in range(2):
                    for mt in range(2):
                        c = v(acc[T][mt], 16) if ks else '0'
                        mf.append(f'{M32} {v(acc[T][mt], 16)}, {v(wreg(2 * ks + T), 4)}, {a_(self.x_reg(ks, mt), 4)}, {c}')
            e(f's_mul_i32 s33, s{sC}, 81920')
            e(f's_lshl_b32 s34, s{sW}, 12')
            e('s_add_u32 s33, s33, s34')

            def wq(g):
                t = f's_mov_b32 m0, s34\nbuffer_load_dwordx4 {v(vL16)}, {WS}, s33 offen offset:{(g % 4) * 1024} sc1 lds #wq{g // 4}'
                return t + ('\ns_add_u32 s33, s33, 16384\ns_add_u32 s34, s34, 16384' if g % 4 == 3 else '')
            lead, u0 = cfg.wlead, cfg.xpre[1]
            for g in range(lead):
                e(wq(g))
            for u in range(cfg.xpre[0], u0):
                for x in self.x_read(u, False):
                    e(x)
            late_addresses()
            e('s_waitcnt lgkmcnt(0)')
            for x in self.x_dma(u0):
                e(x)
            e('@wait wq0')
            e('s_barrier')
            for n in range(DW):
                e(load_w(n))
            for ch in range(1, 5):
                spread(after, [f'@wait wq{ch}\ns_barrier'], 32 * ch - 2 * DW)
            spread(after, [wq(g) for g in range(lead, 20)], 0, 8)
            step = cfg.xstep
            for u in range(u0, 20):
                at = (u - u0) * step
                if u + 1 < 20:
                    items = self.x_dma(u + 1)
                    if u - 2 >= u0:
                        items[0] = self.x_done(u - 2) + '\n' + items[0]
                    spread(after, items, at + 1, 2)
                rd = at + step + 1
                assert rd + 4 < 16 * (u // 2), (u, rd)
                assert u < 14 or rd > 16 * (u // 2) - 105
                spread(after, self.x_read(u), rd, 1)
            spread(after, [load_w(n) for n in range(DW, 80)], 0, 2)
            spread(after, [self.colsum_dma(CSQ, 35, SP, 'csq')], 30)
            spread(after, ['@wait csq'], 32 * 3 - 2 * DW - 1)
            spread(after, stat_ld, 60, 4)

            def cs():
                self.colsum(E, SP + 1)
                self.e(f'v_cmp_gt_u32 vcc, 512, {v(vL16)}')
                self.e(f'v_cndmask_b32 {v(E + 1)}, 0, {v(E)}, vcc')
                self.e(f'v_cndmask_b32 {v(E + 2)}, {v(E)}, 0, vcc')
                for q in range(4):
                    self.e(f'v_accvgpr_write_b32 {a_(aCQ + q)}, {v(E + 1 + q // 2)}')
            fill(after, self.capture(cs), 88, 116)
            fill(after, self.capture(stats), 120, 150)
            spread(after, self.nc_stores, cfg.nc_at, 1)
            spread(after, [f'v_mov_b32 {v(SP + 3)}, {v(vG2)}'], cfg.nc_at + 8)
            spread(after, ['s_barrier'], 159)
            if L == cfg.fine:
                for g in (0, 23, 55, 87, 119, 140):
                    spread(after, self.capture(lambda: self.stamp(f'p1_{L}_g{g}')), g, 0)
            self.weave(mf, after)
            self.stamp(f'p1_{L}_gemm')
            e(f's_mul_i32 s37, s{sC}, 61440')
            e(f's_mul_i32 s38, s{sW}, 15360')
            e('s_add_u32 s37, s37, s38')
            e(f's_add_u32 s37, s37, {W1F}')
            e(f's_add_u32 s38, s38, {LDS_W1}')
            self.w1q = []
            for i in range(15):
                t = f's_mov_b32 m0, s38\nbuffer_load_dwordx4 {v(vL16)}, {WS}, s37 offen offset:{(i % 4) * 1024} sc1 lds'
                self.w1q.append(t + ('\ns_add_u32 s37, s37, 4096\ns_add_u32 s38, s38, 4096' if i % 4 == 3 else ''))
            self.kpart(0, True)
            e(f's_add_u32 s{sVAL}, s{sTAG}, {SEQ_G2}')
            for q in range(4):
                e(f'v_mov_b32 {v(vT0 + q)}, s{sVAL}')
            e('s_lshl_b32 s39, s2, 7')
            e(f's_add_u32 s39, s39, {G2}')
            e(f's_cmp_eq_u32 s{sW}, 0')
            e(f's_cselect_b32 s36, 0, {OOB}')
            e(f'v_add_u32 {v(SP + 2)}, s36, {v(vL16)}')
            e('@wait nc')
            e('s_barrier')
            e('s_mov_b64 exec, 0xff')
            e(f'buffer_store_dwordx4 {v(vT0, 4)}, {v(SP + 2)}, {WS}, s39 offen sc1')
            e('s_mov_b64 exec, -1')
            body = self.capture(lambda: self.kpart(1, True))
            extra = [f'buffer_load_dwordx2 {v(SP, 2)}, {v(vOM)}, {WS}, s20 offen sc1 {cfg.ntt}',
                     f'buffer_load_dwordx2 {v(SP, 2)}, {v(vOM)}, {WS}, s21 offen sc1 {cfg.ntt}',
                     f'buffer_load_dwordx2 {v(SP, 2)}, {v(vOR)}, {WS}, s22 offen sc1 {cfg.ntt}']
            extra += [load_wo(i) for i in range(cfg.wo0)]
            wo_next = cfg.wo0
        else:
            for n in range(80):
                for T in range(2):
                    c = v(acc[T][n // 40], 16) if n % 40 else '0'
                    pre = f'@need {v(wreg(2 * n), 4)} {v(wreg(2 * n + 1), 4)} {v(areg(n), 4)}\n' if T == 0 else ''
                    mf.append(f'{pre}{M32} {v(acc[T][n // 40], 16)}, {v(wreg(2 * n + T), 4)}, {v(areg(n), 4)}, {c}')
            e(f'v_lshrrev_b32 {v(vT1)}, 2, {v(vL16)}')
            e(f'v_and_b32 {v(vT1)}, 124, {v(vT1)}')
            for n in range(DW):
                e(load_w(n))
            self.flag_line(33, 0, sSW)
            self.poll(33, vT1, 4 * L + F_X)
            self.stamp(f'p1_{L}_go')
            for n in range(cfg.d1):
                e(load_a(n))
            spread(after, [load_a(n) for n in range(cfg.d1, 80)], 0, 2)
            spread(after, stat_ld, 9, 6)
            fill(after, self.capture(stats), 50, 78)
            fill(after, self.capture(late_addresses), 2, 48)
            spread(after, [load_w(n) for n in range(DW, 160)], 0, 1)
            fill(after, self.capture(lambda: self.kpart(0, False)), 83, 158)
            if L == cfg.fine:
                for g in (0, 12, 28, 44, 60, 79, 100, 120, 140):
                    spread(after, self.capture(lambda: self.stamp(f'p1_{L}_g{g}')), g, 0)
            self.weave(mf, after)
            self.stamp(f'p1_{L}_gemm')
            body = self.capture(lambda: self.kpart(1, True))
            extra = [load_wo(i) for i in range(12)]
            wo_next = 12
        after = {}
        fill(after, extra, 1, len(body) - 8)
        self.weave(body, after)

        KV2 = A00
        e(f's_mul_i32 s33, s{sW}, 5120')
        e(f'v_add_u32 {v(vT0)}, s33, {v(vB3)}')
        e(f's_lshl_b32 s33, s{sW}, 10')
        e(f'v_add_u32 {v(vT1)}, s33, {v(vB3)}')
        e(f's_lshl_b32 s33, s{sW}, 2')
        e(f'v_add_u32 {v(vT2)}, s33, {v(vB3)}')
        e(f's_add_u32 s{sVAL}, s{sTAG}, {SEQ_KV + L}')
        e(f'v_mov_b32 {v(D16 + 3)}, s{sVAL}')
        for q in range(4):
            e(f'ds_write_b128 {v(vT0)}, {v(KV1 + 4 * q, 4)} offset:{EXO + 1024 * q}')
        e(f'ds_write_b128 {v(vT0)}, {v(KV2, 4)} offset:{EXO + 4096}')
        e('s_waitcnt lgkmcnt(0)')
        e('s_barrier')
        for src in range(4):
            e(f'ds_read_b128 {v(E + 4 * src, 4)}, {v(vT1)} offset:{EXO + 5120 * src}')
            e(f'ds_read_b32 {v(E + 16 + src)}, {v(vT2)} offset:{EXO + 5120 * src + 4096}')
        for h in range(2):
            e(f'v_pk_add_f32 {v(E + 2 * h, 2)}, {v(E + 2 * h, 2)}, {v(E + 4 + 2 * h, 2)}')
        for h in range(2):
            e(f'v_pk_add_f32 {v(E + 8 + 2 * h, 2)}, {v(E + 8 + 2 * h, 2)}, {v(E + 12 + 2 * h, 2)}')
        e(f'v_pk_add_f32 {v(E + 16, 2)}, {v(E + 16, 2)}, {v(E + 18, 2)}')
        for h in range(2):
            e(f'v_pk_add_f32 {v(E + 2 * h, 2)}, {v(E + 2 * h, 2)}, {v(E + 8 + 2 * h, 2)}')
        e(f'v_add_f32 {v(E + 16)}, {v(E + 16)}, {v(E + 17)}')
        e(f'v_cvt_pk_bf16_f32 {v(D16)}, {v(E)}, {v(E + 1)}')
        e(f'v_cvt_pk_bf16_f32 {v(D16 + 1)}, {v(E + 2)}, {v(E + 3)}')
        e(f'v_cvt_pk_bf16_f32 {v(D16 + 2)}, {v(E + 16)}, 0')
        e(f'buffer_store_dwordx4 {v(D16, 4)}, {v(vKVS)}, {WS}, s24 offen sc1')
        e('s_barrier')
        self.stamp(f'p1_{L}_kvpub')
        body = self.capture(lambda: [self.softmax(acc[1][mt], STT + 4 * mt, acc[0][mt], True) for mt in range(2)])
        extra = [load_wo(i) for i in range(wo_next, 25)]
        after = {}
        fill(after, extra, 0, len(body) - 20)
        self.weave(body, after)
        if L == 0:
            e(f's_mul_i32 s47, s{sJ}, 245760')
            e(f's_mul_i32 s33, s{sW}, 61440')
            e('s_add_u32 s47, s47, s33')
            e(f's_add_u32 s47, s47, {W2F}')
            self.w2n = 0
            e(f'v_mov_b32 {v(vT3)}, {v(SP + 3)}')
            self.rowmajor(33, 34, vT0, vT1, vT2)
            e(f'buffer_load_dwordx4 {v(SP, 4)}, {v(vT0)}, {s_(S_X, 4)}, s33 offen')
            e(f'buffer_load_dwordx4 {v(SP + 4, 4)}, {v(vT0)}, {s_(S_X, 4)}, s33 offen offset:64')
            e(f'buffer_load_dwordx2 {v(SP + 8, 2)}, {v(vT1)}, {s_(S_X, 4)}, s34 offen')
        self.stamp(f'p1_{L}_smq')

        G = A10
        tg = [G + 4 * x + 3 for x in range(7)]
        ld = '\n'.join(f'buffer_load_dwordx4 {v(G + 4 * x, 4)}, {v(vKVL)}, {WS}, s{25 + x} offen sc1' for x in range(7))
        ck = [f'v_min3_u32 {v(vT0)}, {v(tg[0])}, {v(tg[1])}, s{sVAL}', f'v_max3_u32 {v(vT1)}, {v(tg[0])}, {v(tg[1])}, s{sVAL}']
        for x in (2, 4):
            ck += [f'v_min3_u32 {v(vT0)}, {v(vT0)}, {v(tg[x])}, {v(tg[x + 1])}', f'v_max3_u32 {v(vT1)}, {v(vT1)}, {v(tg[x])}, {v(tg[x + 1])}']
        ck += [f'v_min_u32 {v(vT0)}, {v(vT0)}, {v(tg[6])}', f'v_max_u32 {v(vT1)}, {v(vT1)}, {v(tg[6])}',
               f'v_cmp_ne_u32 vcc, {v(vT0)}, {v(vT1)}']
        for i in range(5):
            if i % 2 == 0:
                e(f'v_lshlrev_b32 {v(E + i)}, 16, {v(D16 + i // 2)}')
            else:
                e(f'v_and_b32 {v(E + i)}, 0xffff0000, {v(D16 + i // 2)}')
        e(f's_lshr_b32 s33, s{sW}, 1')
        e('s_lshl_b32 s33, s33, 10')
        e(f's_and_b32 s34, s{sW}, 1')
        e('s_lshl_b32 s34, s34, 3')
        e('s_add_u32 s33, s33, s34')
        e(f'v_add_u32 {v(E + 10)}, s33, {v(vB3)}')
        e(f'v_lshrrev_b32 {v(E + 11)}, 1, {v(vL16)}')
        e(f'v_add_u32 {v(E + 11)}, {LDS_EX + 2048}, {v(E + 11)}')
        e(f's_lshl_b32 s33, s{sW}, 1')
        e(f'v_add_u32 {v(E + 12)}, s33, {v(E + 11)}')
        if L == 0:
            e(f's_mov_b32 s39, {G2}')
            e(f's_add_u32 s36, s{sTAG}, {SEQ_G2}')
            ld += f'\nbuffer_load_dword {v(vT2)}, {v(vT3)}, {WS}, s39 offen sc1'
            ck += [f'v_cmp_ne_u32 s[34:35], s36, {v(vT2)}', 's_or_b64 vcc, vcc, s[34:35]']
        self.spin(ld, '\n'.join(ck))
        self.stamp(f'p1_{L}_kvgot')
        if L == 0:
            for x in [self.w1q.pop(0) for _ in range(cfg.w1split[0])] + self.w2_loads(cfg.w2split[0]):
                e(x)
        for x in range(7):
            for i in range(5):
                e(f'v_dot2c_f32_bf16 {v(E + i)}, s{sHI if i % 2 else sLO}, {v(G + 4 * x + i // 2)}')
        e(f'v_cvt_pk_bf16_f32 {v(E + 6)}, {v(E)}, {v(E + 1)}')
        e(f'v_cvt_pk_bf16_f32 {v(E + 7)}, {v(E + 2)}, {v(E + 3)}')
        e(f'v_cvt_pk_bf16_f32 {v(E + 8)}, {v(E + 4)}, {v(E + 4)}')
        e(f'ds_write_b64 {v(E + 10)}, {v(E + 6, 2)} offset:{EXO}')
        e(f'ds_write_b16 {v(E + 12)}, {v(E + 8)}')
        e('s_waitcnt lgkmcnt(0)')
        e('s_barrier')
        e(f'ds_read_b128 {v(D16, 4)}, {v(vB3)} offset:{EXO}')
        e(f'ds_read_b128 {v(D16 + 4, 4)}, {v(vB3)} offset:{EXO + 1024}')
        e(f'ds_read_b64 {v(D16 + 8, 2)}, {v(E + 11)}')
        for mt in range(2):
            O, Q = acc[1][mt], acc[0][mt]
            e(f'{M32} {v(O, 16)}, {v(D16, 4)}, {v(Q, 4)}, 0')
            e(f'{M32} {v(O, 16)}, {v(D16 + 4, 4)}, {v(Q + 4, 4)}, {v(O, 16)}')
        for mt in range(2):
            O, Q = acc[1][mt], acc[0][mt]
            e(f'{M32H} {v(O, 16)}, {v(D16 + 8, 2)}, {v(Q + 8, 2)}, {v(O, 16)}')
        for mt in range(2):
            O, P = acc[1][mt], E + 4 * mt
            e(f'v_add_f32 {v(O + 14)}, {hex(EPS_DEN)}, {v(O + 14)}')
            e(f'v_rcp_f32 {v(O + 14)}, {v(O + 14)}')
            for i in range(5):
                e(f'v_pk_mul_f32 {v(O + 4 + 2 * i, 2)}, {v(O + 4 + 2 * i, 2)}, {v(O + 14, 2)} op_sel_hi:[1,0]')
            for i in range(5):
                e(f'v_cvt_pk_bf16_f32 {v(P + i if i < 4 else E + 8 + mt)}, {v(O + 4 + 2 * i)}, {v(O + 5 + 2 * i)}')
            e(f'buffer_store_dwordx4 {v(P, 4)}, {v(vOM)}, {WS}, s{20 + mt} offen {self.st} #o{L}')
        e(f'v_permlane32_swap_b32 {v(E + 8)}, {v(E + 9)}')
        e(f'buffer_store_dwordx2 {v(E + 8, 2)}, {v(vOR)}, {WS}, s22 offen {self.st} #o{L}')
        e(self.flag_store(23, 4 * L + F_O, vT0, f'o{L}'))
        self.stamp(f'p1_{L}_end')
        if L == 0:
            for _ in range(cfg.w1split[1]):
                e(self.w1q.pop(0))
            self.unpack(R, SP, 10)

    def k_addresses(self, d, nk, abase, gstride, mstride):
        e = self.e
        e(f's_mul_i32 s{d + 4}, s{sSG}, {gstride}')
        e(f's_add_u32 s{d + 4}, s{d + 4}, {abase}')
        e(f's_mul_i32 s{d + 5}, s{sW}, {nk * 1024}')
        e(f's_add_u32 s{d + 4}, s{d + 4}, s{d + 5}')
        for s in range(4):
            e(f's_add_u32 s{d + s}, s{sW}, {s + 1}')
            e(f's_and_b32 s{d + s}, s{d + s}, 3')
            e(f's_mul_i32 s{d + s}, s{d + s}, {mstride}')
            e(f's_add_u32 s{d + s}, s{d + s}, s{d + 4}')
        for s in range(3):
            e(f's_sub_u32 s{d + 4 + s}, s{sW}, {s + 1}')
            e(f's_and_b32 s{d + 4 + s}, s{d + 4 + s}, 3')
            e(f's_mul_i32 s{d + 4 + s}, s{d + 4 + s}, 5120')

    def k_body(self, nk, d, wreg, areg, X, Z, init3, pos, after, base, vw, vr):
        mf = []
        w0, ws, r0, a0, a1 = pos
        for s in range(4):
            acc, prev = X[s % 2], X[(s - 1) % 2]
            for k in range(nk):
                for t in range(5):
                    c = v(acc + 4 * t, 4) if (k or (s == 3 and init3)) else '0'
                    mf.append(f'{M16} {v(acc + 4 * t, 4)}, {wreg(k, t)}, {v(areg(s * nk + k), 4)}, {c}')
            if s > 0:
                b = base + s * nk * 5
                spread(after, ['s_waitcnt lgkmcnt(0)\ns_barrier'], b + w0 - 1)
                spread(after, [f'ds_write_b128 {v(vw)}, {v(prev + 4 * t, 4)} offset:{EXO + 1024 * t}' for t in range(5)], b + w0, ws)
                spread(after, [f'v_add_u32 {v(vr)}, s{d + 3 + s}, {v(vB3)}'], b + r0 - 1)
                spread(after, ['s_waitcnt lgkmcnt(0)\ns_barrier'], b + r0)
                spread(after, [f'ds_read_b128 {v(Z + 4 * t, 4)}, {v(vr)} offset:{EXO + 1024 * t}' for t in range(5)], b + r0 + 1, 1, 2)
                if s < 3 or a1 <= nk * 5:
                    fill(after, [f'v_add_f32 {v(R + q)}, {v(R + q)}, {v(Z + q)}' for q in range(20)], b + a0, b + a1)
        return mf

    def k_load(self, i, nk, d, areg):
        s, k = divmod(i, nk)
        t = f'buffer_load_dwordx4 {v(areg(i), 4)}, {v(vL16)}, {WS}, s{d + s} offen offset:{(k % 4) * 1024} sc1'
        return t + (f'\ns_add_u32 s{d + s}, s{d + s}, 4096' if k % 4 == 3 and k + 1 < nk else '')

    def add_tile(self, src):
        for q in range(10):
            self.e(f'v_pk_add_f32 {v(R + 2 * q, 2)}, {v(R + 2 * q, 2)}, {v(src + 2 * q, 2)}')

    def stats_addr(self, d, base):
        e = self.e
        e(f's_lshl_b32 s{d}, s{sSG}, 2')
        e(f's_add_u32 s{d}, s{d}, s{sW}')
        e(f's_lshl_b32 s{d}, s{d}, 2')
        e(f's_lshr_b32 s{d + 1}, s{sJ}, 2')
        e(f's_add_u32 s{d}, s{d}, s{d + 1}')
        e(f's_lshl_b32 s{d}, s{d}, 6')
        e(f's_and_b32 s{d + 1}, s{sJ}, 3')
        e(f's_add_u32 s{d}, s{d}, s{d + 1}')
        e(f's_lshl_b32 s{d}, s{d}, 2')
        e(f's_add_u32 s{d}, s{d}, {base}')
        e(f's_lshl_b32 s{d + 1}, s{sSG}, 3')
        e(f's_add_u32 s{d + 1}, s{d + 1}, s{sJ}')
        e(f's_lshl_b32 s{d + 1}, s{d + 1}, 2')
        e(f's_add_u32 s{d + 1}, s{d + 1}, s{sW}')
        e(f's_lshl_b32 s{d + 1}, s{d + 1}, 2')
        e(f's_add_u32 s{d + 1}, s{d + 1}, {FL}')

    def publish_tile(self, P, d, vpair, step, vsingle, seq):
        e, st, t = self.e, self.st, P + 12
        for q in range(12):
            e(f'v_cvt_pk_bf16_f32 {v(P + q)}, {v(R + 2 * (q if q < 10 else q - 2))}, {v(R + 2 * (q if q < 10 else q - 2) + 1)}')
            if q == 3:
                e(f'buffer_store_dwordx4 {v(P, 4)}, {v(vpair)}, {WS}, s{d} offen {st} #x{seq}')
            if q == 7:
                e(f'buffer_store_dwordx4 {v(P + 4, 4)}, {v(vpair)}, {WS}, s{d} offen offset:{step} {st} #x{seq}')
        e(f'v_pk_add_f32 {v(t, 2)}, {v(R, 2)}, {v(R + 2, 2)}')
        e(f'v_pk_mul_f32 {v(t + 2, 2)}, {v(R, 2)}, {v(R, 2)}')
        e(f'v_permlane16_swap_b32 {v(P + 8)}, {v(P + 10)}')
        e(f'v_permlane16_swap_b32 {v(P + 9)}, {v(P + 11)}')
        e(f'buffer_store_dwordx4 {v(P + 8, 4)}, {v(vsingle)}, {WS}, s{d + 1} offen {st} #x{seq}')
        for i in range(1, 10):
            if i > 1:
                e(f'v_pk_add_f32 {v(t, 2)}, {v(t, 2)}, {v(R + 2 * i, 2)}')
            e(f'v_pk_fma_f32 {v(t + 2, 2)}, {v(R + 2 * i, 2)}, {v(R + 2 * i, 2)}, {v(t + 2, 2)}')
        e(f'v_add_f32 {v(t)}, {v(t)}, {v(t + 1)}')
        e(f'v_add_f32 {v(t + 2)}, {v(t + 2)}, {v(t + 3)}')
        e(f'v_permlane32_swap_b32 {v(t)}, {v(t + 2)}')
        e(f'v_add_f32 {v(t + 1)}, {v(t)}, {v(t + 2)}')
        e(f'v_add_f32 {v(t)}, {v(t)}, {v(t + 2)}')
        e(f'v_permlane16_swap_b32 {v(t)}, {v(t + 1)}')
        e(f'v_add_f32 {v(t)}, {v(t)}, {v(t + 1)}')
        e(f'buffer_store_dword {v(t)}, {v(vST)}, {WS}, s{d + 2} offen {st} #x{seq}')
        e(self.flag_store(d + 3, seq, vT0, f'x{seq}'))

    def p2(self, L):
        e, cfg = self.e, self.cfg
        wreg = lambda k, t: v(WO_E + 4 * (5 * k + t), 4) if k < 4 else v(WO_L + 4 * t, 4)
        areg = lambda i: 44 + 4 * (i % 10)
        if L == 0:
            for x in self.w2_loads(cfg.w2split[1]):
                e(x)
        self.k_addresses(16, 5, self.act(L, OF_O), self.ostride(), 20480)
        self.flag_line(23, 1, sSG)
        e(f's_lshl_b32 s24, s{sW}, 5')
        e('s_add_u32 s23, s23, s24')
        e(f'v_lshrrev_b32 {v(vT1)}, 2, {v(vL16)}')
        e(f'v_and_b32 {v(vT1)}, 28, {v(vT1)}')
        self.poll(23, vT1, 4 * L + F_O)
        self.stamp(f'p2_{L}_go')
        for i in range(cfg.d2):
            e(self.k_load(i, 5, 16, areg))
        e(f's_mul_i32 s24, s{sW}, 5120')
        e(f'v_add_u32 {v(vT1)}, s24, {v(vB3)}')
        e(f's_lshl_b32 s24, s{sSG}, 2')
        e(f's_add_u32 s24, s24, s{sW}')
        e('s_mul_i32 s24, s24, 20480')
        e(f's_add_u32 s24, s24, {self.act(L, X1F_O)}')
        e(f's_lshl_b32 s25, s{sKSS}, 1')
        e(f's_add_u32 s25, s25, s{sPAR}')
        e('s_lshl_b32 s25, s25, 9')
        e('s_add_u32 s25, s25, s24')
        e(f's_lshl_b32 s26, s{sKSA}, 10')
        e('s_add_u32 s24, s24, s26')
        self.stats_addr(26, self.act(L, ST1_O))
        after = {}
        mf = self.k_body(5, 16, wreg, areg, (84, 104), 124, False, (2, 3, 19, 27, 42), after, 0, vT1, vT2)
        spread(after, [self.k_load(i, 5, 16, areg) for i in range(cfg.d2, 20)], 0, 5)
        if L == 0:
            if self.w1q:
                fill(after, self.w1q, 2, 70)
            spread(after, [f'buffer_load_dwordx2 {v(SP, 2)}, {v(vL16)}, {WS}, s24 offen sc1 {cfg.ntt}',
                           f'buffer_load_dwordx2 {v(SP, 2)}, {v(vL16)}, {WS}, s24 offen offset:1024 sc1 {cfg.ntt}',
                           f'buffer_load_dwordx2 {v(SP, 2)}, {v(vXS1)}, {WS}, s25 offen sc1 {cfg.ntt}'], 5 * (20 - cfg.d2), 1)
        self.weave(mf, after)
        self.add_tile(124)
        self.add_tile(104)
        self.stamp(f'p2_{L}_gemm')
        self.publish_tile(44, 24, vL16, 1024, vXS1, 4 * L + F_X1)
        self.stamp(f'p2_{L}_end')

    def p34(self, L):
        e, cfg = self.e, self.cfg
        ACC, WB, SB, PK, RING, X0, X1, T8 = 44, 92, 128, 144, 160, 208, 228, 248
        acc = lambda lt, n: ACC + 4 * (3 * n + lt)
        wreg = lambda n: WB + (n % 9) * 4
        areg = lambda n: RING + (n % 12) * 4
        if L == 0:
            e('s_barrier')
            e(self.colsum_dma(CS1, 16, vT1, 'cs1'))
            for x in self.w2_loads(cfg.w2split[2]):
                e(x)
        e(f's_mul_i32 s24, s{sSW}, 81920')
        e(f's_add_u32 s24, s24, {self.act(L, X1F_O)}')
        e(f's_lshl_b32 s25, s{sSW}, 12')
        e(f's_add_u32 s25, s25, {self.act(L, ST1_O)}')
        for n in range(4):
            e(f's_add_u32 s{28 + n}, s{sGI}, {n + 1}')
            e(f's_and_b32 s{28 + n}, s{28 + n}, 3')
            e(f's_mul_i32 s{16 + n}, s{28 + n}, 20480')
            e(f's_add_u32 s{16 + n}, s{16 + n}, s24')
            e(f's_lshl_b32 s{20 + n}, s{28 + n}, 10')
            e(f's_add_u32 s{20 + n}, s{20 + n}, s25')
        e(f'v_lshrrev_b32 {v(vT1)}, 2, {v(vL16)}')
        e(f'v_and_b32 {v(vT1)}, 124, {v(vT1)}')

        def load_w(n):
            b, off = lds(LDS_W1 + (n % 60) * 1024)
            return f'ds_read_b128 {v(wreg(n), 4)}, {v(b)} offset:{off}'

        def load_a(n):
            if n >= 80:
                return self.k_load(n - 80, 12, 36, lambda i: areg(80 + i))
            h, r = divmod(n, 40)
            ks, m = divmod(r, 2)
            t = f'buffer_load_dwordx4 {v(areg(n), 4)}, {v(vL16)}, {WS}, s{16 + 2 * h + m} offen offset:{(ks % 4) * 1024} sc1'
            return t + (f'\ns_add_u32 s{16 + 2 * h + m}, s{16 + 2 * h + m}, 4096' if ks % 4 == 3 else '')
        DW = 5
        for n in range(DW):
            e(load_w(n))
        self.flag_line(24, 0, sSW)
        self.poll(24, vT1, 4 * L + F_X1)
        self.stamp(f'p3_{L}_go')
        for n in range(cfg.d3):
            e(load_a(n))

        def addresses():
            e = self.e
            e(f's_mul_i32 s32, s{sSW}, 196608')
            e(f's_add_u32 s32, s32, {self.act(L, HF_O)}')
            e(f's_lshr_b32 s33, s{sC}, 1')
            e('s_mul_i32 s33, s33, 3072')
            e('s_add_u32 s32, s32, s33')
            e(f's_lshl_b32 s33, s{sPAR}, 11')
            e('s_add_u32 s33, s33, s32')
            e(f'v_bfe_u32 {v(vT2)}, {v(vL16)}, 8, 1')
            e(f'v_cmp_eq_u32 vcc, 1, {v(vT2)}')
            e(f'v_and_b32 {v(vT2)}, 0x1ff, {v(vXS1)}')
            for n in range(4):
                e(f's_mul_i32 s{28 + n}, s{28 + n}, 49152')
                if n % 2 == 0:
                    e(f'v_mov_b32 {v(T8 + n // 2)}, s{28 + n}')
                else:
                    e(f'v_mov_b32 {v(vT3)}, s{28 + n}')
                    e(f'v_cndmask_b32 {v(T8 + n // 2)}, {v(T8 + n // 2)}, {v(vT3)}, vcc')
                    e(f'v_add_u32 {v(T8 + n // 2)}, {v(T8 + n // 2)}, {v(vT2)}')
                e(f's_add_u32 s{28 + n}, s{28 + n}, s33')
            e(f's_lshl_b32 s33, s{sPAR}, 9')
            e('s_add_u32 s32, s32, s33')
            self.flag_line(33, 1, sSW)
            e(f's_lshl_b32 s34, s{sC}, 2')
            e('s_add_u32 s33, s33, s34')
            e('s_add_u32 s34, s33, 4096')
            self.k_addresses(36, 12, self.act(L, HF_O), 196608, 49152)
            self.flag_line(35, 1, sSG)
            e(f's_lshl_b32 s43, s{sW}, 5')
            e('s_add_u32 s35, s35, s43')
            e(f'v_lshrrev_b32 {v(T8 + 2)}, 2, {v(vL16)}')
            e(f'v_and_b32 {v(T8 + 2)}, 28, {v(T8 + 2)}')
            e(f's_mul_i32 s43, s{sW}, 5120')
            e(f'v_add_u32 {v(T8 + 3)}, s43, {v(vB3)}')
            e('s_mov_b32 s44, 0')
            e('s_mov_b32 s45, 0xffff0000')
            e(f's_add_u32 s{sVAL}, s{sTAG}, {4 * L + F_H}')

        def stats(h):
            e = self.e
            a, b = SB + 8 * h, SB + 8 * h + 4
            self.pair_stats(a, b)
            e(f'v_mul_f32 {v(a + 1)}, {v(a + 1)}, {v(a + 2)}')
            for q in range(3):
                e(f'v_mov_b32 {v(b + q)}, {v(a + q)}')
            for q in range(3):
                e(f'v_permlane16_swap_b32 {v(a + q)}, {v(b + q)}')
            for x in (a, b):
                e(f'v_cndmask_b32 {v(vT2)}, {v(x)}, {v(x + 1)}, s[44:45]')
                self.hi_lo(x, vT2, x + 3)

        def cs():
            e = self.e
            self.colsum(PK, vT3)
            e(f'v_lshrrev_b32 {v(PK + 1)}, 8, {v(vL16)}')
            for lt in range(3):
                e(f'v_cmp_eq_u32 vcc, {lt}, {v(PK + 1)}')
                e(f'v_accvgpr_read_b32 {v(PK + 3)}, {a_(aB1 + lt)}')
                e(f'v_cndmask_b32 {v(PK + 2)}, 0, {v(PK)}, vcc')
                e(f'v_cndmask_b32 {v(PK + 2)}, {v(PK + 2)}, {v(PK + 3)}, s[44:45]')
                e(f'v_accvgpr_write_b32 {a_(aC1 + 2 * lt)}, {v(PK + 2)}')
                e(f'v_accvgpr_write_b32 {a_(aC1 + 2 * lt + 1)}, {v(PK + 2)}')

        def finish(h):
            e, st = self.e, self.st
            for m in range(2):
                for lt in range(3):
                    n = 2 * h + m
                    e(f'{M16H} {v(acc(lt, n), 4)}, {a_(aC1 + 2 * lt, 2)}, {v(SB + 4 * n, 2)}, {v(acc(lt, n), 4)}')
            for m in range(2):
                n = 2 * h + m
                a = acc(0, n)
                for q in range(6):
                    for z in range(2):
                        x = a + 2 * q + z
                        e(f'v_mul_f32 {v(x)}, {v(x)}, {v(SB + 4 * n + 2)}')
                        e(f'v_max_f32 {v(x)}, 0, {v(x)}')
                        e(f'v_mul_f32 {v(x)}, {v(x)}, {v(x)}')
                    dst = PK + 4 * m + q if q < 4 else PK + 8 + 2 * m + q - 4
                    e(f'v_cvt_pk_bf16_f32 {v(dst)}, {v(a + 2 * q)}, {v(a + 2 * q + 1)}')
                    if q == 3:
                        e(f'buffer_store_dwordx4 {v(PK + 4 * m, 4)}, {v(vL16)}, {WS}, s{28 + n} offen {st} #h{h}{L}')
            e(f'v_permlane16_swap_b32 {v(PK + 8)}, {v(PK + 10)}')
            e(f'v_permlane16_swap_b32 {v(PK + 9)}, {v(PK + 11)}')
            e(f'buffer_store_dwordx4 {v(PK + 8, 4)}, {v(T8 + h)}, {WS}, s32 offen offset:1024 {st} #h{h}{L}')

        mf, after = [], {}
        for h in range(2):
            for ks in range(20):
                for m in range(2):
                    for lt in range(3):
                        n, wn = 2 * h + m, 60 * h + 3 * ks + lt
                        c = v(acc(lt, n), 4) if ks else '0'
                        pre = ''
                        if lt == 0:
                            regs = [v(areg(40 * h + 2 * ks + m), 4)] + ([v(wreg(wn + q), 4) for q in range(3)] if m == 0 else [])
                            pre = '@need ' + ' '.join(regs) + '\n'
                        mf.append(f'{pre}{M16} {v(acc(lt, n), 4)}, {v(wreg(wn), 4)}, {v(areg(40 * h + 2 * ks + m), 4)}, {c}')
        spread(after, [load_w(n) for n in range(DW, 120)], 1, 2)
        fill(after, self.capture(addresses), 0, 40)
        spread(after, [f'buffer_load_dwordx4 {v(SB + 4 * n, 4)}, {v(vSTL)}, {WS}, s{20 + n} offen sc1' for n in range(4)], 14, 6)
        if L == 0:
            spread(after, ['@wait cs1\ns_barrier'], 40)
            fill(after, self.capture(cs), 41, 75)
            rest = self.w2_loads(60)
            if rest:
                fill(after, rest, 60, 200)
            for h in range(2):
                spread(after, [f'buffer_load_dwordx2 {v(T8 + 4, 2)}, {v(vL16)}, {WS}, s{28 + 2 * h + m} offen sc1 {cfg.ntt}' for m in range(2)] +
                       [f'buffer_load_dwordx2 {v(T8 + 6, 2)}, {v(T8 + h)}, {WS}, s32 offen offset:1024 sc1 {cfg.ntt}'], 80 + 120 * h, 3)
        fill(after, self.capture(lambda: stats(0)), 76, 116)
        fill(after, self.capture(lambda: finish(0)), cfg.fa[0], cfg.fa[1])
        spread(after, [self.flag_store(33, 4 * L + F_H, vT3, f'h0{L}')], cfg.fa[2])
        fill(after, self.capture(lambda: stats(1)), cfg.fa[1] + 1, 225)
        mf += self.k_body(12, 36, lambda k, t: a_(4 * (5 * k + t), 4), lambda i: areg(80 + i), (X0, X1), ACC, True,
                          (3, 4, 27, 36, 58), after, 240, T8 + 3, vT1)
        need = lambda n: 3 * n if n < 80 else 240 + 5 * (n - 80)
        D = cfg.d3
        pl = f'buffer_load_dword {v(vT0)}, {v(T8 + 2)}, {WS}, s35 offen sc1'
        pc = f'v_cmp_ne_u32 vcc, s{sVAL}, {v(vT0)}'
        spread(after, [pl], cfg.ga[0])
        spread(after, [self.late_check(pl, pc) + '\ns_add_u32 s35, s35, 4096'], cfg.ga[1])
        spread(after, [pl], cfg.gb[0])
        spread(after, [self.late_check(pl, pc)], cfg.gb[1])
        for n in range(D, 128):
            at = need(n - D)
            if n >= 80:
                at = max(at, cfg.ga[1] + n - 80)
            if n >= 104:
                at = max(at, cfg.gb[1] + n - 104)
            spread(after, [load_a(n)], at)
        fill(after, self.capture(lambda: finish(1)), cfg.fb[0], cfg.fb[1])
        spread(after, [self.flag_store(34, 4 * L + F_H, vT3, f'h1{L}')], cfg.fb[2])

        def bias_addr():
            e = self.e
            e(f'v_lshrrev_b32 {v(SB)}, 8, {v(vL16)}')
            e(f'v_lshlrev_b32 {v(SB + 1)}, 3, {v(SB)}')
            e(f'v_lshlrev_b32 {v(SB)}, 4, {v(SB)}')
            e(f's_lshl_b32 s16, s{sKSA}, 6')
            e(f's_lshl_b32 s17, s{sKSS}, 1')
            e(f's_add_u32 s17, s17, s{sPAR}')
            e('s_lshl_b32 s17, s17, 5')
            e(f'buffer_load_dwordx4 {v(WB, 4)}, {v(SB)}, {B2}, s16 offen')
            e(f'buffer_load_dwordx4 {v(WB + 4, 4)}, {v(SB)}, {B2}, s16 offen offset:64')
            e(f'buffer_load_dwordx2 {v(WB + 8, 2)}, {v(SB + 1)}, {B2}, s17 offen')
            if L == 1:
                self.rowmajor(24, 25, SB + 2, SB + 3, SB)
            else:
                self.xf_offsets(24, L + 1)
                self.stats_addr(26, self.act(L + 1, ST_O))
        fill(after, self.capture(bias_addr), 306, 352)
        fill(after, self.capture(lambda: self.unpack(X1, WB, 10)), 392, 416)
        if L + 2 == cfg.fine:
            for g in (0, 60, 119, 180, 239, 270, 299, 359, 419):
                spread(after, self.capture(lambda: self.stamp(f'p3_{L}_g{g}')), g, 0)
        self.weave(mf, after)
        self.add_tile(X1)
        self.stamp(f'p4_{L}_gemm')
        if L == 1:
            for q in range(10):
                e(f'v_cvt_pk_bf16_f32 {v(PK + q)}, {v(R + 2 * q)}, {v(R + 2 * q + 1)}')
            e(f'buffer_store_dwordx4 {v(PK, 4)}, {v(SB + 2)}, {OUT}, s24 offen')
            e(f'buffer_store_dwordx4 {v(PK + 4, 4)}, {v(SB + 2)}, {OUT}, s24 offen offset:64')
            e(f'buffer_store_dwordx2 {v(PK + 8, 2)}, {v(SB + 3)}, {OUT}, s25 offen')
        else:
            self.publish_tile(PK, 24, vXF, 2048, vXS2, 4 * (L + 1) + F_X)
            e('s_barrier')
        self.stamp(f'p4_{L}_end')

    def body(self):
        e = self.e
        for L in range(2):
            self.p1(L)
            self.p2(L)
            self.p34(L)
        e(f's_add_u32 s{sVAL}, s{sTAG}, 16')
        e(f'v_mov_b32 {v(vT0)}, s{sVAL}')
        e(f's_mov_b32 s16, {EPOCH}')
        e(f's_or_b32 s17, s2, s{sW}')
        e('s_cmp_eq_u32 s17, 0')
        e(f's_cselect_b32 s17, 0, {OOB}')
        e(f'v_mov_b32 {v(vT1)}, s17')
        e('s_mov_b64 exec, 1')
        e(f'buffer_store_dword {v(vT0)}, {v(vT1)}, {WS}, s16 offen sc1')
        e('s_mov_b64 exec, -1')
        if self.cfg.diag:
            lab = self.label('diag')
            e(f'{lab}:')
            e('s_memrealtime s[62:63]')
            e('s_waitcnt lgkmcnt(0)')
            e('s_sub_u32 s62, s62, s100')
            e(f's_cmp_lt_u32 s62, {self.cfg.diag}')
            e(f's_cbranch_scc1 {lab}')
        if self.stamping:
            e('s_waitcnt vmcnt(0)')
            self.stamp('done')
            e('s_memrealtime s[62:63]')
            e('s_waitcnt lgkmcnt(0)')
            e('s_mov_b32 s101, s62')
            e('s_lshl_b32 s16, s2, 2')
            e(f's_add_u32 s16, s16, s{sW}')
            e('s_lshl_b32 s16, s16, 8')
            e(f's_add_u32 s16, s16, {STAMP}')
            for i in range(38):
                e(f'v_mov_b32 {v(44 + i)}, s{sSTAMP + i}')
            e('s_mov_b64 exec, 1')
            for i in range(10):
                e(f'buffer_store_dwordx4 {v(44 + 4 * i, 4)}, {v(vL16)}, {WS}, s16 offen offset:{16 * i}')
        e('s_endpgm')
        tails, self.tails = self.tails, []
        for t in tails:
            e.reset()
            e.extend(t)

    def build(self):
        e, cfg = self.e, self.cfg
        self.prologue()
        self.st = 'sc1' if cfg.force_slow else ''
        self.body()
        e('Lfast_end:')
        e('Lend:')
        e('s_endpgm')
        if cfg.both:
            e.reset()
            e('Lslow:')
            self.st, self.stamping = 'sc1', False
            self.body()
        txt = f'; @launch grid=(256,1,1) block=(256,1,1) lds={LDS_TOTAL}\n'
        txt += '.amdgcn_target "amdgcn-amd-amdhsa--gfx950"\n.text\n' + e.finalize().replace(' offset:0', '').replace('    ', ' ')
        txt += f""".section .rodata,"a"
.p2align 6
.amdhsa_kernel {NAME}_kernel
  .amdhsa_next_free_vgpr 512
  .amdhsa_next_free_sgpr 102
  .amdhsa_accum_offset 256
  .amdhsa_group_segment_fixed_size 0
  .amdhsa_kernarg_size 96
  .amdhsa_user_sgpr_count 2
  .amdhsa_user_sgpr_kernarg_segment_ptr 1
  .amdhsa_system_sgpr_workgroup_id_x 1
.end_amdhsa_kernel
"""
        return txt


def parse_cfg(args):
    cfg = Cfg()
    for a in args:
        if '=' in a:
            k, val = a.split('=')
            assert hasattr(cfg, k), k
            setattr(cfg, k, val if isinstance(getattr(cfg, k), str) else eval(val))
    return cfg


def build(cfg):
    g = Gen(cfg)
    return g.build(), g.e, g


if __name__ == '__main__':
    txt, e, g = build(parse_cfg(sys.argv[2:]))
    open(sys.argv[1], 'w').write(txt)
    print('instructions', len(e.ins), e.stats, 'bytes', len(txt), 'pending at labels:', e.pending)
```

```python
import re, sys
from asmlib import *
from layout import *

NAME = 'interleave_layers__linear_kernel_hedgehog__dense_activation_squared_relu__prompt'
M32 = 'v_mfma_f32_32x32x16_bf16'
M32H = 'v_mfma_f32_32x32x8_bf16'
M16 = 'v_mfma_f32_16x16x32_bf16'
M16H = 'v_mfma_f32_16x16x16_bf16'

P_X, P_WQKV, P_WPHI, P_WO, P_BX, P_W1, P_B1, P_W2, P_B2, P_OUT, P_DBG, P_WS = [64 + 2 * i for i in range(12)]
S_WS, S_OUT, S_B2, S_W1, S_WQKV, S_WPHI, S_WO, S_B1, S_W2, S_X = range(4, 44, 4)
WS, OUT, B2 = s_(S_WS, 4), s_(S_OUT, 4), s_(S_B2, 4)
sW = 3
sSET, sC, sGI, sJ, sTAG, sSG, sSW, sCNT, sVAL, sKSA, sKSS, sPAR, sLO, sHI = range(48, 62)
sSTAMP = 64
STAMP_SKIP = ('consts', 'nc_iss')

vL16, vB2, vB3, vXF, vXS1, vXS2, vU0, vU1, vOM, vOR, vKVS, vKVL, vT0, vT1, vT2, vT3 = range(16)
vST, vSTL = vXS2, vL16
R = 16
PA, PB = 36, 40
A00, A01, A10, A11 = 44, 60, 76, 92
E, D16, KV1, CB, SP, STT = 108, 128, 144, 160, 164, 168
WO_E, WO_L = 176, 144
aCQ, aC1, aB1 = 240, 244, 250
LOG2E, INV640, EPS_LN, EPS_DEN = 0x3fb8aa3b, 0x3acccccd, 0x3727c5ac, 0x358637bd
EXO = LDS_EX - 131072
SEQ_G1, SEQ_G2, SEQ_KV = 11, 12, 9
F_X, F_O, F_X1, F_H = range(4)
vXG, vXL, XB = R, R + 4, 49152
sXG, sXL = 44, 45
NCF, vG2 = 184, 205
KVS = 768


class Cfg:
    stamps = False
    rt = False
    alias = True
    force_slow = False
    both = True
    d1 = 7
    d1x = 10
    d2 = 5
    d3 = 7
    w2split = (0, 0, 0, 0, 0, 10)
    wb = 0
    drop = ''
    kp2 = ((2, 6, 8, 11, 13), 18, 27, 43)
    kp4 = ((2, 7, 12, 17, 22), 28, 37, 60)
    qa = True
    cap1 = 6.5
    cap3 = 3.5
    wo1 = 16
    tlb = False
    wlead = 8
    xstep = 12
    wo0 = 10
    w2r = (60, 200)
    ntt = ''
    w1split = (0, 0, 4, 5, 6, 0)
    g2 = (104, 122)
    gat = (20, 20)
    hs = ''
    os = ''
    code2 = 300
    fine = -1
    skip = ''
    nt = 'nt'
    ntx = ''
    late = True
    prew = True
    xe = (0, 0)
    xpre = (3, 10)
    nc_at = 130
    diag = 0
    diag_at = 'start'
    fa = (123, 165, 180)
    ga = (200, 218)
    fb = (242, 290, 303)
    gb = (322, 338)


def lds(off):
    return (vL16, vB2, vB3)[off >> 16], off & 0xffff


def spread(after, items, start, step=1, per=1):
    for n, x in enumerate(items):
        after.setdefault(start + (n // per) * step, []).append(x)


def fill(after, items, start, end):
    n = len(items)
    for k, x in enumerate(items):
        after.setdefault(start + k * (end - start) // n, []).append(x)


def cost(x):
    n = 0
    for t in ([x.text] if isinstance(x, Ins) else x.split('\n')):
        t = t.strip()
        if t.endswith(':') or t.startswith('; gap'):
            continue
        if t.startswith('v_mfma'):
            continue
        elif t.startswith(('ds_write_b128', 'buffer_store_dwordx4')):
            n += 5
        elif t.startswith('ds_write_b64'):
            n += 3
        elif t.startswith(TRANS) or 'permlane' in t or t.startswith(('ds_write', 'buffer_store')):
            n += 2
        else:
            n += 1
    return n


def pour(mf, after, items, start, end, cap):
    base = {g: sum(cost(x) for x in after.get(g, ())) + (g + 1 < len(mf) and str(mf[g + 1]).startswith('@need'))
            for g in range(start, end)}
    c = cap
    while True:
        load, g, place, prev_mfma = dict(base), start, [], False
        for x in items:
            if isinstance(x, Ins) and x.text.startswith('; gap'):
                g += int(x.text.split()[-1])
                place.append(min(g, end - 1))
                continue
            if isinstance(x, Ins) and x.cls == 'mfma':
                g += prev_mfma
                prev_mfma = True
                if g >= end:
                    break
                load[g] = 0
                place.append(g)
                continue
            prev_mfma = False
            k = cost(x)
            while g < end and load[g] + k > int(c * (g + 1)) - int(c * g) and not (load[g] <= 0):
                g += 1
            if g >= end:
                break
            load[g] += k
            place.append(g)
        else:
            for g, x in zip(place, items):
                after.setdefault(g, []).append(x)
            return place[-1]
        c += 0.125


class Gen:
    def __init__(self, cfg):
        self.e, self.cfg = Asm(), cfg
        self.nstamp, self.nlab, self.stamp_names, self.tails = 0, 0, [], []
        self.st, self.stamping = '', cfg.stamps

    def act(self, L, off):
        if self.cfg.alias:
            return ACT + {XF_O: XF_O, X1F_O: XF_O, OF_O: HF_O, HF_O: HF_O, ST_O: ST_O, ST1_O: ST_O}[off]
        return ACT + L * ACT_STRIDE + off

    def ostride(self):
        return 196608 if self.cfg.alias else 81920

    def stamp(self, name):
        if self.cfg.diag and name == self.cfg.diag_at:
            self.e('s_memrealtime s[100:101]')
            self.e('s_waitcnt lgkmcnt(0)')
        if not self.stamping or name in STAMP_SKIP or (self.cfg.skip and self.cfg.skip in name):
            return
        e = self.e
        e(('s_memrealtime' if self.cfg.rt else 's_memtime') + ' s[62:63]')
        e('s_waitcnt lgkmcnt(0)')
        e(f's_mov_b32 s{sSTAMP + self.nstamp}, s62')
        self.stamp_names.append(name)
        self.nstamp += 1
        assert self.nstamp <= 36

    def label(self, base):
        self.nlab += 1
        return f'L{base}_{self.nlab}'

    def srd(self, d, p, nbytes):
        e = self.e
        e(f's_mov_b32 s{d}, s{p}')
        e(f's_and_b32 s{d + 1}, s{p + 1}, 0xffff')
        e(f's_mov_b32 s{d + 2}, {nbytes}')
        e(f's_mov_b32 s{d + 3}, 0x20000')

    def sdiv(self, q, r, x, d):
        e = self.e
        e(f's_mul_i32 s{q}, s{x}, {(1 << 16) // d + 1}')
        e(f's_lshr_b32 s{q}, s{q}, 16')
        e(f's_mul_i32 s{r}, s{q}, {d}')
        e(f's_sub_u32 s{r}, s{x}, s{r}')

    def capture(self, fn):
        keep, self.e = self.e, Asm()
        fn()
        out, self.e = self.e.ins, keep
        return out

    def weave(self, main, after):
        for i, m in enumerate(main):
            self.e(m)
            for x in after.pop(i, ()):
                self.e(x)
        assert not after, sorted(after)

    def flag_line(self, d, line, sidx):
        self.e(f's_lshl_b32 s{d}, s{sidx}, 7')
        self.e(f's_add_u32 s{d}, s{d}, {FL + line * 4096}')

    def spin(self, load, check):
        e, lab = self.e, self.label('poll')
        e(f's_mov_b32 s{sCNT}, 0')
        e(f'{lab}:')
        e(load)
        e(f's_add_u32 s{sCNT}, s{sCNT}, 1')
        e(f's_cmp_gt_u32 s{sCNT}, 0x80000')
        e('s_cbranch_scc1 Lend')
        e('s_waitcnt vmcnt(0)')
        e(check)
        e(f's_cbranch_vccnz {lab}')

    def late_check(self, load, check):
        out, back = self.label('retry'), self.label('back')

        def tail():
            self.e(f'{out}:')
            self.e('s_nop 7')
            self.e('s_nop 3')
            self.spin(load, check)
            self.e(f's_branch {back}')
        self.tails.append(self.capture(tail))
        return check + f'\ns_cbranch_vccnz {out}\n{back}:'

    def poll(self, sflag, vpoll, seq):
        self.e(f's_add_u32 s{sVAL}, s{sTAG}, {seq}')
        self.spin(f'buffer_load_dword {v(vT0)}, {v(vpoll)}, {WS}, s{sflag} offen sc1',
                  f'v_cmp_ne_u32 vcc, s{sVAL}, {v(vT0)}')

    def flag_store(self, sflag, seq, t, tag):
        return (f'v_mov_b32 {v(t)}, {seq}\nv_add_u32 {v(t)}, s{sTAG}, {v(t)}\n@wait {tag}\ns_mov_b64 exec, 1\n'
                f'buffer_store_dword {v(t)}, {v(vL16)}, {WS}, s{sflag} offen {self.st}\ns_mov_b64 exec, -1')

    def unpack(self, dst, src, n):
        for i in range(n):
            self.e(f'v_lshlrev_b32 {v(dst + 2 * i)}, 16, {v(src + i)}')
            self.e(f'v_and_b32 {v(dst + 2 * i + 1)}, 0xffff0000, {v(src + i)}')

    def hi_lo(self, dst, x, t):
        e = self.e
        e(f'v_cvt_pk_bf16_f32 {v(dst)}, {v(x)}, {v(x)}')
        e(f'v_lshlrev_b32 {v(t)}, 16, {v(dst)}')
        e(f'v_sub_f32 {v(t)}, {v(x)}, {v(t)}')
        e(f'v_cvt_pk_bf16_f32 {v(dst + 1)}, {v(t)}, {v(t)}')

    def pair_stats(self, a, b):
        e = self.e
        for q in range(1, 4):
            e(f'v_add_f32 {v(a)}, {v(a)}, {v(a + q)}')
            e(f'v_add_f32 {v(b)}, {v(b)}, {v(b + q)}')
        e(f'v_permlane16_swap_b32 {v(a)}, {v(b)}')
        e(f'v_add_f32 {v(a)}, {v(a)}, {v(b)}')
        e(f'v_mov_b32 {v(a + 1)}, {v(a)}')
        e(f'v_permlane32_swap_b32 {v(a)}, {v(a + 1)}')
        e(f'v_mul_f32 {v(a)}, {hex(INV640 | 0x80000000)}, {v(a)}')
        e(f'v_mul_f32 {v(a + 1)}, {hex(INV640)}, {v(a + 1)}')
        e(f'v_fma_f32 {v(a + 1)}, -{v(a)}, {v(a)}, {v(a + 1)}')
        e(f'v_max_f32 {v(a + 1)}, 0, {v(a + 1)}')
        e(f'v_add_f32 {v(a + 1)}, {hex(EPS_LN)}, {v(a + 1)}')
        e(f'v_rsq_f32 {v(a + 2)}, {v(a + 1)}')

    def colsum(self, t, addr):
        e = self.e
        e(f'v_lshrrev_b32 {v(addr)}, 2, {v(vL16)}')
        e(f'v_add_u32 {v(addr)}, {LDS_EX}, {v(addr)}')
        for h in range(2):
            for q in range(4 if h else 5):
                e(f'ds_read2st64_b32 {v(t + 2 * q + 2 * h, 2)}, {v(addr)} offset0:{10 * h + 2 * q} offset1:{10 * h + 2 * q + 1}')
            for q in range(2 if h else 1, 10):
                e(f'v_add_f32 {v(t)}, {v(t)}, {v(t + q)}')
        e(f'ds_read2st64_b32 {v(t + 2, 2)}, {v(addr)} offset0:18 offset1:19')
        e(f'v_add_f32 {v(t)}, {v(t)}, {v(t + 2)}')
        e(f'v_add_f32 {v(t)}, {v(t)}, {v(t + 3)}')
        e(f'v_cvt_pk_bf16_f32 {v(t + 1)}, {v(t)}, {v(t)}')
        e(f'v_lshlrev_b32 {v(t + 1)}, 16, {v(t + 1)}')
        e(f'v_sub_f32 {v(t + 2)}, {v(t)}, {v(t + 1)}')
        e(f'v_cvt_pk_bf16_f32 {v(t)}, {v(t + 1)}, {v(t + 2)}')

    def colsum_dma(self, base, s0, t, tag):
        return (f's_mul_i32 s{s0}, s{sC}, 5120\ns_mul_i32 s{s0 + 1}, s{sW}, 1280\ns_add_u32 s{s0}, s{s0}, s{s0 + 1}\n'
                f's_add_u32 s{s0}, s{s0}, {base}\ns_add_u32 m0, s{s0 + 1}, {LDS_EX}\n'
                f'v_lshrrev_b32 {v(t)}, 2, {v(vL16)}\n'
                f'buffer_load_dwordx4 {v(vL16)}, {WS}, s{s0} offen sc1 lds #{tag}\n'
                f'buffer_load_dword {v(t)}, {WS}, s{s0} offen offset:1024 sc1 lds #{tag}')

    def rowmajor(self, d0, d1, va, vb, t):
        e = self.e
        e(f's_lshl_b32 s{d1}, s{sSG}, 2')
        e(f's_add_u32 s{d1}, s{d1}, s{sW}')
        e(f's_mul_i32 s{d1}, s{d1}, {16 * 1280}')
        e(f's_lshl_b32 s{d0}, s{sKSA}, 6')
        e(f's_add_u32 s{d0}, s{d0}, s{d1}')
        e(f's_lshl_b32 s62, s{sKSS}, 6')
        e(f's_add_u32 s{d1}, s{d1}, s62')
        e(f's_lshl_b32 s62, s{sPAR}, 5')
        e(f's_add_u32 s{d1}, s{d1}, s62')
        e(f'v_bfe_u32 {v(va)}, {v(vL16)}, 4, 4')
        e(f'v_mul_u32_u24 {v(va)}, 1280, {v(va)}')
        e(f'v_lshrrev_b32 {v(t)}, 8, {v(vL16)}')
        e(f'v_lshl_add_u32 {v(vb)}, {v(t)}, 3, {v(va)}')
        e(f'v_lshl_add_u32 {v(va)}, {v(t)}, 4, {v(va)}')

    def xf_offsets(self, d, L):
        e = self.e
        e(f's_lshl_b32 s{d}, s{sSG}, 1')
        e(f's_lshr_b32 s{d + 1}, s{sW}, 1')
        e(f's_add_u32 s{d}, s{d}, s{d + 1}')
        e(f's_mul_i32 s{d}, s{d}, 40960')
        e(f's_and_b32 s{d + 1}, s{sW}, 1')
        e(f's_lshl_b32 s{d + 1}, s{d + 1}, 8')
        e(f's_add_u32 s{d}, s{d}, s{d + 1}')
        e(f's_add_u32 s{d}, s{d}, {self.act(L, XF_O)}')
        e(f's_lshl_b32 s{d + 1}, s{sKSS}, 1')
        e(f's_add_u32 s{d + 1}, s{d + 1}, s{sPAR}')
        e(f's_lshl_b32 s{d + 1}, s{d + 1}, 10')
        e(f's_add_u32 s{d + 1}, s{d + 1}, s{d}')
        e(f's_lshl_b32 s62, s{sKSA}, 11')
        e(f's_add_u32 s{d}, s{d}, s62')

    def x_slot(self, u):
        n0, n1 = self.cfg.xpre
        return u if u < n0 else (u - n0 if u < n1 else 2 + (u - n1) % 3)

    def x_dma(self, u):
        kq, mt = divmod(u, 2)
        pre = f's_add_u32 s46, s{sXG}, {40960 * mt + 128 * kq}\n'
        m0 = f's_add_u32 m0, s{sXL}, {16384 * self.x_slot(u)}\n'
        return [(pre if i == 0 else '') + m0 +
                f'buffer_load_dwordx4 {v(vXG + i)}, {s_(S_X, 4)}, s46 offen offset:{1024 * i} lds #xa{u}' for i in range(4)]

    def x_reg(self, ks, mt):
        return 4 * ((2 * ks + mt) % 60)

    def x_read(self, u, wait=True):
        kq, mt = divmod(u, 2)
        sl = self.x_slot(u)
        t = [f'ds_read_b128 {a_(self.x_reg(4 * kq + q, mt), 4)}, {v(vXL + q + 4 * (sl // 4))} offset:{16384 * (sl % 4)}' for q in range(4)]
        if wait:
            t[0] = f'@wait xa{u}\n' + t[0]
        return t

    def x_done(self, u):
        kq, mt = divmod(u, 2)
        return f'@need {a_(self.x_reg(4 * kq + 3, mt), 4)}'

    def prologue(self):
        e, cfg = self.e, self.cfg
        name = NAME + '_kernel'
        nt = cfg.nt
        RQ, RS, R1, R2, RO = 0, 17408, 18432, 30720, 38912
        e(f'.globl {name}\n.p2align 8\n.type {name},@function\n{name}:')
        e('s_cmp_ge_u32 s2, 256')
        e('s_cbranch_scc1 Lend')
        e('s_getpc_b64 s[44:45]')
        e('Lpc:')
        e('s_load_dwordx16 s[64:79], s[0:1], 0')
        e('s_load_dwordx8 s[80:87], s[0:1], 64')
        if cfg.diag:
            e('s_memrealtime s[100:101]')
        if cfg.stamps:
            e('s_memrealtime s[100:101]')
            e(('s_memrealtime' if cfg.rt else 's_memtime') + ' s[98:99]')
        e(f's_lshr_b32 s{sC}, s2, 3')
        e('v_lshrrev_b32 v44, 6, v0')
        e('v_and_b32 v45, 3, v0')
        e('v_lshl_add_u32 v45, v44, 2, v45')
        e(f's_lshl_b32 s46, s{sC}, 4')
        e('v_add_u32 v45, s46, v45')
        e('v_lshlrev_b32 v45, 7, v45')
        e('v_min_u32 v45, Lfast_end-Lpc, v45')
        e('s_mov_b64 exec, 15')
        e('global_load_dword v46, v45, s[44:45]')
        e('s_mov_b64 exec, -1')
        e(f'v_readfirstlane_b32 s{sW}, v44')
        LANE, M16_, G4, M32_, G2 = 47, 48, 49, 50, 51
        e(f'v_and_b32 {v(LANE)}, 63, v0')
        e(f'v_and_b32 {v(M32_)}, 31, v0')
        e(f'v_bfe_u32 {v(G2)}, v0, 5, 1')
        e(f's_and_b32 s{sSET}, s2, 7')
        e(f'v_mul_u32_u24 v52, 205, {v(LANE)}')
        e('v_lshrrev_b32 v52, 11, v52')
        e('v_mul_u32_u24 v53, 1120, v52')
        e(f'v_lshl_add_u32 v53, {v(LANE)}, 4, v53')
        e('s_cmp_lt_u32 s2, 160')
        e(f's_cselect_b32 s88, 0, {OOB}')
        e(f'v_mov_b32 v54, {OOB}')
        e(f'v_cmp_gt_u32 vcc, 60, {v(LANE)}')
        e('v_add_u32 v53, s88, v53')
        e('v_cndmask_b32 v53, v54, v53, vcc')
        e(f's_lshl_b32 s89, s{sC}, 2')
        e(f's_add_u32 s89, s89, s{sW}')
        e(f's_mul_i32 s89, s89, {8 * 3840}')
        e(f's_mul_i32 s90, s{sSET}, 160')
        e('s_add_u32 s89, s89, s90')
        e(f's_mul_i32 s90, s{sW}, 4160')
        e(f'v_and_b32 v55, 7, {v(LANE)}')
        e(f'v_lshrrev_b32 v56, 3, {v(LANE)}')
        e('v_mul_u32_u24 v63, 1280, v56')
        e('v_lshl_add_u32 v57, v55, 4, v63')
        e(f's_lshl_b32 s93, s{sSET}, 5')
        e(f's_add_u32 s93, s93, s{sC}')
        e('s_mul_i32 s94, s93, 10240')
        e(f's_lshl_b32 s95, s{sW}, 7')
        e('s_add_u32 s94, s94, s95')
        e(f's_cmp_lt_u32 s{sW}, 2')
        e(f's_cselect_b32 s95, 0, {OOB}')
        e('v_add_u32 v58, s95, v57')
        e(f'v_and_b32 v59, 19, {v(M32_)}')
        e(f'v_bfe_u32 v60, {v(M32_)}, 2, 1')
        e('v_lshl_add_u32 v59, v60, 3, v59')
        e(f'v_bfe_u32 v61, {v(M32_)}, 3, 1')
        e('v_lshl_add_u32 v59, v61, 2, v59')
        e('v_mul_u32_u24 v61, 40, v59')
        e('v_cmp_gt_u32 vcc, 20, v59')
        e(f's_lshl_b32 s{sSG}, s{sSET}, 2')
        e(f's_add_u32 s{sSW}, s{sSG}, s{sW}')
        e('v_cndmask_b32 v61, v54, v61, vcc')
        e(f'v_lshl_add_u32 v62, {v(G2)}, 30, v61')
        e(f'v_lshl_add_u32 v61, {v(G2)}, 4, v61')
        e(f's_mul_i32 s91, s{sSW}, 800')
        e('s_waitcnt lgkmcnt(0)')
        self.srd(S_WQKV, P_WQKV, 640 * 3840)
        AQ, AK, AV, AT0, AT1, AP, APT, XR = 64, 68, 72, 76, 78, 80, 84, 88
        for q in range(4):
            e('s_mov_b32 m0, s90')
            e('s_add_u32 s90, s90, 1040')
            e(f'buffer_load_dwordx4 v53, {s_(S_WQKV, 4)}, s89 offen {nt} lds #rq')
            e('s_add_u32 s89, s89, 7680')
        self.srd(S_WPHI, P_WPHI, 32 * 800)
        e(f'buffer_load_dwordx4 {v(AP, 4)}, v61, {s_(S_WPHI, 4)}, s91 offen')
        e(f'buffer_load_dwordx2 {v(APT, 2)}, v62, {s_(S_WPHI, 4)}, s91 offen offset:32')
        self.srd(S_X, P_X, 2048 * 1280)
        xs = s_(S_X, 4)
        e(f'buffer_load_dwordx4 {v(XR, 4)}, v57, {xs}, s94 offen {cfg.ntx}')
        e(f'buffer_load_dwordx4 {v(XR + 4, 4)}, v57, {xs}, s94 offen offset:512 {cfg.ntx}')
        e(f'buffer_load_dwordx4 {v(XR + 8, 4)}, v58, {xs}, s94 offen offset:1024 {cfg.ntx}')
        e(f's_add_u32 s46, s{P_WS}, {EPOCH}')
        e(f's_addc_u32 s47, s{P_WS + 1}, 0')
        e(f's_load_dword s{sTAG}, s[46:47], 0')
        self.srd(S_WS, P_WS, WS_USED)
        self.srd(S_OUT, P_OUT, 2048 * 1280)
        self.srd(S_B2, P_B2, 1280)
        self.srd(S_WO, P_WO, 640 * 1280)
        self.srd(S_W1, P_W1, 640 * 3072)
        self.srd(S_W2, P_W2, 1536 * 1280)
        self.srd(S_B1, P_B1, 3072)
        if cfg.stamps:
            e(f's_mov_b32 s{sSTAMP}, s98')
            self.stamp_names.append('start')
            self.nstamp = 1
        self.stamp('issued')
        e(f'v_and_b32 {v(M16_)}, 15, {v(LANE)}')
        e(f'v_lshrrev_b32 {v(G4)}, 4, {v(LANE)}')
        e(f'v_lshlrev_b32 {v(vL16)}, 4, {v(LANE)}')
        e(f's_lshr_b32 s{sGI}, s2, 6')
        e(f's_and_b32 s{sJ}, s{sC}, 7')
        e(f's_add_u32 s{sSG}, s{sSG}, s{sGI}')
        e(f's_lshr_b32 s{sKSS}, s{sJ}, 1')
        e(f's_mul_i32 s{sKSS}, s{sKSS}, 5')
        e(f's_and_b32 s{sPAR}, s{sJ}, 1')
        e(f's_mul_i32 s{sKSA}, s{sPAR}, 3')
        e(f's_add_u32 s{sKSA}, s{sKSA}, s{sKSS}')
        e(f's_add_u32 s{sKSS}, s{sKSS}, 2')
        e(f's_mov_b32 s{sLO}, 0x3f80')
        e(f's_mov_b32 s{sHI}, 0x3f800000')
        e('s_lshr_b32 s80, s93, 1')
        e('s_lshl_b32 s80, s80, 2')
        e(f's_add_u32 s80, s80, s{sW}')
        e('s_lshl_b32 s80, s80, 1')
        e(f's_add_u32 s80, s80, s{sPAR}')
        e('s_lshl_b32 s80, s80, 7')
        e(f's_add_u32 s80, s80, {self.act(0, ST_O)}')
        e(f's_mul_i32 s81, s{sSW}, 81920')
        e(f's_lshl_b32 s82, s{sC}, 12')
        e('s_add_u32 s81, s81, s82')
        e(f's_mul_i32 s82, s{sSW}, 5120')
        e(f's_lshl_b32 s83, s{sC}, 8')
        e('s_add_u32 s82, s82, s83')
        e(f's_add_u32 s82, s82, {CSQ}')
        e(f'v_add_u32 v100, s88, {v(vL16)}')
        e(f'v_lshl_add_u32 v101, {v(LANE)}, 2, s88')

        def second_stage_loads():
            def colblock(src, base, jstride, stage, vst, vrd, so, tag):
                e('s_mul_i32 s93, s93, 1280')
                e('s_mul_i32 s94, s94, 1280')
                e('s_lshl_b32 s95, s92, 8')
                e('s_add_u32 s93, s93, s95')
                e('s_add_u32 s94, s94, s95')
                e('s_sub_u32 s94, s94, 1024')
                e('v_mul_u32_u24 v52, 1280, v52')
                e(f'v_lshl_add_u32 v52, {v(M16_)}, 4, v52')
                e('v_add_u32 v52, s88, v52')
                e(f's_lshl_b32 s95, s{sW}, 11')
                e(f's_add_u32 m0, s95, {stage}')
                e('s_lshl_b32 s92, s92, 2')
                e(f'buffer_load_dwordx4 v52, {src}, s93 offen {nt} lds #{tag}')
                e(f'buffer_load_dwordx4 v52, {src}, s94 offen offset:1024 {nt} lds #{tag}')
                e(f's_add_u32 s92, s92, s{sW}')
                self.sdiv(89, 96, 92, 5)
                e('s_cmp_eq_u32 s96, 2')
                e('s_cselect_b32 s92, 3, 4')
                e('s_cselect_b32 s95, 32, 8')
                e(f's_mov_b32 s{so + 1}, {jstride}')
                e(f's_cselect_b32 s{so + 1}, s{so + 1}, 1024')
                e(f'v_lshl_add_u32 {v(vrd)}, v219, s92, v220')
                e(f'v_add_u32 {v(vrd + 1)}, s95, {v(vrd)}')
                e(f'v_add_u32 {v(vst)}, s88, {v(vL16)}')
                e('s_lshl_b32 s89, s89, 1')
                e('s_sub_u32 s92, s96, 3')
                e('s_cmp_gt_u32 s96, 2')
                e('s_cselect_b32 s92, s92, s96')
                e('s_addc_u32 s89, s89, 0')
                e(f's_mul_i32 s89, s89, {jstride}')
                e('s_lshl_b32 s92, s92, 11')
                e('s_add_u32 s89, s89, s92')
                e('s_mul_i32 s92, s91, 5120')
                e('s_add_u32 s89, s89, s92')
                e(f's_add_u32 s{so}, s89, {base}')
                e(f's_add_u32 s{so + 1}, s{so + 1}, s{so}')

            e(f'v_and_b32 v219, 3, {v(LANE)}')
            e(f'v_bfe_u32 v218, {v(LANE)}, 2, 2')
            e(f'v_lshl_add_u32 v218, {v(G4)}, 3, v218')
            e('v_lshlrev_b32 v220, 8, v218')
            e(f's_lshl_b32 s95, s{sW}, 6')
            e('v_add_u32 v220, s95, v220')
            e('s_sub_u32 s96, s2, 156')
            e(f's_cselect_b32 s88, {OOB}, 0')
            e('s_cselect_b32 s96, 0, s96')
            self.sdiv(91, 92, 96, 5)
            self.sdiv(89, 90, 91, 5)
            e('s_mul_i32 s93, s89, 160')
            e('s_mul_i32 s95, s90, 40')
            e('s_cmp_eq_u32 s90, 4')
            e('s_cselect_b32 s95, 8, s95')
            e('s_cselect_b32 s94, 20, 4')
            e('s_cselect_b32 s96, 40, 10')
            e('s_cselect_b32 s90, 8, 0')
            e(f's_mul_i32 s96, s96, s{sW}')
            e('s_add_u32 s93, s93, s95')
            e('s_add_u32 s93, s93, s96')
            e('s_add_u32 s94, s94, s93')
            e(f'v_mul_u32_u24 v52, s90, {v(G2)}')
            e(f'v_add_u32 v52, v52, {v(G4)}')
            colblock(s_(S_WO, 4), WOF, 102400, RO, 208, 212, 84, 'ro')
            e(f's_sub_u32 s91, s{sC}, 12')
            e(f's_cselect_b32 s88, {OOB}, 0')
            e('s_cselect_b32 s91, 0, s91')
            e('s_lshl_b32 s92, s91, 2')
            e(f's_add_u32 s92, s92, s{sW}')
            e(f's_mul_i32 s92, s92, {8 * 3072}')
            e(f's_mul_i32 s93, s{sSET}, 384')
            e('s_add_u32 s92, s92, s93')
            e(f's_mul_i32 s93, s{sW}, 3072')
            e(f's_add_u32 m0, s93, {R1}')
            for q in range(3):
                e(f'v_add_u32 v52, {64 * q}, {v(LANE)}')
                e('v_mul_u32_u24 v52, 171, v52')
                e('v_lshrrev_b32 v52, 12, v52')
                e(f'v_mul_u32_u24 v52, {3072 - 384}, v52')
                e(f'v_add3_u32 v52, v52, {v(vL16)}, s88')
                e(f'buffer_load_dwordx4 v52, {s_(S_W1, 4)}, s92 offen offset:{1024 * q} {nt} lds #rn')
            e('v_mul_u32_u24 v216, 384, v218')
            e(f's_mul_i32 s93, s{sW}, 96')
            e('v_add_u32 v216, s93, v216')
            e('v_lshl_add_u32 v217, v219, 3, v216')
            e('v_lshl_add_u32 v216, v219, 4, v216')
            e(f'v_add_u32 v210, s88, {v(vL16)}')
            e(f'v_lshl_add_u32 v211, {v(LANE)}, 2, s88')
            e(f's_mul_i32 s78, s{sSW}, 61440')
            e('s_mul_i32 s79, s91, 3072')
            e('s_add_u32 s78, s78, s79')
            e(f's_add_u32 s78, s78, {W1F}')
            e(f's_mul_i32 s79, s{sSW}, 5120')
            e('s_lshl_b32 s91, s91, 8')
            e('s_add_u32 s79, s79, s91')
            e(f's_add_u32 s79, s79, {CS1}')
            e('s_cmp_lt_u32 s2, 240')
            e(f's_cselect_b32 s88, 0, {OOB}')
            e('s_cselect_b32 s96, s2, 0')
            self.sdiv(91, 92, 96, 5)
            self.sdiv(89, 90, 91, 3)
            e('s_mul_i32 s93, s89, 96')
            e('s_mul_i32 s95, s90, 24')
            e('s_cmp_eq_u32 s90, 1')
            e('s_cselect_b32 s95, 32, s95')
            e('s_cselect_b32 s94, 32, 0')
            e('s_add_u32 s93, s93, s95')
            e(f's_lshr_b32 s95, s{sW}, 1')
            e('s_mul_i32 s94, s94, s95')
            e('s_add_u32 s93, s93, s94')
            e(f's_lshl_b32 s95, s{sW}, 3')
            e('s_add_u32 s93, s93, s95')
            e('s_add_u32 s94, s93, 4')
            e(f'v_mov_b32 v52, {v(G4)}')
            colblock(s_(S_W2, 4), W2F, 245760, R2, 209, 214, 86, 'rn')
            e(f'v_lshrrev_b32 v52, 2, {v(M16_)}')
            e('v_lshl_add_u32 v52, v52, 3, v219')
            e('v_lshlrev_b32 v52, 1, v52')
            e(f'v_lshlrev_b32 v221, 1, {v(M16_)}')
            e(f's_mul_i32 s89, s{sC}, 96')
            e(f'buffer_load_ushort {a_(aB1)}, v52, {s_(S_B1, 4)}, s89 offen')
            e(f'buffer_load_ushort {a_(aB1 + 1)}, v52, {s_(S_B1, 4)}, s89 offen offset:8')
            e(f'buffer_load_ushort {a_(aB1 + 2)}, v221, {s_(S_B1, 4)}, s89 offen offset:64')

        SEL, SELT, BV0, BV1, BT0, BT1, BP, ONES = 112, 116, 120, 124, 128, 130, 132, 136
        e(f'v_lshrrev_b32 v52, 3, {v(M32_)}')
        e(f'v_and_b32 v53, 3, {v(M32_)}')
        e('v_lshl_add_u32 v52, v52, 2, v53')
        e('v_mul_u32_u24 v60, 10, v60')
        e('v_add_u32 v60, v60, v52')
        e(f'v_and_b32 v53, 1, {v(M32_)}')
        e('v_lshlrev_b32 v53, 4, v53')
        e(f'v_lshlrev_b32 v53, v53, s{sLO}')
        e(f'v_lshlrev_b32 v61, 2, {v(G2)}')
        for (b4, b2, off, lo, hi, tg) in ((SEL, SELT, 0, 0, 10, 0), (BV0, BT0, 10, 10, 16, 1), (BV1, BT1, 4, 10, 14, 1)):
            e(f'v_subrev_u32 v57, {off}, v60')
            e('v_lshrrev_b32 v57, 1, v57')
            e(f'v_subrev_u32 v58, {lo}, v52')
            e(f'v_cmp_gt_u32 vcc, {hi - lo}, v58')
            e(f'v_cmp_eq_u32 s[46:47], {tg}, {v(G2)}')
            e('v_cndmask_b32 v57, 32, v57, vcc')
            e('v_sub_u32 v58, v57, v61')
            e('v_cndmask_b32 v57, 32, v57, s[46:47]')
            for h in range(2):
                for q in range(3 * h, 3 * h + 3):
                    e(f'v_cmp_eq_u32 s[{20 + 2 * (q % 3)}:{21 + 2 * (q % 3)}], {q if q < 4 else q + 4}, {"v58" if q < 4 else "v57"}')
                for q in range(3 * h, 3 * h + 3):
                    e(f'v_cndmask_b32 {v(b4 + q if q < 4 else b2 + q - 4)}, 0, v53, s[{20 + 2 * (q % 3)}:{21 + 2 * (q % 3)}]')
        for i in range(4):
            e(f'v_mov_b32 {v(ONES + i)}, 0x3f803f80')
        e('v_lshrrev_b32 v57, 1, v59')
        e('v_mul_u32_u24 v57, 1040, v57')
        e('v_and_b32 v58, 1, v59')
        e('v_mul_u32_u24 v58, 480, v58')
        e(f's_mul_i32 s89, s{sW}, 40')
        e('v_add3_u32 v57, v57, v58, s89')
        e(f'v_mul_u32_u24 v58, 160, {v(G2)}')
        e('v_add_u32 v59, v57, v58')
        e('v_add_u32 v58, v59, v58')
        e(f'v_lshl_add_u32 v57, {v(G2)}, 4, v57')
        e('v_and_b32 v61, 3, v55')
        e('v_lshlrev_b32 v60, 7, v61')
        e('v_lshl_add_u32 v60, v56, 4, v60')
        e(f's_lshl_b32 s89, s{sW}, 2')
        e(f's_add_u32 s89, s89, {RS}')
        e('v_add_u32 v60, s89, v60')
        e('v_cmp_eq_u32 s[20:21], 0, v61')
        e('v_cmp_eq_u32 s[22:23], 2, v61')
        e(f'v_lshlrev_b32 v102, 2, {v(M32_)}')
        e(f's_lshl_b32 s89, s{sW}, 7')
        e(f's_add_u32 s89, s89, {RS}')
        e('v_add_u32 v103, s89, v102')
        e(f'v_lshl_add_u32 v102, {v(G2)}, 30, v102')
        e('v_lshrrev_b32 v61, 1, v56')
        e('v_xor_b32 v61, v61, v55')
        for i in range(4):
            if i:
                e('v_xor_b32 v61, 4, v61')
            e(f'v_lshl_add_u32 {v(vXG + i)}, v61, 4, v63')
            if i:
                e(f'v_add_u32 {v(vXG + i)}, {9216 * i}, {v(vXG + i)}')
        e(f's_mul_i32 s{sXG}, s{sSW}, {64 * 1280}')
        e(f's_lshl_b32 s{sXL}, s{sW}, 12')
        e(f's_add_u32 s{sXL}, s{sXL}, {XB}')
        e(f'v_bfe_u32 v61, {v(M32_)}, 1, 3')
        e(f'v_xor_b32 v61, v61, {v(G2)}')
        e(f'v_lshl_add_u32 v63, {v(M32_)}, 7, s{sXL}')
        for q in range(4):
            e(f'v_xor_b32 v62, {2 * q}, v61')
            e(f'v_lshl_add_u32 {v(vXL + q)}, v62, 4, v63')
            e(f'v_add_u32 {v(vXL + 4 + q)}, 0x10000, {v(vXL + q)}')
        second_stage_loads()
        e('v_mov_b32 v62, 0')
        e('v_mov_b32 v63, 0')
        D0, D1, FR = 144, 160, 176
        e(f'{M32} {v(D0, 16)}, {v(AP, 4)}, {v(SEL, 4)}, 0')
        e(f'{M32H} {v(D0, 16)}, {v(APT, 2)}, {v(SELT, 2)}, {v(D0, 16)}')
        e('s_barrier')
        self.stamp('landed')
        early = [x for u in range(cfg.xpre[0]) for x in self.x_dma(u)]
        e(f'ds_read2_b64 {v(AV, 4)}, v57 offset0:40 offset1:41')
        e(f'ds_read2_b64 {v(AK, 4)}, v57 offset0:20 offset1:21')
        e(f'ds_read2_b64 {v(AQ, 4)}, v57 offset0:0 offset1:1')
        e(f'ds_read_b64 {v(AT0, 2)}, v59 offset:192')
        e(f'ds_read_b64 {v(AT1, 2)}, v58 offset:32')
        for x in early[:cfg.xe[0]]:
            e(x)
        for q in range(4):
            e(f'v_cvt_pk_bf16_f32 {v(BP + q)}, {v(D0 + 2 * q)}, {v(D0 + 2 * q + 1)}')
        for q in range(2):
            e(f'v_cvt_pk_bf16_f32 v61, {v(D0 + 8 + 2 * q)}, {v(D0 + 9 + 2 * q)}')
            e(f'v_or_b32 {v(BT0 + q)}, {v(BT0 + q)}, v61')
            e(f'v_or_b32 {v(BT1 + q)}, {v(BT1 + q)}, v61')
        e(f'{M32} {v(D0, 16)}, {v(AV, 4)}, {v(BV0, 4)}, 0')
        e(f'{M32} {v(D1, 16)}, {v(AV, 4)}, {v(BV1, 4)}, 0')
        e(f'{M32} {v(D0, 16)}, {v(AK, 4)}, {v(BP, 4)}, {v(D0, 16)}')
        e(f'{M32} {v(D1, 16)}, {v(AQ, 4)}, {v(BP, 4)}, {v(D1, 16)}')
        e(f'{M32H} {v(D0, 16)}, {v(AT0, 2)}, {v(BT0, 2)}, {v(D0, 16)}')
        e(f'{M32H} {v(D1, 16)}, {v(AT1, 2)}, {v(BT1, 2)}, {v(D1, 16)}')
        for T, D in ((0, D0), (1, D1)):
            for half in range(2):
                f = FR + 8 * T + 4 * half
                for q in range(4):
                    e(f'v_cvt_pk_bf16_f32 {v(f + q)}, {v(D + 8 * half + 2 * q)}, {v(D + 8 * half + 2 * q + 1)}')
                e(f'buffer_store_dwordx4 {v(f, 4)}, v100, {WS}, s81 offen offset:{2048 * half + 1024 * T} sc1 #c')
            e(f'{M32} {v(D, 16)}, {v(ONES, 4)}, {v(FR + 8 * T, 4)}, 0')
            e(f'{M32} {v(D, 16)}, {v(ONES, 4)}, {v(FR + 8 * T + 4, 4)}, {v(D, 16)}')
        for x in early[cfg.xe[0]:cfg.xe[1]]:
            e(x)
        for q in range(12):
            e(f'v_dot2c_f32_bf16 v62, {v(ONES)}, {v(XR + q)}')
            e(f'v_dot2c_f32_bf16 v63, {v(XR + q)}, {v(XR + q)}')
        e(f'v_cmp_eq_u32 vcc, 1, {v(G2)}')
        e(f'v_cndmask_b32 v55, {v(D0)}, {v(D1)}, vcc')
        e(f'buffer_store_dword v55, v101, {WS}, s82 offen sc1 #c')
        for ctl in ('quad_perm:[1,0,3,2]', 'quad_perm:[2,3,0,1]', 'row_half_mirror'):
            e(f'v_add_f32_dpp v62, v62, v62 {ctl} row_mask:0xf bank_mask:0xf')
            e(f'v_add_f32_dpp v63, v63, v63 {ctl} row_mask:0xf bank_mask:0xf')
        e('v_cndmask_b32 v62, 0, v62, s[20:21]')
        e('v_cndmask_b32 v62, v62, v63, s[22:23]')
        e('ds_write_b32 v60, v62')
        e('@wait ro')
        e('s_waitcnt lgkmcnt(0)')
        e('s_barrier')
        e('ds_read_b32 v62, v103')
        for n in range(2):
            for T in range(2):
                e(f'ds_read_b64_tr_b16 {v(64 + 4 * n + 2 * T, 2)}, {v(212 + n)} offset:{RO + 1024 * T}')
        e(f'buffer_store_dword v62, v102, {WS}, s80 offen sc1 #c')
        for n in range(2):
            e(f'buffer_store_dwordx4 {v(64 + 4 * n, 4)}, v208, {WS}, s{84 + n} offen sc1 #c')
        self.stamp('stored')
        units = cfg.xpre
        for x in early[cfg.xe[1]:]:
            e(x)

        e('s_getreg_b32 s97, hwreg(HW_REG_XCC_ID, 0, 4)')
        e(f's_add_u32 s{sVAL}, s{sTAG}, {SEQ_G1}')
        e(f'v_mov_b32 v56, s{sVAL}')
        e('v_mov_b32 v57, s97')
        e(f'v_mov_b32 v58, s{sVAL}')
        e('v_mov_b32 v59, s97')
        e('s_lshl_b32 s89, s2, 7')
        e(f's_add_u32 s89, s89, {G1}')
        e(f's_cmp_eq_u32 s{sW}, 0')
        e(f's_cselect_b32 s90, 0, {OOB}')
        e(f'v_add_u32 v55, s90, {v(vL16)}')
        e('@wait c')
        e('s_barrier')
        e('s_mov_b64 exec, 0xff')
        e(f'buffer_store_dwordx4 v[56:59], v55, {WS}, s89 offen sc1')
        e('s_mov_b64 exec, -1')
        self.stamp('g1set')

        def constants():
            e = self.e
            e(f'v_add_u32 {v(vB2)}, 0x10000, {v(vL16)}')
            e(f'v_add_u32 {v(vB3)}, 0x20000, {v(vL16)}')
            e(f'v_lshlrev_b32 {v(vXF)}, 9, {v(G4)}')
            e(f'v_lshl_add_u32 {v(vXF)}, {v(M16_)}, 4, {v(vXF)}')
            e(f'v_and_b32 v52, 1, {v(G4)}')
            e(f'v_lshlrev_b32 v60, 4, {v(M16_)}')
            e('v_lshl_add_u32 v61, v52, 30, v60')
            e(f'v_lshl_add_u32 {v(vXS1)}, {v(G2)}, 8, v61')
            e(f'v_lshl_add_u32 {v(vXS2)}, {v(G2)}, 9, v61')
            e(f'v_mul_u32_u24 {v(vOM)}, 20480, v52')
            e(f'v_add_u32 {v(vOM)}, {v(vOM)}, v60')
            e(f'v_lshl_add_u32 {v(vOM)}, {v(G2)}, 8, {v(vOM)}')
            e(f'v_mul_u32_u24 {v(vOR)}, 20480, {v(G4)}')
            e(f'v_add_u32 {v(vOR)}, {v(vOR)}, v60')
            e(f'v_subrev_u32 v60, 8, {v(M32_)}')
            e(f'v_cmp_lt_u32 vcc, 27, {v(M32_)}')
            e('v_subb_co_u32 v60, vcc, v60, 0, vcc')
            e('v_cmp_gt_u32 vcc, 22, v60')
            e(f'v_mul_u32_u24 v62, 22, {v(G2)}')
            e('v_cndmask_b32 v61, 0, v60, vcc')
            e(f'v_add_lshl_u32 {v(vKVL)}, v61, v62, 4')
            e(f'v_cmp_ne_u32 s[20:21], 27, {v(M32_)}')
            e('s_and_b64 vcc, vcc, s[20:21]')
            e(f'v_cndmask_b32 {v(vKVS)}, v54, {v(vKVL)}, vcc')
            e(f'v_bfe_u32 v61, {v(M32_)}, 2, 1')
            e(f'v_cmp_eq_u32 vcc, v61, {v(G2)}')
            e(f'v_bfe_u32 v62, {v(M32_)}, 1, 1')
            e(f'v_lshrrev_b32 v60, 3, {v(M32_)}')
            e('v_cndmask_b32 v61, 0, v53, vcc')
            e('v_lshl_add_u32 v62, v60, 1, v62')
            for h in range(2):
                for q in range(4):
                    e(f'v_cmp_eq_u32 s[{20 + 2 * q}:{21 + 2 * q}], {4 * h + q}, v62')
                for q in range(4):
                    e(f'v_cndmask_b32 {v(PA + 4 * h + q)}, 0, v61, s[{20 + 2 * q}:{21 + 2 * q}]')
            e(f's_lshr_b32 s91, s{sC}, 2')
            e(f's_lshl_b32 s92, s{sW}, 3')
            e('s_add_u32 s92, s92, s91')
            e(f'v_min_u32 v52, 4, {v(M16_)}')
            e('v_lshl_add_u32 v53, v52, 5, s92')
            e(f's_sub_u32 s93, s{sKSA}, s{sPAR}')
            e(f'v_and_b32 v60, 1, {v(LANE)}')
            e('v_lshl_add_u32 v60, v60, 1, s93')
            e('v_lshrrev_b32 v60, 2, v60')
            e(f'v_lshrrev_b32 v61, 1, {v(M16_)}')
            e('v_min_u32 v61, 4, v61')
            e(f's_mul_i32 s93, s{sW}, 25')
            e('s_add_u32 s93, s93, 156')
            e('v_mul_u32_u24 v61, 5, v61')
            e('v_add3_u32 v61, v61, v60, s93')
            e(f'v_cmp_eq_u32 vcc, 3, {v(G4)}')
            e(f'v_cmp_eq_u32 s[20:21], 1, {v(G2)}')
            e(f'v_lshl_add_u32 v62, {v(M32_)}, 3, s{sSET}')
            e('v_cndmask_b32 v53, v53, v61, vcc')
            e('v_cndmask_b32 v53, v62, v53, s[20:21]')
            e(f'v_lshlrev_b32 {v(vT2)}, 7, v53')
            e(f's_mul_i32 s92, s{sW}, 40')
            e('s_add_u32 s92, s92, s91')
            e('s_add_u32 s92, s92, 96')
            e('v_lshl_add_u32 v52, v52, 3, s92')
            e(f'v_lshrrev_b32 v61, 1, {v(M32_)}')
            e('v_min_u32 v61, 11, v61')
            e(f's_mul_i32 s93, s{sW}, 60')
            e('v_mul_u32_u24 v61, 5, v61')
            e('v_add3_u32 v61, v61, v60, s93')
            e('v_cndmask_b32 v52, v52, v61, s[20:21]')
            e(f'v_lshlrev_b32 {v(vG2)}, 7, v52')

        def second_stage():
            e = self.e
            jobs = [(216, R1, 1536, 210, 78, 0), (216, R1 + 8, 1536, 210, 78, 1024), (217, R1 + 64, 1536, 210, 78, 2048),
                    (214, R2, 1024, 209, 86, 0), (215, R2, 1024, 209, 87, 0)]
            for n, (vrd, stage, step, _, _, _) in enumerate(jobs):
                for T in range(2):
                    e(f'ds_read_b64_tr_b16 {v(NCF + 4 * n + 2 * T, 2)}, {v(vrd)} offset:{stage + step * T}')
            self.nc_stores = []
            for n, (_, _, _, vst, so, off) in enumerate(jobs):
                self.nc_stores.append(f'buffer_store_dwordx4 {v(NCF + 4 * n, 4)}, {v(vst)}, {WS}, s{so} offen offset:{off} sc1 #nc')
                if n < 3:
                    e(f'{M16} {v(144 + 4 * n, 4)}, {v(ONES, 4)}, {v(NCF + 4 * n, 4)}, 0')
            e(f'v_cmp_eq_u32 vcc, 1, {v(G4)}')
            e(f'v_cmp_eq_u32 s[20:21], 2, {v(G4)}')
            e('s_waitcnt lgkmcnt(0)')
            e('s_barrier')
            e('v_cndmask_b32 v204, v144, v148, vcc')
            e('v_cndmask_b32 v204, v204, v152, s[20:21]')
            self.nc_stores.append(f'buffer_store_dword v204, v211, {WS}, s79 offen sc1 #nc')

        assert units[1] - units[0] <= 7 and units[1] <= 14
        second_stage()
        e(f'@wait xa{units[0] - 1}')
        for x in ([] if cfg.late else self.nc_stores):
            e(x)
        for u in range(units[0]):
            for x in self.x_read(u, False):
                e(x)
        e('s_waitcnt lgkmcnt(0)')
        for u in range(units[0], units[1]):
            for x in self.x_dma(u):
                e(x)
        constants()
        self.stamp('pre_done')
        e(f's_mov_b32 s89, {G1}')
        self.spin(f'buffer_load_dwordx2 {v(vT0, 2)}, {v(vT2)}, {WS}, s89 offen sc1',
                  f'v_cmp_ne_u32 vcc, s{sVAL}, {v(vT0)}')
        e(f'v_cmp_ne_u32 vcc, s97, {v(vT1)}')
        e('s_waitcnt lgkmcnt(0)')
        e('s_cmp_lg_u32 vcc_lo, 0')
        if cfg.both:
            e('s_cbranch_scc1 Lslow')
        self.stamp('g1got')

    def softmax(self, a, sp, dst, pk):
        e = self.e
        t0, t1, t2, t3 = vT0, vT1, vT2, vT3
        e(f'v_max3_f32 {v(t0)}, {v(a)}, {v(a + 1)}, {v(a + 2)}')
        e(f'v_max3_f32 {v(t1)}, -{v(a)}, -{v(a + 1)}, -{v(a + 2)}')
        for i in (3, 5, 7):
            e(f'v_max3_f32 {v(t0)}, {v(t0)}, {v(a + i)}, {v(a + i + 1)}')
            e(f'v_max3_f32 {v(t1)}, {v(t1)}, -{v(a + i)}, -{v(a + i + 1)}')
        e(f'v_max_f32 {v(t0)}, {v(t0)}, {v(a + 9)}')
        e(f'v_max_f32 {v(t1)}, {v(t1)}, -{v(a + 9)}')
        e(f'v_permlane32_swap_b32 {v(t0)}, {v(t1)}')
        e(f'v_max_f32 {v(t0)}, {v(t0)}, {v(t1)}')
        e(f'v_mul_f32 {v(t1)}, {v(t0)}, {v(sp + 1)}')
        e(f'v_mul_f32 {v(t0)}, {v(t0)}, {v(sp + 1)}')
        e(f'v_permlane32_swap_b32 {v(t0)}, {v(t1)}')
        for i in range(10):
            if pk:
                sel = (a + i) & 1
                e(f'v_pk_fma_f32 {v(E + 2 * i, 2)}, {v((a + i) & ~1, 2)}, {v(sp, 2)}, {v(t0, 2)} '
                  f'op_sel:[{sel},0,0] op_sel_hi:[{sel},1,1]')
            else:
                for h in range(2):
                    e(f'v_fma_f32 {v(E + 2 * i + h)}, {v(a + i)}, {v(sp + h)}, {v(t0 + h)}')
        for i in range(20):
            e(f'v_exp_f32 {v(E + i)}, {v(E + i)}')
        if pk:
            e(f'v_pk_add_f32 {v(t2, 2)}, {v(E, 2)}, {v(E + 2, 2)}')
            for i in range(2, 10):
                e(f'v_pk_add_f32 {v(t2, 2)}, {v(t2, 2)}, {v(E + 2 * i, 2)}')
        else:
            for i in range(1, 10):
                for h in range(2):
                    e(f'v_add_f32 {v(t2 + h)}, {v(t2 + h if i > 1 else E + h)}, {v(E + 2 * i + h)}')
        e(f'v_permlane32_swap_b32 {v(t2)}, {v(t3)}')
        e(f'v_add_f32 {v(t2)}, {v(t2)}, {v(t3)}')
        e(f'v_rcp_f32 {v(t2)}, {v(t2)}')
        e(f'v_mov_b32 {v(t3)}, {v(t2)}')
        e(f'v_permlane32_swap_b32 {v(t2)}, {v(t3)}')
        for i in range(10):
            if pk:
                e(f'v_pk_mul_f32 {v(E + 2 * i, 2)}, {v(E + 2 * i, 2)}, {v(t2, 2)}')
            else:
                for h in range(2):
                    e(f'v_mul_f32 {v(E + 2 * i + h)}, {v(E + 2 * i + h)}, {v(t2 + h)}')
            e(f'v_cvt_pk_bf16_f32 {v(dst + i)}, {v(E + 2 * i)}, {v(E + 2 * i + 1)}')

    def mean_term(self, T, mt, first=False):
        a = ((A00, A01), (A10, A11))[T][mt]
        return f'{M32H} {v(a, 16)}, {a_(aCQ + 2 * T, 2)}, {v(CB + 2 * mt, 2)}, {0 if first else v(a, 16)}'

    def kpart(self, mt, pk):
        e = self.e
        a0, a1, st, KV2 = (A00, A01)[mt], (A10, A11)[mt], STT + 4 * mt, A00
        e(f'v_mov_b32 {v(D16 + 15)}, s{sLO}')
        self.softmax(a0, st, D16, pk)
        X, Y = E, a0
        gap = (lambda n: None) if pk else (lambda n: e(f'; gap {n}'))
        e(f'{M32} {v(X, 16)}, {v(D16, 4)}, {v(PA, 4)}, 0')
        e(f'{M32} {v(X, 16)}, {v(D16 + 4, 4)}, {v(PB, 4)}, {v(X, 16)}')
        for i, src in enumerate((a0 + 10, a0 + 12, a0 + 14, a1 + 10, a1 + 12)):
            for h in range(2):
                e(f'v_mul_f32 {v(src + h)}, {v(src + h)}, {v(st + 2)}')
            e(f'v_cvt_pk_bf16_f32 {v(D16 + 10 + i)}, {v(src)}, {v(src + 1)}')
        gap(1)
        e(f'{M32} {v(Y, 16)}, {v(D16 + 8, 4)}, {v(PA, 4)}, 0')
        e(f'{M32} {v(Y, 16)}, {v(D16 + 12, 4)}, {v(PB, 4)}, {v(Y, 16)}')
        for q in range(8):
            e(f'v_cvt_pk_bf16_f32 {v(D16 + q)}, {v(X + 2 * q)}, {v(X + 2 * q + 1)}')
        gap(2)
        for q in range(8):
            e(f'v_cvt_pk_bf16_f32 {v(D16 + 8 + q)}, {v(Y + 2 * q)}, {v(Y + 2 * q + 1)}')
        gap(1)
        for h in range(2):
            c = v(KV1, 16) if mt or h else '0'
            e(f'{M32} {v(KV1, 16)}, {v(D16 + 4 * h, 4)}, {v(D16 + 8 + 4 * h, 4)}, {c}')
        for h in range(2):
            c = v(KV2, 16) if mt or h else '0'
            e(f'{M32} {v(KV2, 16)}, {v(D16 + 8 + 4 * h, 4)}, {v(D16 + 8 + 4 * h, 4)}, {c}')

    def w2_loads(self, n):
        out = []
        for k in range(self.w2n, min(60, self.w2n + n)):
            i = (k + 20) % 60
            t = f'buffer_load_dwordx4 {a_(4 * i, 4)}, {v(vL16)}, {WS}, s47 offen offset:{(i % 4) * 1024} sc1'
            if i == 59:
                t += f'\ns_sub_u32 s47, s47, {56 * 1024}'
            elif i % 4 == 3:
                t += '\ns_add_u32 s47, s47, 4096'
            out.append(t)
        self.w2n += len(out)
        return out

    def side(self, k):
        a = [self.w1q.pop(0) for _ in range(min(self.cfg.w1split[k], len(self.w1q)))]
        b = self.w2_loads(self.cfg.w2split[k])
        keyed = [((i + 0.5) / len(a), x) for i, x in enumerate(a)] + [((i + 0.5) / len(b), x) for i, x in enumerate(b)]
        out = [x for _, x in sorted(keyed, key=lambda t: t[0])]
        return out

    def p1(self, L):
        e, cfg = self.e, self.cfg
        acc = ((A00, A01), (A10, A11))
        areg = lambda n: 176 + (n % 12) * 4
        wreg = lambda n: 224 + (n % 8) * 4
        e(f's_mul_i32 s16, s{sSW}, 81920')
        e(f's_add_u32 s16, s16, {self.act(L, XF_O)}')
        e(f's_lshl_b32 s17, s{sSW}, 12')
        e(f's_add_u32 s17, s17, {self.act(L, ST_O)}')

        def late_addresses():
            e = self.e
            e(f's_mul_i32 s18, s{sJ}, 102400')
            e(f's_mul_i32 s19, s{sW}, 25600')
            e('s_add_u32 s18, s18, s19')
            e(f's_add_u32 s18, s18, {WOF}')
            e(f's_mul_i32 s20, s{sSW}, {self.ostride()}')
            e(f's_add_u32 s20, s20, {self.act(L, OF_O)}')
            e(f's_mul_i32 s21, s{sGI}, 5120')
            e('s_add_u32 s20, s20, s21')
            e(f's_lshr_b32 s22, s{sJ}, 1')
            e('s_lshl_b32 s22, s22, 5')
            e(f's_add_u32 s22, s22, s{sPAR}')
            e('s_lshl_b32 s22, s22, 3')
            e('s_add_u32 s22, s22, s20')
            e('s_add_u32 s22, s22, 4096')
            e(f's_lshl_b32 s21, s{sJ}, 9')
            e('s_add_u32 s20, s20, s21')
            e('s_add_u32 s21, s20, 40960')
            self.flag_line(23, 1, sSW)
            e(f's_lshl_b32 s24, s{sC}, 2')
            e('s_add_u32 s23, s23, s24')
            e(f's_add_u32 s24, s24, s{sW}')
            e(f's_mul_i32 s24, s24, {8 * KVS}')
            e(f's_add_u32 s24, s24, {KVP + L * 0x100000}')
            for x in range(1, 8):
                e(f's_xor_b32 s{24 + x}, s{sSET}, {x}')
                e(f's_mul_i32 s{24 + x}, s{24 + x}, {KVS}')
                e(f's_add_u32 s{24 + x}, s{24 + x}, s24')
            e(f's_mul_i32 s32, s{sSET}, {KVS}')
            e('s_add_u32 s24, s24, s32')

        def load_a(n):
            t = f'buffer_load_dwordx4 {v(areg(n), 4)}, {v(vL16)}, {WS}, s16 offen offset:{(n % 4) * 1024} sc1'
            return t + ('\ns_add_u32 s16, s16, 4096' if n % 4 == 3 else '')

        def load_w(n):
            b, off = lds((n % 80) * 1024)
            return f'ds_read_b128 {v(wreg(n), 4)}, {v(b)} offset:{off}'

        stat_ld = [f'buffer_load_dwordx4 {v(KV1 + 4 * q, 4)}, {v(vSTL)}, {WS}, s17 offen offset:{1024 * q} sc1' for q in range(4)]

        def stats():
            for mt in range(2):
                b, st = KV1 + 8 * mt, STT + 4 * mt
                self.pair_stats(b, b + 4)
                self.hi_lo(CB + 2 * mt, b, b + 3)
                self.e(f'v_mov_b32 {v(st + 2)}, {v(b + 2)}')
                self.e(f'v_mul_f32 {v(st)}, {hex(LOG2E)}, {v(b + 2)}')
                self.e(f'v_mul_f32 {v(st + 1)}, {hex(LOG2E | 0x80000000)}, {v(b + 2)}')

        mf, after = [], {}
        DW = 5

        def load_wo(i):
            r = WO_E + 4 * i if i < 20 else WO_L + 4 * (i - 20)
            t = f'buffer_load_dwordx4 {v(r, 4)}, {v(vL16)}, {WS}, s18 offen offset:{(i % 4) * 1024} sc1'
            return t + ('\ns_add_u32 s18, s18, 4096' if i % 4 == 3 else '')

        if L == 0:
            for ks in range(40):
                for T in range(2):
                    for mt in range(2):
                        c = v(acc[T][mt], 16) if ks else '0'
                        mf.append(f'{M32} {v(acc[T][mt], 16)}, {v(wreg(2 * ks + T), 4)}, {a_(self.x_reg(ks, mt), 4)}, {c}')
            e(f's_mul_i32 s33, s{sC}, 81920')
            e(f's_lshl_b32 s34, s{sW}, 12')
            e('s_add_u32 s33, s33, s34')

            def wq(g):
                t = f's_mov_b32 m0, s34\nbuffer_load_dwordx4 {v(vL16)}, {WS}, s33 offen offset:{(g % 4) * 1024} sc1 lds #wq{g // 4}'
                return t + ('\ns_add_u32 s33, s33, 16384\ns_add_u32 s34, s34, 16384' if g % 4 == 3 else '')
            lead, u0 = cfg.wlead, cfg.xpre[1]
            for g in range(lead):
                e(wq(g))
            for u in range(cfg.xpre[0], u0):
                for x in self.x_read(u, False):
                    e(x)
            late_addresses()
            e('s_waitcnt lgkmcnt(0)')
            for x in self.x_dma(u0):
                e(x)
            e('@wait wq0')
            e('s_barrier')
            for n in range(DW):
                e(load_w(n))
            for ch in range(1, 5):
                spread(after, [f'@wait wq{ch}\ns_barrier'], 32 * ch - 2 * DW)
            spread(after, [wq(g) for g in range(lead, 20)], 0, 8)
            step = cfg.xstep
            for u in range(u0, 20):
                at = (u - u0) * step
                if u + 1 < 20:
                    items = self.x_dma(u + 1)
                    if u - 2 >= u0:
                        items[0] = self.x_done(u - 2) + '\n' + items[0]
                    spread(after, items, at + 1, 2)
                rd = at + step + 1
                assert rd + 4 < 16 * (u // 2), (u, rd)
                assert u < 14 or rd > 16 * (u // 2) - 105
                spread(after, self.x_read(u), rd, 1)
            spread(after, [load_w(n) for n in range(DW, 80)], 0, 2)
            spread(after, [self.colsum_dma(CSQ, 35, SP, 'csq')], 30)
            spread(after, ['@wait csq'], 32 * 3 - 2 * DW - 1)
            spread(after, stat_ld, 60, 4)

            def cs():
                self.colsum(E, SP + 1)
                self.e(f'v_cmp_gt_u32 vcc, 512, {v(vL16)}')
                self.e(f'v_cndmask_b32 {v(E + 1)}, 0, {v(E)}, vcc')
                self.e(f'v_cndmask_b32 {v(E + 2)}, {v(E)}, 0, vcc')
                for q in range(4):
                    self.e(f'v_accvgpr_write_b32 {a_(aCQ + q)}, {v(E + 1 + q // 2)}')
            fill(after, self.capture(cs), 88, 116)
            fill(after, self.capture(stats), 119, 150)
            g2 = [f's_add_u32 s{sVAL}, s{sTAG}, {SEQ_G2}'] + [f'v_mov_b32 {v(vT0 + q)}, s{sVAL}' for q in range(4)]
            g2 += ['s_lshl_b32 s39, s2, 7', f's_add_u32 s39, s39, {G2}', f's_cmp_eq_u32 s{sW}, 0\ns_cselect_b32 s36, 0, {OOB}',
                   f'v_add_u32 {v(SP + 2)}, s36, {v(vL16)}',
                   f's_mov_b64 exec, 0xff\nbuffer_store_dwordx4 {v(vT0, 4)}, {v(SP + 2)}, {WS}, s39 offen sc1\ns_mov_b64 exec, -1',
                   f's_mov_b32 s39, {G2}', f's_mul_i32 s47, s{sJ}, 245760', f's_mul_i32 s36, s{sW}, 61440',
                   's_add_u32 s47, s47, s36', f's_add_u32 s47, s47, {W2F + 20 * 1024}']
            self.w2n = 0
            if cfg.late:
                spread(after, self.nc_stores, cfg.nc_at, 1)
                spread(after, [f'v_mov_b32 {v(SP + 3)}, {v(vG2)}'], cfg.nc_at + 8)
                n_in = 0
            else:
                spread(after, g2, 0, 1, 4)
                g2ld = f'buffer_load_dword {v(vT0)}, {v(vG2)}, {WS}, s39 offen sc1'
                spread(after, [g2ld], cfg.g2[0])
                spread(after, [self.late_check(g2ld, f'v_cmp_ne_u32 vcc, s{sVAL}, {v(vT0)}')], cfg.g2[1])
                n_in = (160 - cfg.g2[1] - 1) // 3
                fill(after, [load_wo(i) for i in range(min(n_in, 12))], cfg.g2[1] + 1, 160)
            if cfg.prew:
                spread(after, [f's_add_u32 s36, s24, 0x100000\nv_mov_b32 {v(vT3)}, s{sTAG}\n'
                               f'buffer_store_dwordx4 {v(vT0, 4)}, {v(vKVS)}, {WS}, s24 offen sc1 #nc',
                               f'buffer_store_dwordx4 {v(vT0, 4)}, {v(vKVS)}, {WS}, s36 offen sc1 #nc'], cfg.nc_at + 6, 1)
                assert cfg.late
            spread(after, ['s_barrier'], 159)
            if L == cfg.fine:
                for g in (0, 23, 55, 87, 119, 140):
                    spread(after, self.capture(lambda: self.stamp(f'p1_{L}_g{g}')), g, 0)
            self.weave(mf, after)
            self.stamp(f'p1_{L}_gemm')
            e(f's_mul_i32 s37, s{sC}, 61440')
            e(f's_mul_i32 s38, s{sW}, 15360')
            e('s_add_u32 s37, s37, s38')
            e(f's_add_u32 s37, s37, {W1F}')
            e(f's_add_u32 s38, s38, {LDS_W1}')
            self.w1q = []
            for i in range(15):
                t = f's_mov_b32 m0, s38\nbuffer_load_dwordx4 {v(vL16)}, {WS}, s37 offen offset:{(i % 4) * 1024} sc1 lds'
                self.w1q.append(t + ('\ns_add_u32 s37, s37, 4096\ns_add_u32 s38, s38, 4096' if i % 4 == 3 else ''))
            for q in range(4):
                e(self.mean_term(q % 2, q // 2))
            if cfg.late:
                self.kpart(0, True)
                for x in g2[:9] + ['@wait nc', 's_barrier'] + g2[9:]:
                    e(x)
                body = self.capture(lambda: self.kpart(1, True))
            else:
                body = self.capture(lambda: [self.kpart(0, True), self.kpart(1, True)])
            extra = [f'buffer_load_dwordx2 {v(SP, 2)}, {v(vOM)}, {WS}, s20 offen sc1 {cfg.ntt}',
                     f'buffer_load_dwordx2 {v(SP, 2)}, {v(vOM)}, {WS}, s21 offen sc1 {cfg.ntt}',
                     f'buffer_load_dwordx2 {v(SP, 2)}, {v(vOR)}, {WS}, s22 offen sc1 {cfg.ntt}']
            wo_next = cfg.wo0 if cfg.late else 20
            extra += [load_wo(i) for i in range(min(n_in, 12), wo_next)]
            if not cfg.late:
                extra += self.side(0)
        else:
            for n in range(80):
                for T in range(2):
                    c = v(acc[T][n // 40], 16) if n else '0'
                    pre = f'@need {v(wreg(2 * n), 4)} {v(wreg(2 * n + 1), 4)} {v(areg(n), 4)}\n' if T == 0 else ''
                    mf.append(f'{pre}{M32} {v(acc[T][n // 40], 16)}, {v(wreg(2 * n + T), 4)}, {v(areg(n), 4)}, {c}')
            e(f'v_lshrrev_b32 {v(vT1)}, 2, {v(vL16)}')
            e(f'v_and_b32 {v(vT1)}, 124, {v(vT1)}')
            for n in range(DW):
                e(load_w(n))
            self.flag_line(33, 0, sSW)
            self.poll(33, vT1, 4 * L + F_X)
            self.stamp(f'p1_{L}_go')
            for n in range(cfg.d1):
                e(load_a(n))
            spread(after, [load_a(n) for n in range(cfg.d1, 80)], 0, 2)
            spread(after, stat_ld, 9, 6)
            spread(after, [load_w(n) for n in range(DW, 160)], 0, 1)
            pour(mf, after, self.capture(late_addresses), 2, 44, 5)
            pour(mf, after, self.capture(stats), 44, 70, 5)
            spread(after, [self.mean_term(0, 1, True), self.mean_term(1, 1, True)], 72, 2)
            spread(after, [self.mean_term(0, 0), self.mean_term(1, 0)], 82, 1)
            tail = self.capture(lambda: self.kpart(0, False))
            if cfg.qa:
                tail += self.capture(lambda: self.softmax(A10, STT, A10, False))
            pour(mf, after, tail, 86, 160, cfg.cap1)
            if L == cfg.fine:
                for g in (0, 12, 28, 44, 60, 79, 100, 120, 140):
                    spread(after, self.capture(lambda: self.stamp(f'p1_{L}_g{g}')), g, 0)
            self.weave(mf, after)
            self.stamp(f'p1_{L}_gemm')
            body = self.capture(lambda: self.kpart(1, True))
            extra = [load_wo(i) for i in range(cfg.wo1)]
            wo_next = cfg.wo1
        after = {}
        fill(after, extra, 1, len(body) - 8)
        self.weave(body, after)

        KV2 = A00
        e(f's_mul_i32 s33, s{sW}, 5120')
        e(f'v_add_u32 {v(vT0)}, s33, {v(vB3)}')
        e(f's_lshl_b32 s33, s{sW}, 10')
        e(f'v_add_u32 {v(vT1)}, s33, {v(vB3)}')
        e(f's_lshl_b32 s33, s{sW}, 2')
        e(f'v_add_u32 {v(vT2)}, s33, {v(vB3)}')
        e(f's_add_u32 s{sVAL}, s{sTAG}, {SEQ_KV + L}')
        e(f'v_mov_b32 {v(D16 + 3)}, s{sVAL}')
        for q in range(4):
            e(f'ds_write_b128 {v(vT0)}, {v(KV1 + 4 * q, 4)} offset:{EXO + 1024 * q}')
        e(f'ds_write_b128 {v(vT0)}, {v(KV2, 4)} offset:{EXO + 4096}')
        e('s_waitcnt lgkmcnt(0)')
        e('s_barrier')
        for src in range(4):
            e(f'ds_read_b128 {v(E + 4 * src, 4)}, {v(vT1)} offset:{EXO + 5120 * src}')
            e(f'ds_read_b32 {v(E + 16 + src)}, {v(vT2)} offset:{EXO + 5120 * src + 4096}')
        for h in range(2):
            e(f'v_pk_add_f32 {v(E + 2 * h, 2)}, {v(E + 2 * h, 2)}, {v(E + 4 + 2 * h, 2)}')
        for h in range(2):
            e(f'v_pk_add_f32 {v(E + 8 + 2 * h, 2)}, {v(E + 8 + 2 * h, 2)}, {v(E + 12 + 2 * h, 2)}')
        e(f'v_pk_add_f32 {v(E + 16, 2)}, {v(E + 16, 2)}, {v(E + 18, 2)}')
        for h in range(2):
            e(f'v_pk_add_f32 {v(E + 2 * h, 2)}, {v(E + 2 * h, 2)}, {v(E + 8 + 2 * h, 2)}')
        e(f'v_add_f32 {v(E + 16)}, {v(E + 16)}, {v(E + 17)}')
        e(f'v_cvt_pk_bf16_f32 {v(D16)}, {v(E)}, {v(E + 1)}')
        e(f'v_cvt_pk_bf16_f32 {v(D16 + 1)}, {v(E + 2)}, {v(E + 3)}')
        e(f'v_cvt_pk_bf16_f32 {v(D16 + 2)}, {v(E + 16)}, 0')
        e(f'buffer_store_dwordx4 {v(D16, 4)}, {v(vKVS)}, {WS}, s24 offen sc1')
        e('s_barrier')
        self.stamp(f'p1_{L}_kvpub')
        G = A00
        gld = [f'buffer_load_dwordx4 {v(G + 4 * x, 4)}, {v(vKVL)}, {WS}, s{25 + x} offen sc1' for x in range(7)]
        body = self.capture(lambda: [self.softmax(acc[1][mt], STT + 4 * mt, acc[1][mt], True)
                                     for mt in range(1 if L and cfg.qa else 0, 2)])
        extra = [load_wo(i) for i in range(wo_next, 25)]
        if L == 0 and cfg.late:
            g2ld = f'buffer_load_dword {v(SP + 2)}, {v(SP + 3)}, {WS}, s39 offen sc1'
            e(f's_add_u32 s36, s{sTAG}, {SEQ_G2}')
            extra = [g2ld] + extra + [self.late_check(g2ld, f'v_cmp_ne_u32 vcc, s36, {v(SP + 2)}')]
        if L == 0:
            extra += self.side(1)
        after = {}
        fill(after, extra, 0, len(body) - cfg.gat[L])
        self.weave(body, after)
        if L == 0:
            self.rowmajor(33, 34, vT0, vT1, vT2)
            e(f'buffer_load_dwordx4 {v(SP, 4)}, {v(vT0)}, {s_(S_X, 4)}, s33 offen')
            e(f'buffer_load_dwordx4 {v(SP + 4, 4)}, {v(vT0)}, {s_(S_X, 4)}, s33 offen offset:64')
            e(f'buffer_load_dwordx2 {v(SP + 8, 2)}, {v(vT1)}, {s_(S_X, 4)}, s34 offen')
        self.stamp(f'p1_{L}_smq')
        e(f's_lshr_b32 s33, s{sW}, 1')
        e('s_lshl_b32 s33, s33, 10')
        e(f's_and_b32 s34, s{sW}, 1')
        e('s_lshl_b32 s34, s34, 3')
        e('s_add_u32 s33, s33, s34')
        e(f'v_add_u32 {v(E + 10)}, s33, {v(vB3)}')
        e(f'v_lshrrev_b32 {v(E + 11)}, 1, {v(vL16)}')
        e(f'v_add_u32 {v(E + 11)}, {LDS_EX + 2048}, {v(E + 11)}')
        e(f's_lshl_b32 s33, s{sW}, 1')
        e(f'v_add_u32 {v(E + 12)}, s33, {v(E + 11)}')
        lab = self.label('kv')
        e(f's_mov_b32 s{sCNT}, 0')
        e(f'{lab}:')
        for x in gld:
            e(x)
        e(f's_add_u32 s{sCNT}, s{sCNT}, 1')
        e(f's_cmp_gt_u32 s{sCNT}, 0x40000')
        e('s_cbranch_scc1 Lend')
        for i in range(5):
            if i % 2 == 0:
                e(f'v_lshlrev_b32 {v(E + i)}, 16, {v(D16 + i // 2)}')
            else:
                e(f'v_and_b32 {v(E + i)}, 0xffff0000, {v(D16 + i // 2)}')
        e(f'v_mov_b32 {v(vT0)}, 0')
        for x in range(7):
            for i in range(5):
                e(f'v_dot2c_f32_bf16 {v(E + i)}, s{sHI if i % 2 else sLO}, {v(G + 4 * x + i // 2)}')
            e(f'v_bitop3_b32 {v(vT0)}, {v(vT0)}, {v(G + 4 * x + 3)}, s{sVAL} bitop3:0xf6')
        e(f'v_cmp_ne_u32 vcc, 0, {v(vT0)}')
        e(f's_cbranch_vccnz {lab}')
        self.stamp(f'p1_{L}_kvgot')
        if L == 0:
            for x in self.side(2):
                e(x)
        e(f'v_cvt_pk_bf16_f32 {v(E + 6)}, {v(E)}, {v(E + 1)}')
        e(f'v_cvt_pk_bf16_f32 {v(E + 7)}, {v(E + 2)}, {v(E + 3)}')
        e(f'v_cvt_pk_bf16_f32 {v(E + 8)}, {v(E + 4)}, {v(E + 4)}')
        e(f'ds_write_b64 {v(E + 10)}, {v(E + 6, 2)} offset:{EXO}')
        e(f'ds_write_b16 {v(E + 12)}, {v(E + 8)}')
        e('s_waitcnt lgkmcnt(0)')
        e('s_barrier')
        e(f'ds_read_b128 {v(D16, 4)}, {v(vB3)} offset:{EXO}')
        e(f'ds_read_b128 {v(D16 + 4, 4)}, {v(vB3)} offset:{EXO + 1024}')
        e(f'ds_read_b64 {v(D16 + 8, 2)}, {v(E + 11)}')
        for mt in range(2):
            O, Q = acc[0][mt], acc[1][mt]
            e(f'{M32} {v(O, 16)}, {v(D16, 4)}, {v(Q, 4)}, 0')
            e(f'{M32} {v(O, 16)}, {v(D16 + 4, 4)}, {v(Q + 4, 4)}, {v(O, 16)}')
        for mt in range(2):
            O, Q = acc[0][mt], acc[1][mt]
            e(f'{M32H} {v(O, 16)}, {v(D16 + 8, 2)}, {v(Q + 8, 2)}, {v(O, 16)}')
        for mt in range(2):
            O, P = acc[0][mt], E + 4 * mt
            e(f'v_add_f32 {v(O + 14)}, {hex(EPS_DEN)}, {v(O + 14)}')
            e(f'v_rcp_f32 {v(O + 14)}, {v(O + 14)}')
            for i in range(5):
                e(f'v_pk_mul_f32 {v(O + 4 + 2 * i, 2)}, {v(O + 4 + 2 * i, 2)}, {v(O + 14, 2)} op_sel_hi:[1,0]')
            for i in range(5):
                e(f'v_cvt_pk_bf16_f32 {v(P + i if i < 4 else E + 8 + mt)}, {v(O + 4 + 2 * i)}, {v(O + 5 + 2 * i)}')
            e(f'buffer_store_dwordx4 {v(P, 4)}, {v(vOM)}, {WS}, s{20 + mt} offen {self.st} #o{L}')
        e(f'v_permlane32_swap_b32 {v(E + 8)}, {v(E + 9)}')
        e(f'buffer_store_dwordx2 {v(E + 8, 2)}, {v(vOR)}, {WS}, s22 offen {self.st} #o{L}')
        e(self.flag_store(23, 4 * L + F_O, vT0, f'o{L}'))
        self.stamp(f'p1_{L}_end')
        if L == 0:
            for x in self.side(3):
                e(x)
            self.unpack(R, SP, 10)

    def k_addresses(self, d, nk, abase, gstride, mstride):
        e = self.e
        e(f's_mul_i32 s{d + 4}, s{sSG}, {gstride}')
        e(f's_add_u32 s{d + 4}, s{d + 4}, {abase}')
        e(f's_mul_i32 s{d + 5}, s{sW}, {nk * 1024}')
        e(f's_add_u32 s{d + 4}, s{d + 4}, s{d + 5}')
        for s in range(4):
            e(f's_add_u32 s{d + s}, s{sW}, {s + 1}')
            e(f's_and_b32 s{d + s}, s{d + s}, 3')
            e(f's_mul_i32 s{d + s}, s{d + s}, {mstride}')
            e(f's_add_u32 s{d + s}, s{d + s}, s{d + 4}')
        for s in range(3):
            e(f's_sub_u32 s{d + 4 + s}, s{sW}, {s + 1}')
            e(f's_and_b32 s{d + 4 + s}, s{d + 4 + s}, 3')
            e(f's_mul_i32 s{d + 4 + s}, s{d + 4 + s}, 5120')

    def k_body(self, nk, wreg, areg, X, init3):
        mf = []
        for s in range(4):
            acc = X[s % 2]
            for k in range(nk):
                for t in range(5):
                    c = v(acc + 4 * t, 4) if (k or (s == 3 and init3)) else '0'
                    pre = f'@need {v(areg(s * nk + k), 4)}\n' if t == 0 else ''
                    mf.append(f'{pre}{M16} {v(acc + 4 * t, 4)}, {wreg(k, t)}, {v(areg(s * nk + k), 4)}, {c}')
        return mf

    def k_exchange(self, nk, d, X, Z, pos, after, base, vw, vr):
        wr, r0, a0, a1 = pos
        adds = []
        for s in range(1, 4):
            b, prev = base + s * nk * 5, X[(s - 1) % 2]
            spread(after, ['s_waitcnt lgkmcnt(0)\ns_barrier'], b + wr[0] - 1)
            for t in range(5):
                spread(after, [f'ds_write_b128 {v(vw)}, {v(prev + 4 * t, 4)} offset:{EXO + 1024 * t}'], b + wr[t])
            spread(after, [f'v_add_u32 {v(vr)}, s{d + 3 + s}, {v(vB3)}'], b + r0 - 1)
            spread(after, ['s_waitcnt lgkmcnt(0)\ns_barrier'], b + r0)
            spread(after, [f'ds_read_b128 {v(Z + 4 * t, 4)}, {v(vr)} offset:{EXO + 1024 * t}' for t in range(5)], b + r0 + 1, 1)
            if s < 3 or a1 <= nk * 5:
                adds.append(([f'v_add_f32 {v(R + q)}, {v(R + q)}, {v(Z + q)}' for q in range(20)], b + a0, b + a1))
        return adds

    def k_load(self, i, nk, d, areg):
        s, k = divmod(i, nk)
        t = f'buffer_load_dwordx4 {v(areg(i), 4)}, {v(vL16)}, {WS}, s{d + s} offen offset:{(k % 4) * 1024} sc1'
        return t + (f'\ns_add_u32 s{d + s}, s{d + s}, 4096' if k % 4 == 3 and k + 1 < nk else '')

    def add_tile(self, src):
        for q in range(10):
            self.e(f'v_pk_add_f32 {v(R + 2 * q, 2)}, {v(R + 2 * q, 2)}, {v(src + 2 * q, 2)}')

    def stats_addr(self, d, base):
        e = self.e
        e(f's_lshl_b32 s{d}, s{sSG}, 2')
        e(f's_add_u32 s{d}, s{d}, s{sW}')
        e(f's_lshl_b32 s{d}, s{d}, 2')
        e(f's_lshr_b32 s{d + 1}, s{sJ}, 2')
        e(f's_add_u32 s{d}, s{d}, s{d + 1}')
        e(f's_lshl_b32 s{d}, s{d}, 6')
        e(f's_and_b32 s{d + 1}, s{sJ}, 3')
        e(f's_add_u32 s{d}, s{d}, s{d + 1}')
        e(f's_lshl_b32 s{d}, s{d}, 2')
        e(f's_add_u32 s{d}, s{d}, {base}')
        e(f's_lshl_b32 s{d + 1}, s{sSG}, 3')
        e(f's_add_u32 s{d + 1}, s{d + 1}, s{sJ}')
        e(f's_lshl_b32 s{d + 1}, s{d + 1}, 2')
        e(f's_add_u32 s{d + 1}, s{d + 1}, s{sW}')
        e(f's_lshl_b32 s{d + 1}, s{d + 1}, 2')
        e(f's_add_u32 s{d + 1}, s{d + 1}, {FL}')

    def publish_tile(self, P, d, vpair, step, vsingle, seq):
        e, st, t = self.e, self.st, P + 12
        for q in range(12):
            e(f'v_cvt_pk_bf16_f32 {v(P + q)}, {v(R + 2 * (q if q < 10 else q - 2))}, {v(R + 2 * (q if q < 10 else q - 2) + 1)}')
            if q == 3:
                e(f'buffer_store_dwordx4 {v(P, 4)}, {v(vpair)}, {WS}, s{d} offen {st} #x{seq}')
            if q == 7:
                e(f'buffer_store_dwordx4 {v(P + 4, 4)}, {v(vpair)}, {WS}, s{d} offen offset:{step} {st} #x{seq}')
        e(f'v_pk_add_f32 {v(t, 2)}, {v(R, 2)}, {v(R + 2, 2)}')
        e(f'v_pk_mul_f32 {v(t + 2, 2)}, {v(R, 2)}, {v(R, 2)}')
        e(f'v_permlane16_swap_b32 {v(P + 8)}, {v(P + 10)}')
        e(f'v_permlane16_swap_b32 {v(P + 9)}, {v(P + 11)}')
        e(f'buffer_store_dwordx4 {v(P + 8, 4)}, {v(vsingle)}, {WS}, s{d + 1} offen {st} #x{seq}')
        for i in range(1, 10):
            if i > 1:
                e(f'v_pk_add_f32 {v(t, 2)}, {v(t, 2)}, {v(R + 2 * i, 2)}')
            e(f'v_pk_fma_f32 {v(t + 2, 2)}, {v(R + 2 * i, 2)}, {v(R + 2 * i, 2)}, {v(t + 2, 2)}')
        e(f'v_add_f32 {v(t)}, {v(t)}, {v(t + 1)}')
        e(f'v_add_f32 {v(t + 2)}, {v(t + 2)}, {v(t + 3)}')
        e(f'v_permlane32_swap_b32 {v(t)}, {v(t + 2)}')
        e(f'v_add_f32 {v(t + 1)}, {v(t)}, {v(t + 2)}')
        e(f'v_add_f32 {v(t)}, {v(t)}, {v(t + 2)}')
        e(f'v_permlane16_swap_b32 {v(t)}, {v(t + 1)}')
        e(f'v_add_f32 {v(t)}, {v(t)}, {v(t + 1)}')
        e(f'buffer_store_dword {v(t)}, {v(vST)}, {WS}, s{d + 2} offen {st} #x{seq}')
        e(self.flag_store(d + 3, seq, vT0, f'x{seq}'))

    def p2(self, L):
        e, cfg = self.e, self.cfg
        wreg = lambda k, t: v(WO_E + 4 * (5 * k + t), 4) if k < 4 else v(WO_L + 4 * t, 4)
        areg = lambda i: 44 + 4 * (i % 10)
        self.k_addresses(16, 5, self.act(L, OF_O), self.ostride(), 20480)
        self.flag_line(23, 1, sSG)
        e(f's_lshl_b32 s24, s{sW}, 5')
        e('s_add_u32 s23, s23, s24')
        e(f'v_lshrrev_b32 {v(vT1)}, 2, {v(vL16)}')
        e(f'v_and_b32 {v(vT1)}, 28, {v(vT1)}')
        self.poll(23, vT1, 4 * L + F_O)
        self.stamp(f'p2_{L}_go')
        for i in range(cfg.d2):
            e(self.k_load(i, 5, 16, areg))
        e(f's_mul_i32 s24, s{sW}, 5120')
        e(f'v_add_u32 {v(vT1)}, s24, {v(vB3)}')
        e(f's_lshl_b32 s24, s{sSG}, 2')
        e(f's_add_u32 s24, s24, s{sW}')
        e('s_mul_i32 s24, s24, 20480')
        e(f's_add_u32 s24, s24, {self.act(L, X1F_O)}')
        e(f's_lshl_b32 s25, s{sKSS}, 1')
        e(f's_add_u32 s25, s25, s{sPAR}')
        e('s_lshl_b32 s25, s25, 9')
        e('s_add_u32 s25, s25, s24')
        e(f's_lshl_b32 s26, s{sKSA}, 10')
        e('s_add_u32 s24, s24, s26')
        self.stats_addr(26, self.act(L, ST1_O))
        after = {}
        mf = self.k_body(5, wreg, areg, (84, 104), False)
        adds = self.k_exchange(5, 16, (84, 104), 124, cfg.kp2, after, 0, vT1, vT2)
        spread(after, [self.k_load(i, 5, 16, areg) for i in range(cfg.d2, 20)], 0, 5)
        for items, lo, hi in adds:
            pour(mf, after, items, lo, hi, 2)
        if L == 0:
            rest = self.side(4) + self.w1q
            if rest:
                fill(after, rest, 2, 70)
            spread(after, [f'buffer_load_dwordx2 {v(SP, 2)}, {v(vL16)}, {WS}, s24 offen sc1 {cfg.ntt}',
                           f'buffer_load_dwordx2 {v(SP, 2)}, {v(vL16)}, {WS}, s24 offen offset:1024 sc1 {cfg.ntt}',
                           f'buffer_load_dwordx2 {v(SP, 2)}, {v(vXS1)}, {WS}, s25 offen sc1 {cfg.ntt}'], 5 * (20 - cfg.d2), 1)
        self.weave(mf, after)
        self.add_tile(124)
        self.add_tile(104)
        self.stamp(f'p2_{L}_gemm')
        self.publish_tile(44, 24, vL16, 1024, vXS1, 4 * L + F_X1)
        self.stamp(f'p2_{L}_end')

    def p34(self, L):
        e, cfg = self.e, self.cfg
        ACC, WB, SB, PK, RING, X0, X1, T8 = 44, 92, 128, 144, 160, 208, 228, 248
        acc = lambda lt, n: ACC + 4 * (3 * n + lt)
        wreg = lambda n: WB + (n % 9) * 4
        areg = lambda n: RING + (n % 12) * 4
        if L == 0:
            e('s_barrier')
            e(self.colsum_dma(CS1, 16, vT1, 'cs1'))
            for x in self.w2_loads(cfg.w2split[5]):
                e(x)
        e(f's_mul_i32 s24, s{sSW}, 81920')
        e(f's_add_u32 s24, s24, {self.act(L, X1F_O)}')
        e(f's_lshl_b32 s25, s{sSW}, 12')
        e(f's_add_u32 s25, s25, {self.act(L, ST1_O)}')
        for n in range(4):
            e(f's_add_u32 s{28 + n}, s{sGI}, {n + 1}')
            e(f's_and_b32 s{28 + n}, s{28 + n}, 3')
            e(f's_mul_i32 s{16 + n}, s{28 + n}, 20480')
            e(f's_add_u32 s{16 + n}, s{16 + n}, s24')
            e(f's_lshl_b32 s{20 + n}, s{28 + n}, 10')
            e(f's_add_u32 s{20 + n}, s{20 + n}, s25')
        e(f'v_lshrrev_b32 {v(vT1)}, 2, {v(vL16)}')
        e(f'v_and_b32 {v(vT1)}, 124, {v(vT1)}')

        def load_w(n):
            b, off = lds(LDS_W1 + (n % 60) * 1024)
            return f'ds_read_b128 {v(wreg(n), 4)}, {v(b)} offset:{off}'

        def load_a(n):
            if n >= 80:
                return self.k_load(n - 80, 12, 36, lambda i: areg(80 + i))
            h, r = divmod(n, 40)
            ks, m = divmod(r, 2)
            t = f'buffer_load_dwordx4 {v(areg(n), 4)}, {v(vL16)}, {WS}, s{16 + 2 * h + m} offen offset:{(ks % 4) * 1024} sc1'
            return t + (f'\ns_add_u32 s{16 + 2 * h + m}, s{16 + 2 * h + m}, 4096' if ks % 4 == 3 else '')
        DW = 5
        for n in range(DW):
            e(load_w(n))
        self.flag_line(24, 0, sSW)
        self.poll(24, vT1, 4 * L + F_X1)
        self.stamp(f'p3_{L}_go')
        for n in range(cfg.d3):
            e(load_a(n))

        def addresses():
            e = self.e
            e(f's_mul_i32 s32, s{sSW}, 196608')
            e(f's_add_u32 s32, s32, {self.act(L, HF_O)}')
            e(f's_lshr_b32 s33, s{sC}, 1')
            e('s_mul_i32 s33, s33, 3072')
            e('s_add_u32 s32, s32, s33')
            e(f's_lshl_b32 s33, s{sPAR}, 11')
            e('s_add_u32 s33, s33, s32')
            e(f'v_bfe_u32 {v(vT2)}, {v(vL16)}, 8, 1')
            e(f'v_cmp_eq_u32 vcc, 1, {v(vT2)}')
            e(f'v_and_b32 {v(vT2)}, 0x1ff, {v(vXS1)}')
            for n in range(4):
                e(f's_mul_i32 s{28 + n}, s{28 + n}, 49152')
                if n % 2 == 0:
                    e(f'v_mov_b32 {v(T8 + n // 2)}, s{28 + n}')
                else:
                    e(f'v_mov_b32 {v(vT3)}, s{28 + n}')
                    e(f'v_cndmask_b32 {v(T8 + n // 2)}, {v(T8 + n // 2)}, {v(vT3)}, vcc')
                    e(f'v_add_u32 {v(T8 + n // 2)}, {v(T8 + n // 2)}, {v(vT2)}')
                e(f's_add_u32 s{28 + n}, s{28 + n}, s33')
            e(f's_lshl_b32 s33, s{sPAR}, 9')
            e('s_add_u32 s32, s32, s33')
            self.flag_line(33, 1, sSW)
            e(f's_lshl_b32 s34, s{sC}, 2')
            e('s_add_u32 s33, s33, s34')
            e('s_add_u32 s34, s33, 4096')
            self.k_addresses(36, 12, self.act(L, HF_O), 196608, 49152)
            self.flag_line(35, 1, sSG)
            e(f's_lshl_b32 s43, s{sW}, 5')
            e('s_add_u32 s35, s35, s43')
            e(f'v_lshrrev_b32 {v(T8 + 2)}, 2, {v(vL16)}')
            e(f'v_and_b32 {v(T8 + 2)}, 28, {v(T8 + 2)}')
            e(f's_mul_i32 s43, s{sW}, 5120')
            e(f'v_add_u32 {v(T8 + 3)}, s43, {v(vB3)}')
            e('s_mov_b32 s44, 0')
            e('s_mov_b32 s45, 0xffff0000')
            e(f's_add_u32 s{sVAL}, s{sTAG}, {4 * L + F_H}')

        def stats(h):
            e = self.e
            a, b = SB + 8 * h, SB + 8 * h + 4
            self.pair_stats(a, b)
            e(f'v_mul_f32 {v(a + 1)}, {v(a + 1)}, {v(a + 2)}')
            for q in range(3):
                e(f'v_mov_b32 {v(b + q)}, {v(a + q)}')
            for q in range(3):
                e(f'v_permlane16_swap_b32 {v(a + q)}, {v(b + q)}')
            for x in (a, b):
                e(f'v_cndmask_b32 {v(vT2)}, {v(x)}, {v(x + 1)}, s[44:45]')
                self.hi_lo(x, vT2, x + 3)

        def cs():
            e = self.e
            self.colsum(PK, vT3)
            e(f'v_lshrrev_b32 {v(PK + 1)}, 8, {v(vL16)}')
            for lt in range(3):
                e(f'v_cmp_eq_u32 vcc, {lt}, {v(PK + 1)}')
                e(f'v_accvgpr_read_b32 {v(PK + 3)}, {a_(aB1 + lt)}')
                e(f'v_cndmask_b32 {v(PK + 2)}, 0, {v(PK)}, vcc')
                e(f'v_cndmask_b32 {v(PK + 2)}, {v(PK + 2)}, {v(PK + 3)}, s[44:45]')
                e(f'v_accvgpr_write_b32 {a_(aC1 + 2 * lt)}, {v(PK + 2)}')
                e(f'v_accvgpr_write_b32 {a_(aC1 + 2 * lt + 1)}, {v(PK + 2)}')

        def finish(h):
            e, st = self.e, (self.st or (cfg.hs if L == 1 else ''))
            for m in range(2):
                for lt in range(3):
                    n = 2 * h + m
                    e(f'{M16H} {v(acc(lt, n), 4)}, {a_(aC1 + 2 * lt, 2)}, {v(SB + 4 * n, 2)}, {v(acc(lt, n), 4)}')
            for m in range(2):
                n = 2 * h + m
                a = acc(0, n)
                for q in range(6):
                    for z in range(2):
                        x = a + 2 * q + z
                        e(f'v_mul_f32 {v(x)}, {v(x)}, {v(SB + 4 * n + 2)}')
                        e(f'v_mul_f32 {v(x)}, {v(x)}, abs({v(x)})')
                    dst = PK + 4 * m + q if q < 4 else PK + 8 + 2 * m + q - 4
                    e(f'v_cvt_pk_bf16_f32 {v(dst)}, {v(a + 2 * q)}, {v(a + 2 * q + 1)}')
                    e(f'v_pk_max_i16 {v(dst)}, {v(dst)}, 0')
                    if q == 3:
                        e(f'buffer_store_dwordx4 {v(PK + 4 * m, 4)}, {v(vL16)}, {WS}, s{28 + n} offen {st} #h{h}{L}')
            e(f'v_permlane16_swap_b32 {v(PK + 8)}, {v(PK + 10)}')
            e(f'v_permlane16_swap_b32 {v(PK + 9)}, {v(PK + 11)}')
            e(f'buffer_store_dwordx4 {v(PK + 8, 4)}, {v(T8 + h)}, {WS}, s32 offen offset:1024 {st} #h{h}{L}')

        mf, after = [], {}
        for h in range(2):
            for ks in range(20):
                for m in range(2):
                    for lt in range(3):
                        n, wn = 2 * h + m, 60 * h + 3 * ks + lt
                        c = v(acc(lt, n), 4) if ks else '0'
                        pre = ''
                        if lt == 0:
                            regs = [v(areg(40 * h + 2 * ks + m), 4)] + ([v(wreg(wn + q), 4) for q in range(3)] if m == 0 else [])
                            pre = '@need ' + ' '.join(regs) + '\n'
                        mf.append(f'{pre}{M16} {v(acc(lt, n), 4)}, {v(wreg(wn), 4)}, {v(areg(40 * h + 2 * ks + m), 4)}, {c}')
        mf += self.k_body(12, lambda k, t: a_(4 * (5 * k + t), 4), lambda i: areg(80 + i), (X0, X1), True)
        spread(after, [load_w(n) for n in range(DW, 120)], 1, 2)
        spread(after, [f'buffer_load_dwordx4 {v(SB + 4 * n, 4)}, {v(vSTL)}, {WS}, s{20 + n} offen sc1' for n in range(4)], 14, 6)
        adds = self.k_exchange(12, 36, (X0, X1), ACC, cfg.kp4, after, 240, T8 + 3, vT1)
        need = lambda n: 3 * n if n < 80 else 240 + 5 * (n - 80)
        D = cfg.d3
        pl = f'buffer_load_dword {v(vT0)}, {v(T8 + 2)}, {WS}, s35 offen sc1'
        pc = f'v_cmp_ne_u32 vcc, s{sVAL}, {v(vT0)}'
        spread(after, [pl], cfg.ga[0])
        spread(after, [self.late_check(pl, pc) + '\ns_add_u32 s35, s35, 4096'], cfg.ga[1])
        spread(after, [pl], cfg.gb[0])
        spread(after, [self.late_check(pl, pc)], cfg.gb[1])
        for n in range(D, 128):
            at = need(n - D)
            if n >= 80:
                at = max(at, cfg.ga[1] + n - 80)
            if n >= 104:
                at = max(at, cfg.gb[1] + n - 104)
            spread(after, [load_a(n)], at)
        spread(after, [self.flag_store(33, 4 * L + F_H, vT3, f'h0{L}')], cfg.fa[2])
        spread(after, [self.flag_store(34, 4 * L + F_H, vT3, f'h1{L}')], cfg.fb[2])
        BR = X1 + 10

        def bias_addr():
            e = self.e
            e(f'v_lshrrev_b32 {v(T8 + 4)}, 8, {v(vL16)}')
            e(f'v_lshlrev_b32 {v(T8 + 5)}, 3, {v(T8 + 4)}')
            e(f'v_lshlrev_b32 {v(T8 + 4)}, 4, {v(T8 + 4)}')
            e(f's_lshl_b32 s20, s{sKSA}, 6')
            e(f's_lshl_b32 s21, s{sKSS}, 1')
            e(f's_add_u32 s21, s21, s{sPAR}')
            e('s_lshl_b32 s21, s21, 5')
            if L == 1:
                self.rowmajor(24, 25, T8 + 6, T8 + 7, vT2)
            else:
                self.xf_offsets(24, L + 1)
                self.stats_addr(26, self.act(L + 1, ST_O))
        if L == 0:
            spread(after, ['@wait cs1\ns_barrier'], 40)
            rest = self.w2_loads(60)
            if rest:
                fill(after, rest, cfg.w2r[0], cfg.w2r[1])
            for h in range(2):
                spread(after, [f'buffer_load_dwordx2 {v(X0, 2)}, {v(vL16)}, {WS}, s{28 + 2 * h + m} offen sc1 {cfg.ntt}' for m in range(2)] +
                       [f'buffer_load_dwordx2 {v(X0, 2)}, {v(T8 + h)}, {WS}, s32 offen offset:1024 sc1 {cfg.ntt}'], 80 + 110 * h, 3)
        pour(mf, after, self.capture(addresses), 0, 40, cfg.cap3)
        if L == 0:
            pour(mf, after, self.capture(cs), 41, 75, cfg.cap3)
        pour(mf, after, self.capture(lambda: stats(0)), 76, 118, cfg.cap3)
        pour(mf, after, self.capture(lambda: finish(0)), cfg.fa[0], cfg.fa[1], cfg.cap3)
        pour(mf, after, self.capture(lambda: stats(1)) + self.capture(bias_addr), cfg.fa[1], 236, cfg.cap3)
        spread(after, [f'buffer_load_dwordx4 {v(WB, 4)}, {v(T8 + 4)}, {B2}, s20 offen',
                       f'buffer_load_dwordx4 {v(WB + 4, 4)}, {v(T8 + 4)}, {B2}, s20 offen offset:64',
                       f'buffer_load_dwordx2 {v(WB + 8, 2)}, {v(T8 + 5)}, {B2}, s21 offen'], 341, 5)
        pour(mf, after, self.capture(lambda: finish(1)), cfg.fb[0], cfg.fb[1], 2)
        pour(mf, after, self.capture(lambda: self.unpack(X1, WB, 10)), 360 + cfg.kp4[1] + 1, 419, 2)
        for items, lo, hi in adds:
            pour(mf, after, items, lo, hi, 2)
        if L == 0 and cfg.code2:
            pc = self.label('pc')
            spread(after, [f's_getpc_b64 s[22:23]\n{pc}:\ns_lshl_b32 s16, s{sC}, 2\ns_add_u32 s16, s16, s{sW}\ns_lshl_b32 s16, s16, 8\n'
                           f'v_lshl_add_u32 {v(vT2)}, {v(vL16)}, 3, s16\nv_min_u32 {v(vT2)}, {self.end_label}-{pc}, {v(vT2)}\n'
                           f's_mov_b64 exec, 3\nglobal_load_dword {v(vT2)}, {v(vT2)}, s[22:23]\ns_mov_b64 exec, -1'], cfg.code2)
        if L == 1 and cfg.wb:
            skip, join = self.label('nowb'), self.label('wb')
            spread(after, [f's_or_b32 s16, s{sC}, s{sW}\ns_cmp_eq_u32 s16, 0\ns_cbranch_scc1 {skip}\n'
                           f'buffer_load_dword {v(vT0)}, {v(vXS1)}, {B2}, 0 offen\n{join}:'], cfg.wb)
            self.tails.append(self.capture(lambda: self.e(f'{skip}:\nbuffer_wbl2 sc1\ns_branch {join}')))
        if L + 2 == cfg.fine:
            for g in (0, 60, 119, 180, 239, 270, 299, 359, 419):
                spread(after, self.capture(lambda: self.stamp(f'p3_{L}_g{g}')), g, 0)
        self.weave(mf, after)
        self.add_tile(X1)
        self.stamp(f'p4_{L}_gemm')
        if L == 1:
            for q in range(10):
                e(f'v_cvt_pk_bf16_f32 {v(PK + q)}, {v(R + 2 * q)}, {v(R + 2 * q + 1)}')
            e(f'buffer_store_dwordx4 {v(PK, 4)}, {v(T8 + 6)}, {OUT}, s24 offen {cfg.os}')
            e(f'buffer_store_dwordx4 {v(PK + 4, 4)}, {v(T8 + 6)}, {OUT}, s24 offen offset:64 {cfg.os}')
            e(f'buffer_store_dwordx2 {v(PK + 8, 2)}, {v(T8 + 7)}, {OUT}, s25 offen {cfg.os}')
        else:
            self.publish_tile(PK, 24, vXF, 2048, vXS2, 4 * (L + 1) + F_X)
            e('s_barrier')
        self.stamp(f'p4_{L}_end')

    def body(self):
        e = self.e
        for L in range(2):
            self.p1(L)
            self.p2(L)
            self.p34(L)
        e(f's_add_u32 s{sVAL}, s{sTAG}, 16')
        e(f'v_mov_b32 {v(vT0)}, s{sVAL}')
        e(f's_mov_b32 s16, {EPOCH}')
        e(f's_or_b32 s17, s2, s{sW}')
        e('s_cmp_eq_u32 s17, 0')
        e(f's_cselect_b32 s17, 0, {OOB}')
        e(f'v_mov_b32 {v(vT1)}, s17')
        e('s_mov_b64 exec, 1')
        e(f'buffer_store_dword {v(vT0)}, {v(vT1)}, {WS}, s16 offen sc1')
        e('s_mov_b64 exec, -1')
        if self.cfg.diag:
            lab = self.label('diag')
            e(f'{lab}:')
            e('s_memrealtime s[62:63]')
            e('s_waitcnt lgkmcnt(0)')
            e('s_sub_u32 s62, s62, s100')
            e(f's_cmp_lt_u32 s62, {self.cfg.diag}')
            e(f's_cbranch_scc1 {lab}')
        if self.stamping:
            e('s_waitcnt vmcnt(0)')
            self.stamp('done')
            e('s_memrealtime s[62:63]')
            e('s_waitcnt lgkmcnt(0)')
            e('s_mov_b32 s101, s62')
            e('s_lshl_b32 s16, s2, 2')
            e(f's_add_u32 s16, s16, s{sW}')
            e('s_lshl_b32 s16, s16, 8')
            e(f's_add_u32 s16, s16, {STAMP}')
            for i in range(38):
                e(f'v_mov_b32 {v(44 + i)}, s{sSTAMP + i}')
            e('s_mov_b64 exec, 1')
            for i in range(10):
                e(f'buffer_store_dwordx4 {v(44 + 4 * i, 4)}, {v(vL16)}, {WS}, s16 offen offset:{16 * i}')
        e('s_endpgm')
        tails, self.tails = self.tails, []
        for t in tails:
            e.reset()
            e.extend(t)

    def build(self):
        e, cfg = self.e, self.cfg
        self.prologue()
        self.st, self.end_label = ('sc1' if cfg.force_slow else ''), 'Lfast_end'
        self.body()
        e('Lfast_end:')
        e('Lend:')
        e('s_endpgm')
        if cfg.both:
            e.reset()
            e('Lslow:')
            self.st, self.stamping, self.end_label = 'sc1', False, 'Lslow_end'
            self.body()
            e('Lslow_end:')
            e('s_endpgm')
        txt = f'; @launch grid=(256,1,1) block=(256,1,1) lds={LDS_TOTAL}\n'
        txt += '.amdgcn_target "amdgcn-amd-amdhsa--gfx950"\n.text\n' + re.sub(r'; gap \d+\n', '', e.finalize()).replace(' offset:0', '').replace('    ', ' ')
        txt += f""".section .rodata,"a"
.p2align 6
.amdhsa_kernel {NAME}_kernel
  .amdhsa_next_free_vgpr 512
  .amdhsa_next_free_sgpr 102
  .amdhsa_accum_offset 256
  .amdhsa_group_segment_fixed_size 0
  .amdhsa_kernarg_size 96
  .amdhsa_user_sgpr_count 2
  .amdhsa_user_sgpr_kernarg_segment_ptr 1
  .amdhsa_system_sgpr_workgroup_id_x 1
.end_amdhsa_kernel
"""
        return txt


def parse_cfg(args):
    cfg = Cfg()
    for a in args:
        if '=' in a:
            k, val = a.split('=')
            assert hasattr(cfg, k), k
            setattr(cfg, k, val if isinstance(getattr(cfg, k), str) else eval(val))
    return cfg


def build(cfg):
    g = Gen(cfg)
    return g.build(), g.e, g


if __name__ == '__main__':
    txt, e, g = build(parse_cfg(sys.argv[2:]))
    open(sys.argv[1], 'w').write(txt)
    print('instructions', len(e.ins), e.stats, 'bytes', len(txt), 'pending at labels:', e.pending)
```

```python
import re, sys
from asmlib import *
from layout import *

NAME = 'interleave_layers__linear_kernel_hedgehog__dense_activation_squared_relu__prompt'
M32 = 'v_mfma_f32_32x32x16_bf16'
M32H = 'v_mfma_f32_32x32x8_bf16'
M16 = 'v_mfma_f32_16x16x32_bf16'
M16H = 'v_mfma_f32_16x16x16_bf16'

P_X, P_WQKV, P_WPHI, P_WO, P_BX, P_W1, P_B1, P_W2, P_B2, P_OUT, P_DBG, P_WS = [64 + 2 * i for i in range(12)]
S_WS, S_OUT, S_B2, S_W1, S_WQKV, S_WPHI, S_WO, S_B1, S_W2, S_X = range(4, 44, 4)
WS, OUT, B2 = s_(S_WS, 4), s_(S_OUT, 4), s_(S_B2, 4)
sW = 3
sSET, sC, sGI, sJ, sTAG, sSG, sSW, sCNT, sVAL, sKSA, sKSS, sPAR, sLO, sHI = range(48, 62)
sSTAMP = 64
STAMP_SKIP = ('consts', 'nc_iss')

vL16, vB2, vB3, vXF, vXS1, vXS2, vU0, vU1, vOM, vOR, vKVS, vKVL, vT0, vT1, vT2, vT3 = range(16)
vST, vSTL = vXS2, vL16
R = 16
PA, PB = 36, 40
A00, A01, A10, A11 = 44, 60, 76, 92
E, D16, KV1, CB, SP, STT = 108, 128, 144, 160, 164, 168
WO_E, WO_L = 176, 144
aCQ, aC1, aB1 = 240, 244, 250
LOG2E, INV640, EPS_LN, EPS_DEN = 0x3fb8aa3b, 0x3acccccd, 0x3727c5ac, 0x358637bd
EXO = LDS_EX - 131072
SEQ_G1, SEQ_G2, SEQ_KV = 11, 12, 9
F_X, F_O, F_X1, F_H = range(4)
vXG, vXL, XB = R, R + 4, 49152
sXG, sXL = 44, 45
sRB, sHD = sCNT, sVAL
NCF, vG2 = 184, 205
KVS = 768


class Cfg:
    stamps = False
    rt = False
    alias = True
    force_slow = False
    both = True
    d1 = 7
    d1x = 10
    d2 = 5
    d3 = 7
    w2split = (0, 8, 8, 8, 8, 14)
    wb = 0
    drop = ''
    kp2 = ((2, 6, 8, 11, 13), 18, 27, 43)
    kp4 = ((2, 7, 12, 17, 22), 28, 37, 60)
    qa = False
    cap1 = 6.5
    cap3 = 3.5
    wo1 = 16
    tlb = False
    wlead = 8
    xstep = 12
    wo0 = 10
    w2r = (60, 200)
    ntt = ''
    w1split = (0, 2, 3, 4, 6, 0)
    g2 = (104, 122)
    gat = (20, 20)
    hs = ''
    os = ''
    code2 = 300
    fine = -1
    fg = (0, 60, 119, 180, 239, 270, 299, 359, 419)
    skip = ''
    nt = 'nt'
    ntx = 'nt'
    late = True
    reord = False
    outa = True
    prew = False
    xe = (0, 0)
    xpre = (3, 10)
    nc_at = 130
    diag = 0
    diag_at = 'start'
    fa = (123, 165, 180)
    ga = (200, 218)
    fb = (242, 290, 303)
    gb = (322, 338)


def lds(off):
    return (vL16, vB2, vB3)[off >> 16], off & 0xffff


def spread(after, items, start, step=1, per=1):
    for n, x in enumerate(items):
        after.setdefault(start + (n // per) * step, []).append(x)


def fill(after, items, start, end):
    n = len(items)
    for k, x in enumerate(items):
        after.setdefault(start + k * (end - start) // n, []).append(x)


def cost(x):
    n = 0
    for t in ([x.text] if isinstance(x, Ins) else x.split('\n')):
        t = t.strip()
        if t.endswith(':') or t.startswith('; gap'):
            continue
        if t.startswith('v_mfma'):
            continue
        elif t.startswith(('ds_write_b128', 'buffer_store_dwordx4')):
            n += 5
        elif t.startswith('ds_write_b64'):
            n += 3
        elif t.startswith(TRANS) or 'permlane' in t or t.startswith(('ds_write', 'buffer_store')):
            n += 2
        else:
            n += 1
    return n


def pour(mf, after, items, start, end, cap):
    base = {g: sum(cost(x) for x in after.get(g, ())) + (g + 1 < len(mf) and str(mf[g + 1]).startswith('@need'))
            for g in range(start, end)}
    c = cap
    while True:
        load, g, place, prev_mfma = dict(base), start, [], False
        for x in items:
            if isinstance(x, Ins) and x.text.startswith('; gap'):
                g += int(x.text.split()[-1])
                place.append(min(g, end - 1))
                continue
            if isinstance(x, Ins) and x.cls == 'mfma':
                g += prev_mfma
                prev_mfma = True
                if g >= end:
                    break
                load[g] = 0
                place.append(g)
                continue
            prev_mfma = False
            k = cost(x)
            while g < end and load[g] + k > int(c * (g + 1)) - int(c * g) and not (load[g] <= 0):
                g += 1
            if g >= end:
                break
            load[g] += k
            place.append(g)
        else:
            for g, x in zip(place, items):
                after.setdefault(g, []).append(x)
            return place[-1]
        c += 0.125


class Gen:
    def __init__(self, cfg):
        self.e, self.cfg = Asm(), cfg
        self.nstamp, self.nlab, self.stamp_names, self.tails = 0, 0, [], []
        self.st, self.stamping = '', cfg.stamps

    def act(self, L, off):
        if self.cfg.alias and self.cfg.outa and off in (XF_O, X1F_O):
            return 0
        if self.cfg.alias:
            return ACT + {XF_O: XF_O, X1F_O: XF_O, OF_O: HF_O, HF_O: HF_O, ST_O: ST_O, ST1_O: ST_O}[off]
        return ACT + L * ACT_STRIDE + off

    def xbuf(self):
        return OUT if self.cfg.outa and self.cfg.alias else WS

    def ostride(self):
        return 196608 if self.cfg.alias else 81920

    def stamp(self, name):
        if self.cfg.diag and name == self.cfg.diag_at:
            self.e('s_memrealtime s[100:101]')
            self.e('s_waitcnt lgkmcnt(0)')
        if not self.stamping or name in STAMP_SKIP or (self.cfg.skip and self.cfg.skip in name) or (self.cfg.skip == 'all' and name != 'done'):
            return
        e = self.e
        e(('s_memrealtime' if self.cfg.rt else 's_memtime') + ' s[62:63]')
        e('s_waitcnt lgkmcnt(0)')
        e(f's_mov_b32 s{sSTAMP + self.nstamp}, s62')
        self.stamp_names.append(name)
        self.nstamp += 1
        assert self.nstamp <= 36

    def label(self, base):
        self.nlab += 1
        return f'L{base}_{self.nlab}'

    def srd(self, d, p, nbytes):
        e = self.e
        e(f's_mov_b32 s{d}, s{p}')
        e(f's_and_b32 s{d + 1}, s{p + 1}, 0xffff')
        e(f's_mov_b32 s{d + 2}, {nbytes}')
        e(f's_mov_b32 s{d + 3}, 0x20000')

    def sdiv(self, q, r, x, d):
        e = self.e
        e(f's_mul_i32 s{q}, s{x}, {(1 << 16) // d + 1}')
        e(f's_lshr_b32 s{q}, s{q}, 16')
        e(f's_mul_i32 s{r}, s{q}, {d}')
        e(f's_sub_u32 s{r}, s{x}, s{r}')

    def capture(self, fn):
        keep, self.e = self.e, Asm()
        fn()
        out, self.e = self.e.ins, keep
        return out

    def weave(self, main, after):
        for i, m in enumerate(main):
            self.e(m)
            for x in after.pop(i, ()):
                self.e(x)
        assert not after, sorted(after)

    def flag_line(self, d, line, sidx):
        self.e(f's_lshl_b32 s{d}, s{sidx}, 7')
        self.e(f's_add_u32 s{d}, s{d}, {FL + line * 4096}')

    def spin(self, load, check):
        e, lab = self.e, self.label('poll')
        e(f's_mov_b32 s{sCNT}, 0')
        e(f'{lab}:')
        e(load)
        e(f's_add_u32 s{sCNT}, s{sCNT}, 1')
        e(f's_cmp_gt_u32 s{sCNT}, 0x80000')
        e('s_cbranch_scc1 Lend')
        e('s_waitcnt vmcnt(0)')
        e(check)
        e(f's_cbranch_vccnz {lab}')

    def late_check(self, load, check):
        out, back = self.label('retry'), self.label('back')

        def tail():
            self.e(f'{out}:')
            self.e('s_nop 7')
            self.e('s_nop 3')
            self.spin(load, check)
            self.e(f's_branch {back}')
        self.tails.append(self.capture(tail))
        return check + f'\ns_cbranch_vccnz {out}\n{back}:'

    def poll(self, sflag, vpoll, seq):
        self.e(f's_add_u32 s{sVAL}, s{sTAG}, {seq}')
        self.spin(f'buffer_load_dword {v(vT0)}, {v(vpoll)}, {WS}, s{sflag} offen sc1',
                  f'v_cmp_ne_u32 vcc, s{sVAL}, {v(vT0)}')

    def flag_store(self, sflag, seq, t, tag):
        return (f'v_mov_b32 {v(t)}, {seq}\nv_add_u32 {v(t)}, s{sTAG}, {v(t)}\n@wait {tag}\ns_mov_b64 exec, 1\n'
                f'buffer_store_dword {v(t)}, {v(vL16)}, {WS}, s{sflag} offen {self.st}\ns_mov_b64 exec, -1')

    def unpack(self, dst, src, n):
        for i in range(n):
            self.e(f'v_lshlrev_b32 {v(dst + 2 * i)}, 16, {v(src + i)}')
            self.e(f'v_and_b32 {v(dst + 2 * i + 1)}, 0xffff0000, {v(src + i)}')

    def hi_lo(self, dst, x, t):
        e = self.e
        e(f'v_cvt_pk_bf16_f32 {v(dst)}, {v(x)}, {v(x)}')
        e(f'v_lshlrev_b32 {v(t)}, 16, {v(dst)}')
        e(f'v_sub_f32 {v(t)}, {v(x)}, {v(t)}')
        e(f'v_cvt_pk_bf16_f32 {v(dst + 1)}, {v(t)}, {v(t)}')

    def pair_stats(self, a, b):
        e = self.e
        for q in range(1, 4):
            e(f'v_add_f32 {v(a)}, {v(a)}, {v(a + q)}')
            e(f'v_add_f32 {v(b)}, {v(b)}, {v(b + q)}')
        e(f'v_permlane16_swap_b32 {v(a)}, {v(b)}')
        e(f'v_add_f32 {v(a)}, {v(a)}, {v(b)}')
        e(f'v_mov_b32 {v(a + 1)}, {v(a)}')
        e(f'v_permlane32_swap_b32 {v(a)}, {v(a + 1)}')
        e(f'v_mul_f32 {v(a)}, {hex(INV640 | 0x80000000)}, {v(a)}')
        e(f'v_mul_f32 {v(a + 1)}, {hex(INV640)}, {v(a + 1)}')
        e(f'v_fma_f32 {v(a + 1)}, -{v(a)}, {v(a)}, {v(a + 1)}')
        e(f'v_max_f32 {v(a + 1)}, 0, {v(a + 1)}')
        e(f'v_add_f32 {v(a + 1)}, {hex(EPS_LN)}, {v(a + 1)}')
        e(f'v_rsq_f32 {v(a + 2)}, {v(a + 1)}')

    def colsum(self, t, addr):
        e = self.e
        e(f'v_lshrrev_b32 {v(addr)}, 2, {v(vL16)}')
        e(f'v_add_u32 {v(addr)}, {LDS_EX}, {v(addr)}')
        for h in range(2):
            for q in range(4 if h else 5):
                e(f'ds_read2st64_b32 {v(t + 2 * q + 2 * h, 2)}, {v(addr)} offset0:{10 * h + 2 * q} offset1:{10 * h + 2 * q + 1}')
            for q in range(2 if h else 1, 10):
                e(f'v_add_f32 {v(t)}, {v(t)}, {v(t + q)}')
        e(f'ds_read2st64_b32 {v(t + 2, 2)}, {v(addr)} offset0:18 offset1:19')
        e(f'v_add_f32 {v(t)}, {v(t)}, {v(t + 2)}')
        e(f'v_add_f32 {v(t)}, {v(t)}, {v(t + 3)}')
        e(f'v_cvt_pk_bf16_f32 {v(t + 1)}, {v(t)}, {v(t)}')
        e(f'v_lshlrev_b32 {v(t + 1)}, 16, {v(t + 1)}')
        e(f'v_sub_f32 {v(t + 2)}, {v(t)}, {v(t + 1)}')
        e(f'v_cvt_pk_bf16_f32 {v(t)}, {v(t + 1)}, {v(t + 2)}')

    def colsum_dma(self, base, s0, t, tag):
        return (f's_mul_i32 s{s0}, s{sC}, 5120\ns_mul_i32 s{s0 + 1}, s{sW}, 1280\ns_add_u32 s{s0}, s{s0}, s{s0 + 1}\n'
                f's_add_u32 s{s0}, s{s0}, {base}\ns_add_u32 m0, s{s0 + 1}, {LDS_EX}\n'
                f'v_lshrrev_b32 {v(t)}, 2, {v(vL16)}\n'
                f'buffer_load_dwordx4 {v(vL16)}, {WS}, s{s0} offen sc1 lds #{tag}\n'
                f'buffer_load_dword {v(t)}, {WS}, s{s0} offen offset:1024 sc1 lds #{tag}')

    def rowmajor(self, d0, d1, va, vb, t):
        e = self.e
        e(f's_lshl_b32 s{d1}, s{sSG}, 2')
        e(f's_add_u32 s{d1}, s{d1}, s{sW}')
        e(f's_mul_i32 s{d1}, s{d1}, {16 * 1280}')
        e(f's_lshl_b32 s{d0}, s{sKSA}, 6')
        e(f's_add_u32 s{d0}, s{d0}, s{d1}')
        e(f's_lshl_b32 s62, s{sKSS}, 6')
        e(f's_add_u32 s{d1}, s{d1}, s62')
        e(f's_lshl_b32 s62, s{sPAR}, 5')
        e(f's_add_u32 s{d1}, s{d1}, s62')
        e(f'v_bfe_u32 {v(va)}, {v(vL16)}, 4, 4')
        e(f'v_mul_u32_u24 {v(va)}, 1280, {v(va)}')
        e(f'v_lshrrev_b32 {v(t)}, 8, {v(vL16)}')
        e(f'v_lshl_add_u32 {v(vb)}, {v(t)}, 3, {v(va)}')
        e(f'v_lshl_add_u32 {v(va)}, {v(t)}, 4, {v(va)}')

    def xf_offsets(self, d, L):
        e = self.e
        e(f's_lshl_b32 s{d}, s{sSG}, 1')
        e(f's_lshr_b32 s{d + 1}, s{sW}, 1')
        e(f's_add_u32 s{d}, s{d}, s{d + 1}')
        e(f's_mul_i32 s{d}, s{d}, 40960')
        e(f's_and_b32 s{d + 1}, s{sW}, 1')
        e(f's_lshl_b32 s{d + 1}, s{d + 1}, 8')
        e(f's_add_u32 s{d}, s{d}, s{d + 1}')
        e(f's_add_u32 s{d}, s{d}, {self.act(L, XF_O)}')
        e(f's_lshl_b32 s{d + 1}, s{sKSS}, 1')
        e(f's_add_u32 s{d + 1}, s{d + 1}, s{sPAR}')
        e(f's_lshl_b32 s{d + 1}, s{d + 1}, 10')
        e(f's_add_u32 s{d + 1}, s{d + 1}, s{d}')
        e(f's_lshl_b32 s62, s{sKSA}, 11')
        e(f's_add_u32 s{d}, s{d}, s62')

    def x_slot(self, u):
        n0, n1 = self.cfg.xpre
        return u if u < n0 else (u - n0 if u < n1 else 2 + (u - n1) % 3)

    def x_dma(self, u):
        kq, mt = divmod(u, 2)
        pre = f's_add_u32 s46, s{sXG}, {40960 * mt + 128 * kq}\n'
        m0 = f's_add_u32 m0, s{sXL}, {16384 * self.x_slot(u)}\n'
        return [(pre if i == 0 else '') + m0 +
                f'buffer_load_dwordx4 {v(vXG + i)}, {s_(S_X, 4)}, s46 offen offset:{1024 * i} lds #xa{u}' for i in range(4)]

    def x_reg(self, ks, mt):
        return 4 * ((2 * ks + mt) % 60)

    def x_read(self, u, wait=True):
        kq, mt = divmod(u, 2)
        sl = self.x_slot(u)
        t = [f'ds_read_b128 {a_(self.x_reg(4 * kq + q, mt), 4)}, {v(vXL + q + 4 * (sl // 4))} offset:{16384 * (sl % 4)}' for q in range(4)]
        if wait:
            t[0] = f'@wait xa{u}\n' + t[0]
        return t

    def x_done(self, u):
        kq, mt = divmod(u, 2)
        return f'@need {a_(self.x_reg(4 * kq + 3, mt), 4)}'

    def prologue(self):
        e, cfg = self.e, self.cfg
        name = NAME + '_kernel'
        nt = cfg.nt
        RQ, RS, R1, R2, RO = 0, 17408, 18432, 30720, 38912
        e(f'.globl {name}\n.p2align 8\n.type {name},@function\n{name}:')
        e('s_cmp_ge_u32 s2, 256')
        e('s_cbranch_scc1 Lend')
        e('s_getpc_b64 s[44:45]')
        e('Lpc:')
        e('s_load_dwordx16 s[64:79], s[0:1], 0')
        e('s_load_dwordx8 s[80:87], s[0:1], 64')
        if cfg.diag:
            e('s_memrealtime s[100:101]')
        if cfg.stamps:
            e('s_memrealtime s[100:101]')
            e(('s_memrealtime' if cfg.rt else 's_memtime') + ' s[98:99]')
        e(f's_lshr_b32 s{sC}, s2, 3')
        e('v_lshrrev_b32 v44, 6, v0')
        e('v_and_b32 v45, 3, v0')
        e('v_lshl_add_u32 v45, v44, 2, v45')
        e(f's_lshl_b32 s46, s{sC}, 4')
        e('v_add_u32 v45, s46, v45')
        e('v_lshlrev_b32 v45, 7, v45')
        e('v_min_u32 v45, Lfast_end-Lpc, v45')
        e('s_mov_b64 exec, 15')
        e('global_load_dword v46, v45, s[44:45]')
        e('s_mov_b64 exec, -1')
        e(f'v_readfirstlane_b32 s{sW}, v44')
        LANE, M16_, G4, M32_, G2 = 47, 48, 49, 50, 51
        e(f'v_and_b32 {v(LANE)}, 63, v0')
        e(f'v_and_b32 {v(M32_)}, 31, v0')
        e(f'v_bfe_u32 {v(G2)}, v0, 5, 1')
        e(f's_and_b32 s{sSET}, s2, 7')
        e(f'v_mul_u32_u24 v52, 205, {v(LANE)}')
        e('v_lshrrev_b32 v52, 11, v52')
        e('v_mul_u32_u24 v53, 1120, v52')
        e(f'v_lshl_add_u32 v53, {v(LANE)}, 4, v53')
        e('s_cmp_lt_u32 s2, 160')
        e(f's_cselect_b32 s88, 0, {OOB}')
        e(f'v_mov_b32 v54, {OOB}')
        e(f'v_cmp_gt_u32 vcc, 60, {v(LANE)}')
        e('v_add_u32 v53, s88, v53')
        e('v_cndmask_b32 v53, v54, v53, vcc')
        e(f's_mul_i32 s{sRB}, s{sSET}, 20')
        e(f's_add_u32 s{sRB}, s{sRB}, s{sC}')
        e(f's_and_b32 s{sHD}, s{sRB}, 7')
        e(f's_lshr_b32 s{sRB}, s{sRB}, 3')
        e(f's_lshl_b32 s89, s{sRB}, 2')
        e(f's_add_u32 s89, s89, s{sW}')
        e(f's_mul_i32 s89, s89, {8 * 3840}')
        e(f's_mul_i32 s90, s{sHD}, 160')
        e('s_add_u32 s89, s89, s90')
        e(f's_lshl_b32 s{sHD}, s{sHD}, 2')
        e(f's_add_u32 s{sHD}, s{sHD}, s{sW}')
        e(f's_mul_i32 s90, s{sW}, 4160')
        e(f'v_and_b32 v55, 7, {v(LANE)}')
        e(f'v_lshrrev_b32 v56, 3, {v(LANE)}')
        e('v_mul_u32_u24 v63, 1280, v56')
        e('v_lshl_add_u32 v57, v55, 4, v63')
        e(f's_lshl_b32 s93, s{sSET}, 5')
        e(f's_add_u32 s93, s93, s{sC}')
        e('s_mul_i32 s94, s93, 10240')
        e(f's_lshl_b32 s95, s{sW}, 7')
        e('s_add_u32 s94, s94, s95')
        e(f's_cmp_lt_u32 s{sW}, 2')
        e(f's_cselect_b32 s95, 0, {OOB}')
        e('v_add_u32 v58, s95, v57')
        e(f'v_and_b32 v59, 19, {v(M32_)}')
        e(f'v_bfe_u32 v60, {v(M32_)}, 2, 1')
        e('v_lshl_add_u32 v59, v60, 3, v59')
        e(f'v_bfe_u32 v61, {v(M32_)}, 3, 1')
        e('v_lshl_add_u32 v59, v61, 2, v59')
        e('v_mul_u32_u24 v61, 40, v59')
        e('v_cmp_gt_u32 vcc, 20, v59')
        e(f's_lshl_b32 s{sSG}, s{sSET}, 2')
        e(f's_add_u32 s{sSW}, s{sSG}, s{sW}')
        e('v_cndmask_b32 v61, v54, v61, vcc')
        e(f'v_lshl_add_u32 v62, {v(G2)}, 30, v61')
        e(f'v_lshl_add_u32 v61, {v(G2)}, 4, v61')
        e(f's_mul_i32 s91, s{sHD}, 800')
        e('s_waitcnt lgkmcnt(0)')
        self.srd(S_WQKV, P_WQKV, 640 * 3840)
        AQ, AK, AV, AT0, AT1, AP, APT, XR = 64, 68, 72, 76, 78, 80, 84, 88
        for q in range(4):
            e('s_mov_b32 m0, s90')
            e('s_add_u32 s90, s90, 1040')
            e(f'buffer_load_dwordx4 v53, {s_(S_WQKV, 4)}, s89 offen {nt} lds #rq')
            e('s_add_u32 s89, s89, 7680')
        self.srd(S_WPHI, P_WPHI, 32 * 800)
        e(f'buffer_load_dwordx4 {v(AP, 4)}, v61, {s_(S_WPHI, 4)}, s91 offen')
        e(f'buffer_load_dwordx2 {v(APT, 2)}, v62, {s_(S_WPHI, 4)}, s91 offen offset:32')
        self.srd(S_X, P_X, 2048 * 1280)
        xs = s_(S_X, 4)
        e(f'buffer_load_dwordx4 {v(XR, 4)}, v57, {xs}, s94 offen {cfg.ntx}')
        e(f'buffer_load_dwordx4 {v(XR + 4, 4)}, v57, {xs}, s94 offen offset:512 {cfg.ntx}')
        e(f'buffer_load_dwordx4 {v(XR + 8, 4)}, v58, {xs}, s94 offen offset:1024 {cfg.ntx}')
        e(f's_add_u32 s46, s{P_WS}, {EPOCH}')
        e(f's_addc_u32 s47, s{P_WS + 1}, 0')
        e(f's_load_dword s{sTAG}, s[46:47], 0')
        self.srd(S_WS, P_WS, WS_USED)
        self.srd(S_OUT, P_OUT, 2048 * 1280)
        self.srd(S_B2, P_B2, 1280)
        self.srd(S_WO, P_WO, 640 * 1280)
        self.srd(S_W1, P_W1, 640 * 3072)
        self.srd(S_W2, P_W2, 1536 * 1280)
        self.srd(S_B1, P_B1, 3072)
        if cfg.stamps:
            e(f's_mov_b32 s{sSTAMP}, s98')
            self.stamp_names.append('start')
            self.nstamp = 1
        self.stamp('issued')
        e(f'v_and_b32 {v(M16_)}, 15, {v(LANE)}')
        e(f'v_lshrrev_b32 {v(G4)}, 4, {v(LANE)}')
        e(f'v_lshlrev_b32 {v(vL16)}, 4, {v(LANE)}')
        e(f's_lshr_b32 s{sGI}, s2, 6')
        e(f's_and_b32 s{sJ}, s{sC}, 7')
        e(f's_add_u32 s{sSG}, s{sSG}, s{sGI}')
        e(f's_lshr_b32 s{sKSS}, s{sJ}, 1')
        e(f's_mul_i32 s{sKSS}, s{sKSS}, 5')
        e(f's_and_b32 s{sPAR}, s{sJ}, 1')
        e(f's_mul_i32 s{sKSA}, s{sPAR}, 3')
        e(f's_add_u32 s{sKSA}, s{sKSA}, s{sKSS}')
        e(f's_add_u32 s{sKSS}, s{sKSS}, 2')
        e(f's_mov_b32 s{sLO}, 0x3f80')
        e(f's_mov_b32 s{sHI}, 0x3f800000')
        e('s_lshr_b32 s80, s93, 1')
        e('s_lshl_b32 s80, s80, 2')
        e(f's_add_u32 s80, s80, s{sW}')
        e('s_lshl_b32 s80, s80, 1')
        e(f's_add_u32 s80, s80, s{sPAR}')
        e('s_lshl_b32 s80, s80, 7')
        e(f's_add_u32 s80, s80, {self.act(0, ST_O)}')
        e(f's_mul_i32 s81, s{sHD}, 81920')
        e(f's_lshl_b32 s82, s{sRB}, 12')
        e('s_add_u32 s81, s81, s82')
        e(f's_mul_i32 s82, s{sHD}, 5120')
        e(f's_lshl_b32 s83, s{sRB}, 8')
        e('s_add_u32 s82, s82, s83')
        e(f's_add_u32 s82, s82, {CSQ}')
        e(f'v_add_u32 v100, s88, {v(vL16)}')
        e(f'v_lshl_add_u32 v101, {v(LANE)}, 2, s88')

        def second_stage_loads(part):
            def colblock(src, base, jstride, stage, vst, vrd, so, tag):
                e('s_mul_i32 s93, s93, 1280')
                e('s_mul_i32 s94, s94, 1280')
                e('s_lshl_b32 s95, s92, 8')
                e('s_add_u32 s93, s93, s95')
                e('s_add_u32 s94, s94, s95')
                e('s_sub_u32 s94, s94, 1024')
                e('v_mul_u32_u24 v52, 1280, v52')
                e(f'v_lshl_add_u32 v52, {v(M16_)}, 4, v52')
                e('v_add_u32 v52, s88, v52')
                e(f's_lshl_b32 s95, s{sW}, 11')
                e(f's_add_u32 m0, s95, {stage}')
                e('s_lshl_b32 s92, s92, 2')
                e(f'buffer_load_dwordx4 v52, {src}, s93 offen {nt} lds #{tag}')
                e(f'buffer_load_dwordx4 v52, {src}, s94 offen offset:1024 {nt} lds #{tag}')
                e(f's_add_u32 s92, s92, s{sW}')
                self.sdiv(89, 96, 92, 5)
                e('s_cmp_eq_u32 s96, 2')
                e('s_cselect_b32 s92, 3, 4')
                e('s_cselect_b32 s95, 32, 8')
                e(f's_mov_b32 s{so + 1}, {jstride}')
                e(f's_cselect_b32 s{so + 1}, s{so + 1}, 1024')
                e(f'v_lshl_add_u32 {v(vrd)}, v219, s92, v220')
                e(f'v_add_u32 {v(vrd + 1)}, s95, {v(vrd)}')
                e(f'v_add_u32 {v(vst)}, s88, {v(vL16)}')
                e('s_lshl_b32 s89, s89, 1')
                e('s_sub_u32 s92, s96, 3')
                e('s_cmp_gt_u32 s96, 2')
                e('s_cselect_b32 s92, s92, s96')
                e('s_addc_u32 s89, s89, 0')
                e(f's_mul_i32 s89, s89, {jstride}')
                e('s_lshl_b32 s92, s92, 11')
                e('s_add_u32 s89, s89, s92')
                e('s_mul_i32 s92, s91, 5120')
                e('s_add_u32 s89, s89, s92')
                e(f's_add_u32 s{so}, s89, {base}')
                e(f's_add_u32 s{so + 1}, s{so + 1}, s{so}')

            if part == 0:
                e(f'v_and_b32 v219, 3, {v(LANE)}')
                e(f'v_bfe_u32 v218, {v(LANE)}, 2, 2')
                e(f'v_lshl_add_u32 v218, {v(G4)}, 3, v218')
                e('v_lshlrev_b32 v220, 8, v218')
                e(f's_lshl_b32 s95, s{sW}, 6')
                e('v_add_u32 v220, s95, v220')
                e('s_sub_u32 s96, s2, 156')
                e(f's_cselect_b32 s88, {OOB}, 0')
                e('s_cselect_b32 s96, 0, s96')
                self.sdiv(91, 92, 96, 5)
                self.sdiv(89, 90, 91, 5)
                e('s_mul_i32 s93, s89, 160')
                e('s_mul_i32 s95, s90, 40')
                e('s_cmp_eq_u32 s90, 4')
                e('s_cselect_b32 s95, 8, s95')
                e('s_cselect_b32 s94, 20, 4')
                e('s_cselect_b32 s96, 40, 10')
                e('s_cselect_b32 s90, 8, 0')
                e(f's_mul_i32 s96, s96, s{sW}')
                e('s_add_u32 s93, s93, s95')
                e('s_add_u32 s93, s93, s96')
                e('s_add_u32 s94, s94, s93')
                e(f'v_mul_u32_u24 v52, s90, {v(G2)}')
                e(f'v_add_u32 v52, v52, {v(G4)}')
                colblock(s_(S_WO, 4), WOF, 102400, RO, 208, 212, 84, 'ro')
                return
            e(f's_sub_u32 s91, s{sC}, 12')
            e(f's_cselect_b32 s88, {OOB}, 0')
            e('s_cselect_b32 s91, 0, s91')
            e('s_lshl_b32 s92, s91, 2')
            e(f's_add_u32 s92, s92, s{sW}')
            e(f's_mul_i32 s92, s92, {8 * 3072}')
            e(f's_mul_i32 s93, s{sSET}, 384')
            e('s_add_u32 s92, s92, s93')
            e(f's_mul_i32 s93, s{sW}, 3072')
            e(f's_add_u32 m0, s93, {R1}')
            for q in range(3):
                e(f'v_add_u32 v52, {64 * q}, {v(LANE)}')
                e('v_mul_u32_u24 v52, 171, v52')
                e('v_lshrrev_b32 v52, 12, v52')
                e(f'v_mul_u32_u24 v52, {3072 - 384}, v52')
                e(f'v_add3_u32 v52, v52, {v(vL16)}, s88')
                e(f'buffer_load_dwordx4 v52, {s_(S_W1, 4)}, s92 offen offset:{1024 * q} {nt} lds #rn')
            e('v_mul_u32_u24 v216, 384, v218')
            e(f's_mul_i32 s93, s{sW}, 96')
            e('v_add_u32 v216, s93, v216')
            e('v_lshl_add_u32 v217, v219, 3, v216')
            e('v_lshl_add_u32 v216, v219, 4, v216')
            e(f'v_add_u32 v210, s88, {v(vL16)}')
            e(f'v_lshl_add_u32 v211, {v(LANE)}, 2, s88')
            e(f's_mul_i32 s78, s{sSW}, 61440')
            e('s_mul_i32 s79, s91, 3072')
            e('s_add_u32 s78, s78, s79')
            e(f's_add_u32 s78, s78, {W1F}')
            e(f's_mul_i32 s79, s{sSW}, 5120')
            e('s_lshl_b32 s91, s91, 8')
            e('s_add_u32 s79, s79, s91')
            e(f's_add_u32 s79, s79, {CS1}')
            e('s_cmp_lt_u32 s2, 240')
            e(f's_cselect_b32 s88, 0, {OOB}')
            e('s_cselect_b32 s96, s2, 0')
            self.sdiv(91, 92, 96, 5)
            self.sdiv(89, 90, 91, 3)
            e('s_mul_i32 s93, s89, 96')
            e('s_mul_i32 s95, s90, 24')
            e('s_cmp_eq_u32 s90, 1')
            e('s_cselect_b32 s95, 32, s95')
            e('s_cselect_b32 s94, 32, 0')
            e('s_add_u32 s93, s93, s95')
            e(f's_lshr_b32 s95, s{sW}, 1')
            e('s_mul_i32 s94, s94, s95')
            e('s_add_u32 s93, s93, s94')
            e(f's_lshl_b32 s95, s{sW}, 3')
            e('s_add_u32 s93, s93, s95')
            e('s_add_u32 s94, s93, 4')
            e(f'v_mov_b32 v52, {v(G4)}')
            colblock(s_(S_W2, 4), W2F, 245760, R2, 209, 214, 86, 'rn')
            e(f'v_lshrrev_b32 v52, 2, {v(M16_)}')
            e('v_lshl_add_u32 v52, v52, 3, v219')
            e('v_lshlrev_b32 v52, 1, v52')
            e(f'v_lshlrev_b32 v221, 1, {v(M16_)}')
            e(f's_mul_i32 s89, s{sC}, 96')
            e(f'buffer_load_ushort {a_(aB1)}, v52, {s_(S_B1, 4)}, s89 offen')
            e(f'buffer_load_ushort {a_(aB1 + 1)}, v52, {s_(S_B1, 4)}, s89 offen offset:8')
            e(f'buffer_load_ushort {a_(aB1 + 2)}, v221, {s_(S_B1, 4)}, s89 offen offset:64')

        second_stage_loads(0)
        if not cfg.reord:
            second_stage_loads(1)
        SEL, SELT, BV0, BV1, BT0, BT1, BP, ONES = 112, 116, 120, 124, 128, 130, 132, 136
        e(f'v_lshrrev_b32 v52, 3, {v(M32_)}')
        e(f'v_and_b32 v53, 3, {v(M32_)}')
        e('v_lshl_add_u32 v52, v52, 2, v53')
        e('v_mul_u32_u24 v60, 10, v60')
        e('v_add_u32 v60, v60, v52')
        e(f'v_and_b32 v53, 1, {v(M32_)}')
        e('v_lshlrev_b32 v53, 4, v53')
        e(f'v_lshlrev_b32 v53, v53, s{sLO}')
        e(f'v_lshlrev_b32 v61, 2, {v(G2)}')
        for (b4, b2, off, lo, hi, tg) in ((SEL, SELT, 0, 0, 10, 0), (BV0, BT0, 10, 10, 16, 1), (BV1, BT1, 4, 10, 14, 1)):
            e(f'v_subrev_u32 v57, {off}, v60')
            e('v_lshrrev_b32 v57, 1, v57')
            e(f'v_subrev_u32 v58, {lo}, v52')
            e(f'v_cmp_gt_u32 vcc, {hi - lo}, v58')
            e(f'v_cmp_eq_u32 s[46:47], {tg}, {v(G2)}')
            e('v_cndmask_b32 v57, 32, v57, vcc')
            e('v_sub_u32 v58, v57, v61')
            e('v_cndmask_b32 v57, 32, v57, s[46:47]')
            for h in range(2):
                for q in range(3 * h, 3 * h + 3):
                    e(f'v_cmp_eq_u32 s[{20 + 2 * (q % 3)}:{21 + 2 * (q % 3)}], {q if q < 4 else q + 4}, {"v58" if q < 4 else "v57"}')
                for q in range(3 * h, 3 * h + 3):
                    e(f'v_cndmask_b32 {v(b4 + q if q < 4 else b2 + q - 4)}, 0, v53, s[{20 + 2 * (q % 3)}:{21 + 2 * (q % 3)}]')
        for i in range(4):
            e(f'v_mov_b32 {v(ONES + i)}, 0x3f803f80')
        e('v_lshrrev_b32 v57, 1, v59')
        e('v_mul_u32_u24 v57, 1040, v57')
        e('v_and_b32 v58, 1, v59')
        e('v_mul_u32_u24 v58, 480, v58')
        e(f's_mul_i32 s89, s{sW}, 40')
        e('v_add3_u32 v57, v57, v58, s89')
        e(f'v_mul_u32_u24 v58, 160, {v(G2)}')
        e('v_add_u32 v59, v57, v58')
        e('v_add_u32 v58, v59, v58')
        e(f'v_lshl_add_u32 v57, {v(G2)}, 4, v57')
        e('v_and_b32 v61, 3, v55')
        e('v_lshlrev_b32 v60, 7, v61')
        e('v_lshl_add_u32 v60, v56, 4, v60')
        e(f's_lshl_b32 s89, s{sW}, 2')
        e(f's_add_u32 s89, s89, {RS}')
        e('v_add_u32 v60, s89, v60')
        e('v_cmp_eq_u32 s[20:21], 0, v61')
        e('v_cmp_eq_u32 s[22:23], 2, v61')
        e(f'v_lshlrev_b32 v102, 2, {v(M32_)}')
        e(f's_lshl_b32 s89, s{sW}, 7')
        e(f's_add_u32 s89, s89, {RS}')
        e('v_add_u32 v103, s89, v102')
        e(f'v_lshl_add_u32 v102, {v(G2)}, 30, v102')
        def staging_addresses():
            e(f'v_lshrrev_b32 v61, 4, {v(LANE)}')
            e(f'v_and_b32 v62, 7, {v(LANE)}')
            e('v_xor_b32 v61, v61, v62')
            e(f'v_lshrrev_b32 v63, 3, {v(LANE)}')
            e('v_mul_u32_u24 v63, 1280, v63')
            for i in range(4):
                if i:
                    e('v_xor_b32 v61, 4, v61')
                e(f'v_lshl_add_u32 {v(vXG + i)}, v61, 4, v63')
                if i:
                    e(f'v_add_u32 {v(vXG + i)}, {9216 * i}, {v(vXG + i)}')
            e(f's_mul_i32 s{sXG}, s{sSW}, {64 * 1280}')
            e(f's_lshl_b32 s{sXL}, s{sW}, 12')
            e(f's_add_u32 s{sXL}, s{sXL}, {XB}')
            e(f'v_bfe_u32 v61, {v(M32_)}, 1, 3')
            e(f'v_xor_b32 v61, v61, {v(G2)}')
            e(f'v_lshl_add_u32 v63, {v(M32_)}, 7, s{sXL}')
            for q in range(4):
                e(f'v_xor_b32 v62, {2 * q}, v61')
                e(f'v_lshl_add_u32 {v(vXL + q)}, v62, 4, v63')
                e(f'v_add_u32 {v(vXL + 4 + q)}, 0x10000, {v(vXL + q)}')
        if not cfg.reord:
            staging_addresses()
        e('v_mov_b32 v62, 0')
        e('v_mov_b32 v63, 0')
        D0, D1, FR = 144, 160, 176
        e(f'{M32} {v(D0, 16)}, {v(AP, 4)}, {v(SEL, 4)}, 0')
        e(f'{M32H} {v(D0, 16)}, {v(APT, 2)}, {v(SELT, 2)}, {v(D0, 16)}')
        e('s_barrier')
        self.stamp('landed')
        early = [x for u in range(cfg.xpre[0]) for x in self.x_dma(u)]
        e(f'ds_read2_b64 {v(AV, 4)}, v57 offset0:40 offset1:41')
        e(f'ds_read2_b64 {v(AK, 4)}, v57 offset0:20 offset1:21')
        e(f'ds_read2_b64 {v(AQ, 4)}, v57 offset0:0 offset1:1')
        e(f'ds_read_b64 {v(AT0, 2)}, v59 offset:192')
        e(f'ds_read_b64 {v(AT1, 2)}, v58 offset:32')
        for x in early[:cfg.xe[0]]:
            e(x)
        for q in range(4):
            e(f'v_cvt_pk_bf16_f32 {v(BP + q)}, {v(D0 + 2 * q)}, {v(D0 + 2 * q + 1)}')
        for q in range(2):
            e(f'v_cvt_pk_bf16_f32 v61, {v(D0 + 8 + 2 * q)}, {v(D0 + 9 + 2 * q)}')
            e(f'v_or_b32 {v(BT0 + q)}, {v(BT0 + q)}, v61')
            e(f'v_or_b32 {v(BT1 + q)}, {v(BT1 + q)}, v61')
        e(f'{M32} {v(D0, 16)}, {v(AV, 4)}, {v(BV0, 4)}, 0')
        e(f'{M32} {v(D1, 16)}, {v(AV, 4)}, {v(BV1, 4)}, 0')
        e(f'{M32} {v(D0, 16)}, {v(AK, 4)}, {v(BP, 4)}, {v(D0, 16)}')
        e(f'{M32} {v(D1, 16)}, {v(AQ, 4)}, {v(BP, 4)}, {v(D1, 16)}')
        e(f'{M32H} {v(D0, 16)}, {v(AT0, 2)}, {v(BT0, 2)}, {v(D0, 16)}')
        e(f'{M32H} {v(D1, 16)}, {v(AT1, 2)}, {v(BT1, 2)}, {v(D1, 16)}')
        for T, D in ((0, D0), (1, D1)):
            for half in range(2):
                f = FR + 8 * T + 4 * half
                for q in range(4):
                    e(f'v_cvt_pk_bf16_f32 {v(f + q)}, {v(D + 8 * half + 2 * q)}, {v(D + 8 * half + 2 * q + 1)}')
                e(f'buffer_store_dwordx4 {v(f, 4)}, v100, {WS}, s81 offen offset:{2048 * half + 1024 * T} sc1 #c')
            e(f'{M32} {v(D, 16)}, {v(ONES, 4)}, {v(FR + 8 * T, 4)}, 0')
            e(f'{M32} {v(D, 16)}, {v(ONES, 4)}, {v(FR + 8 * T + 4, 4)}, {v(D, 16)}')
        for x in early[cfg.xe[0]:cfg.xe[1]]:
            e(x)
        for q in range(12):
            e(f'v_dot2c_f32_bf16 v62, {v(ONES)}, {v(XR + q)}')
            e(f'v_dot2c_f32_bf16 v63, {v(XR + q)}, {v(XR + q)}')
        e(f'v_cmp_eq_u32 vcc, 1, {v(G2)}')
        e(f'v_cndmask_b32 v55, {v(D0)}, {v(D1)}, vcc')
        e(f'buffer_store_dword v55, v101, {WS}, s82 offen sc1 #c')
        for ctl in ('quad_perm:[1,0,3,2]', 'quad_perm:[2,3,0,1]', 'row_half_mirror'):
            e(f'v_add_f32_dpp v62, v62, v62 {ctl} row_mask:0xf bank_mask:0xf')
            e(f'v_add_f32_dpp v63, v63, v63 {ctl} row_mask:0xf bank_mask:0xf')
        e('v_cndmask_b32 v62, 0, v62, s[20:21]')
        e('v_cndmask_b32 v62, v62, v63, s[22:23]')
        e('ds_write_b32 v60, v62')
        e('@wait ro')
        e('s_waitcnt lgkmcnt(0)')
        e('s_barrier')
        e('ds_read_b32 v62, v103')
        for n in range(2):
            for T in range(2):
                e(f'ds_read_b64_tr_b16 {v(64 + 4 * n + 2 * T, 2)}, {v(212 + n)} offset:{RO + 1024 * T}')
        e(f'buffer_store_dword v62, v102, {WS}, s80 offen sc1 #c')
        for n in range(2):
            e(f'buffer_store_dwordx4 {v(64 + 4 * n, 4)}, v208, {WS}, s{84 + n} offen sc1 #c')
        self.stamp('stored')
        if cfg.reord:
            second_stage_loads(1)
            staging_addresses()
        units = cfg.xpre
        for x in early[cfg.xe[1]:]:
            e(x)

        e('s_getreg_b32 s97, hwreg(HW_REG_XCC_ID, 0, 4)')
        e(f's_add_u32 s{sVAL}, s{sTAG}, {SEQ_G1}')
        e(f'v_mov_b32 v56, s{sVAL}')
        e('v_mov_b32 v57, s97')
        e(f'v_mov_b32 v58, s{sVAL}')
        e('v_mov_b32 v59, s97')
        e('s_lshl_b32 s89, s2, 7')
        e(f's_add_u32 s89, s89, {G1}')
        e(f's_cmp_eq_u32 s{sW}, 0')
        e(f's_cselect_b32 s90, 0, {OOB}')
        e(f'v_add_u32 v55, s90, {v(vL16)}')
        e('@wait c')
        e('s_barrier')
        e('s_mov_b64 exec, 0xff')
        e(f'buffer_store_dwordx4 v[56:59], v55, {WS}, s89 offen sc1')
        e('s_mov_b64 exec, -1')
        self.stamp('g1set')

        def constants():
            e = self.e
            e(f'v_add_u32 {v(vB2)}, 0x10000, {v(vL16)}')
            e(f'v_add_u32 {v(vB3)}, 0x20000, {v(vL16)}')
            e(f'v_lshlrev_b32 {v(vXF)}, 9, {v(G4)}')
            e(f'v_lshl_add_u32 {v(vXF)}, {v(M16_)}, 4, {v(vXF)}')
            e(f'v_and_b32 v52, 1, {v(G4)}')
            e(f'v_lshlrev_b32 v60, 4, {v(M16_)}')
            e('v_lshl_add_u32 v61, v52, 30, v60')
            e(f'v_lshl_add_u32 {v(vXS1)}, {v(G2)}, 8, v61')
            e(f'v_lshl_add_u32 {v(vXS2)}, {v(G2)}, 9, v61')
            e(f'v_mul_u32_u24 {v(vOM)}, 20480, v52')
            e(f'v_add_u32 {v(vOM)}, {v(vOM)}, v60')
            e(f'v_lshl_add_u32 {v(vOM)}, {v(G2)}, 8, {v(vOM)}')
            e(f'v_mul_u32_u24 {v(vOR)}, 20480, {v(G4)}')
            e(f'v_add_u32 {v(vOR)}, {v(vOR)}, v60')
            e(f'v_subrev_u32 v60, 8, {v(M32_)}')
            e(f'v_cmp_lt_u32 vcc, 27, {v(M32_)}')
            e('v_subb_co_u32 v60, vcc, v60, 0, vcc')
            e('v_cmp_gt_u32 vcc, 22, v60')
            e(f'v_mul_u32_u24 v62, 22, {v(G2)}')
            e('v_cndmask_b32 v61, 0, v60, vcc')
            e(f'v_add_lshl_u32 {v(vKVL)}, v61, v62, 4')
            e(f'v_cmp_ne_u32 s[20:21], 27, {v(M32_)}')
            e('s_and_b64 vcc, vcc, s[20:21]')
            e(f'v_cndmask_b32 {v(vKVS)}, v54, {v(vKVL)}, vcc')
            e(f'v_bfe_u32 v61, {v(M32_)}, 2, 1')
            e(f'v_cmp_eq_u32 vcc, v61, {v(G2)}')
            e(f'v_bfe_u32 v62, {v(M32_)}, 1, 1')
            e(f'v_lshrrev_b32 v60, 3, {v(M32_)}')
            e('v_cndmask_b32 v61, 0, v53, vcc')
            e('v_lshl_add_u32 v62, v60, 1, v62')
            for h in range(2):
                for q in range(4):
                    e(f'v_cmp_eq_u32 s[{20 + 2 * q}:{21 + 2 * q}], {4 * h + q}, v62')
                for q in range(4):
                    e(f'v_cndmask_b32 {v(PA + 4 * h + q)}, 0, v61, s[{20 + 2 * q}:{21 + 2 * q}]')
            e(f's_lshr_b32 s91, s{sC}, 2')
            e(f's_lshl_b32 s92, s{sW}, 3')
            e('s_add_u32 s92, s92, s91')
            e(f'v_min_u32 v52, 4, {v(M16_)}')
            e('v_lshl_add_u32 v53, v52, 5, s92')
            e('v_mul_u32_u24 v60, 205, v53')
            e('v_lshrrev_b32 v60, 12, v60')
            e('v_mul_u32_u24 v60, 159, v60')
            e('v_lshlrev_b32 v53, 3, v53')
            e('v_sub_u32 v53, v53, v60')
            e(f's_sub_u32 s93, s{sKSA}, s{sPAR}')
            e(f'v_and_b32 v60, 1, {v(LANE)}')
            e('v_lshl_add_u32 v60, v60, 1, s93')
            e('v_lshrrev_b32 v60, 2, v60')
            e(f'v_lshrrev_b32 v61, 1, {v(M16_)}')
            e('v_min_u32 v61, 4, v61')
            e(f's_mul_i32 s93, s{sW}, 25')
            e('s_add_u32 s93, s93, 156')
            e('v_mul_u32_u24 v61, 5, v61')
            e('v_add3_u32 v61, v61, v60, s93')
            e(f'v_cmp_eq_u32 vcc, 3, {v(G4)}')
            e(f'v_cmp_eq_u32 s[20:21], 1, {v(G2)}')
            e(f'v_lshl_add_u32 v62, {v(M32_)}, 3, s{sSET}')
            e('v_cndmask_b32 v53, v53, v61, vcc')
            e('v_cndmask_b32 v53, v62, v53, s[20:21]')
            e(f'v_lshlrev_b32 {v(vT2)}, 7, v53')
            e(f's_mul_i32 s92, s{sW}, 40')
            e('s_add_u32 s92, s92, s91')
            e('s_add_u32 s92, s92, 96')
            e('v_lshl_add_u32 v52, v52, 3, s92')
            e(f'v_lshrrev_b32 v61, 1, {v(M32_)}')
            e('v_min_u32 v61, 11, v61')
            e(f's_mul_i32 s93, s{sW}, 60')
            e('v_mul_u32_u24 v61, 5, v61')
            e('v_add3_u32 v61, v61, v60, s93')
            e('v_cndmask_b32 v52, v52, v61, s[20:21]')
            e(f'v_lshlrev_b32 {v(vG2)}, 7, v52')

        def second_stage():
            e = self.e
            if cfg.reord:
                e('@wait rn')
                e('s_barrier')
            jobs = [(216, R1, 1536, 210, 78, 0), (216, R1 + 8, 1536, 210, 78, 1024), (217, R1 + 64, 1536, 210, 78, 2048),
                    (214, R2, 1024, 209, 86, 0), (215, R2, 1024, 209, 87, 0)]
            for n, (vrd, stage, step, _, _, _) in enumerate(jobs):
                for T in range(2):
                    e(f'ds_read_b64_tr_b16 {v(NCF + 4 * n + 2 * T, 2)}, {v(vrd)} offset:{stage + step * T}')
            self.nc_stores = []
            for n, (_, _, _, vst, so, off) in enumerate(jobs):
                self.nc_stores.append(f'buffer_store_dwordx4 {v(NCF + 4 * n, 4)}, {v(vst)}, {WS}, s{so} offen offset:{off} sc1 #nc')
                if n < 3:
                    e(f'{M16} {v(144 + 4 * n, 4)}, {v(ONES, 4)}, {v(NCF + 4 * n, 4)}, 0')
            e(f'v_cmp_eq_u32 vcc, 1, {v(G4)}')
            e(f'v_cmp_eq_u32 s[20:21], 2, {v(G4)}')
            e('s_waitcnt lgkmcnt(0)')
            e('s_barrier')
            e('v_cndmask_b32 v204, v144, v148, vcc')
            e('v_cndmask_b32 v204, v204, v152, s[20:21]')
            self.nc_stores.append(f'buffer_store_dword v204, v211, {WS}, s79 offen sc1 #nc')

        assert units[1] - units[0] <= 7 and units[1] <= 14
        if units[0]:
            second_stage()
            e(f'@wait xa{units[0] - 1}')
            for x in ([] if cfg.late else self.nc_stores):
                e(x)
            for u in range(units[0]):
                for x in self.x_read(u, False):
                    e(x)
            e('s_waitcnt lgkmcnt(0)')
        for u in range(units[0], units[1]):
            if u == 2 and not units[0]:
                constants()
                second_stage()
            for x in self.x_dma(u):
                e(x)
        if units[0]:
            constants()
        self.stamp('pre_done')
        e(f's_mov_b32 s89, {G1}')
        self.spin(f'buffer_load_dwordx2 {v(vT0, 2)}, {v(vT2)}, {WS}, s89 offen sc1',
                  f'v_cmp_ne_u32 vcc, s{sVAL}, {v(vT0)}')
        e(f'v_cmp_ne_u32 vcc, s97, {v(vT1)}')
        e('s_waitcnt lgkmcnt(0)')
        e('s_cmp_lg_u32 vcc_lo, 0')
        if cfg.both:
            e('s_cbranch_scc1 Lslow')
        self.stamp('g1got')

    def softmax(self, a, sp, dst, pk):
        e = self.e
        t0, t1, t2, t3 = vT0, vT1, vT2, vT3
        e(f'v_max3_f32 {v(t0)}, {v(a)}, {v(a + 1)}, {v(a + 2)}')
        e(f'v_max3_f32 {v(t1)}, -{v(a)}, -{v(a + 1)}, -{v(a + 2)}')
        for i in (3, 5, 7):
            e(f'v_max3_f32 {v(t0)}, {v(t0)}, {v(a + i)}, {v(a + i + 1)}')
            e(f'v_max3_f32 {v(t1)}, {v(t1)}, -{v(a + i)}, -{v(a + i + 1)}')
        e(f'v_max_f32 {v(t0)}, {v(t0)}, {v(a + 9)}')
        e(f'v_max_f32 {v(t1)}, {v(t1)}, -{v(a + 9)}')
        e(f'v_permlane32_swap_b32 {v(t0)}, {v(t1)}')
        e(f'v_max_f32 {v(t0)}, {v(t0)}, {v(t1)}')
        e(f'v_mul_f32 {v(t1)}, {v(t0)}, {v(sp + 1)}')
        e(f'v_mul_f32 {v(t0)}, {v(t0)}, {v(sp + 1)}')
        e(f'v_permlane32_swap_b32 {v(t0)}, {v(t1)}')
        for i in range(10):
            if pk:
                sel = (a + i) & 1
                e(f'v_pk_fma_f32 {v(E + 2 * i, 2)}, {v((a + i) & ~1, 2)}, {v(sp, 2)}, {v(t0, 2)} '
                  f'op_sel:[{sel},0,0] op_sel_hi:[{sel},1,1]')
            else:
                for h in range(2):
                    e(f'v_fma_f32 {v(E + 2 * i + h)}, {v(a + i)}, {v(sp + h)}, {v(t0 + h)}')
        for i in range(20):
            e(f'v_exp_f32 {v(E + i)}, {v(E + i)}')
        if pk:
            e(f'v_pk_add_f32 {v(t2, 2)}, {v(E, 2)}, {v(E + 2, 2)}')
            for i in range(2, 10):
                e(f'v_pk_add_f32 {v(t2, 2)}, {v(t2, 2)}, {v(E + 2 * i, 2)}')
        else:
            for i in range(1, 10):
                for h in range(2):
                    e(f'v_add_f32 {v(t2 + h)}, {v(t2 + h if i > 1 else E + h)}, {v(E + 2 * i + h)}')
        e(f'v_permlane32_swap_b32 {v(t2)}, {v(t3)}')
        e(f'v_add_f32 {v(t2)}, {v(t2)}, {v(t3)}')
        e(f'v_rcp_f32 {v(t2)}, {v(t2)}')
        e(f'v_mov_b32 {v(t3)}, {v(t2)}')
        e(f'v_permlane32_swap_b32 {v(t2)}, {v(t3)}')
        for i in range(10):
            if pk:
                e(f'v_pk_mul_f32 {v(E + 2 * i, 2)}, {v(E + 2 * i, 2)}, {v(t2, 2)}')
            else:
                for h in range(2):
                    e(f'v_mul_f32 {v(E + 2 * i + h)}, {v(E + 2 * i + h)}, {v(t2 + h)}')
            e(f'v_cvt_pk_bf16_f32 {v(dst + i)}, {v(E + 2 * i)}, {v(E + 2 * i + 1)}')

    def mean_term(self, T, mt, first=False):
        a = ((A00, A01), (A10, A11))[T][mt]
        return f'{M32H} {v(a, 16)}, {a_(aCQ + 2 * T, 2)}, {v(CB + 2 * mt, 2)}, {0 if first else v(a, 16)}'

    def kpart(self, mt, pk):
        e = self.e
        a0, a1, st, KV2 = (A00, A01)[mt], (A10, A11)[mt], STT + 4 * mt, A00
        e(f'v_mov_b32 {v(D16 + 15)}, s{sLO}')
        self.softmax(a0, st, D16, pk)
        X, Y = E, a0
        gap = (lambda n: None) if pk else (lambda n: e(f'; gap {n}'))
        e(f'{M32} {v(X, 16)}, {v(D16, 4)}, {v(PA, 4)}, 0')
        e(f'{M32} {v(X, 16)}, {v(D16 + 4, 4)}, {v(PB, 4)}, {v(X, 16)}')
        for i, src in enumerate((a0 + 10, a0 + 12, a0 + 14, a1 + 10, a1 + 12)):
            for h in range(2):
                e(f'v_mul_f32 {v(src + h)}, {v(src + h)}, {v(st + 2)}')
            e(f'v_cvt_pk_bf16_f32 {v(D16 + 10 + i)}, {v(src)}, {v(src + 1)}')
        gap(1)
        e(f'{M32} {v(Y, 16)}, {v(D16 + 8, 4)}, {v(PA, 4)}, 0')
        e(f'{M32} {v(Y, 16)}, {v(D16 + 12, 4)}, {v(PB, 4)}, {v(Y, 16)}')
        for q in range(8):
            e(f'v_cvt_pk_bf16_f32 {v(D16 + q)}, {v(X + 2 * q)}, {v(X + 2 * q + 1)}')
        gap(2)
        for q in range(8):
            e(f'v_cvt_pk_bf16_f32 {v(D16 + 8 + q)}, {v(Y + 2 * q)}, {v(Y + 2 * q + 1)}')
        gap(1)
        for h in range(2):
            c = v(KV1, 16) if mt or h else '0'
            e(f'{M32} {v(KV1, 16)}, {v(D16 + 4 * h, 4)}, {v(D16 + 8 + 4 * h, 4)}, {c}')
        for h in range(2):
            c = v(KV2, 16) if mt or h else '0'
            e(f'{M32} {v(KV2, 16)}, {v(D16 + 8 + 4 * h, 4)}, {v(D16 + 8 + 4 * h, 4)}, {c}')

    def w2_loads(self, n):
        out = []
        for k in range(self.w2n, min(60, self.w2n + n)):
            i = (k + 20) % 60
            t = f'buffer_load_dwordx4 {a_(4 * i, 4)}, {v(vL16)}, {WS}, s47 offen offset:{(i % 4) * 1024} sc1'
            if i == 59:
                t += f'\ns_sub_u32 s47, s47, {56 * 1024}'
            elif i % 4 == 3:
                t += '\ns_add_u32 s47, s47, 4096'
            out.append(t)
        self.w2n += len(out)
        return out

    def side(self, k):
        a = [self.w1q.pop(0) for _ in range(min(self.cfg.w1split[k], len(self.w1q)))]
        b = self.w2_loads(self.cfg.w2split[k])
        keyed = [((i + 0.5) / len(a), x) for i, x in enumerate(a)] + [((i + 0.5) / len(b), x) for i, x in enumerate(b)]
        out = [x for _, x in sorted(keyed, key=lambda t: t[0])]
        return out

    def p1(self, L):
        e, cfg = self.e, self.cfg
        acc = ((A00, A01), (A10, A11))
        areg = lambda n: 176 + (n % 12) * 4
        wreg = lambda n: 224 + (n % 8) * 4
        e(f's_mul_i32 s16, s{sSW}, 81920')
        e(f's_add_u32 s16, s16, {self.act(L, XF_O)}')
        e(f's_lshl_b32 s17, s{sSW}, 12')
        e(f's_add_u32 s17, s17, {self.act(L, ST_O)}')

        def late_addresses():
            e = self.e
            e(f's_mul_i32 s18, s{sJ}, 102400')
            e(f's_mul_i32 s19, s{sW}, 25600')
            e('s_add_u32 s18, s18, s19')
            e(f's_add_u32 s18, s18, {WOF}')
            e(f's_mul_i32 s20, s{sSW}, {self.ostride()}')
            e(f's_add_u32 s20, s20, {self.act(L, OF_O)}')
            e(f's_mul_i32 s21, s{sGI}, 5120')
            e('s_add_u32 s20, s20, s21')
            e(f's_lshr_b32 s22, s{sJ}, 1')
            e('s_lshl_b32 s22, s22, 5')
            e(f's_add_u32 s22, s22, s{sPAR}')
            e('s_lshl_b32 s22, s22, 3')
            e('s_add_u32 s22, s22, s20')
            e('s_add_u32 s22, s22, 4096')
            e(f's_lshl_b32 s21, s{sJ}, 9')
            e('s_add_u32 s20, s20, s21')
            e('s_add_u32 s21, s20, 40960')
            self.flag_line(23, 1, sSW)
            e(f's_lshl_b32 s24, s{sC}, 2')
            e('s_add_u32 s23, s23, s24')
            e(f's_add_u32 s24, s24, s{sW}')
            e(f's_mul_i32 s24, s24, {8 * KVS}')
            e(f's_add_u32 s24, s24, {KVP + L * 0x100000}')
            for x in range(1, 8):
                e(f's_xor_b32 s{24 + x}, s{sSET}, {x}')
                e(f's_mul_i32 s{24 + x}, s{24 + x}, {KVS}')
                e(f's_add_u32 s{24 + x}, s{24 + x}, s24')
            e(f's_mul_i32 s32, s{sSET}, {KVS}')
            e('s_add_u32 s24, s24, s32')

        def load_a(n):
            t = f'buffer_load_dwordx4 {v(areg(n), 4)}, {v(vL16)}, {self.xbuf()}, s16 offen offset:{(n % 4) * 1024} sc1'
            return t + ('\ns_add_u32 s16, s16, 4096' if n % 4 == 3 else '')

        def load_w(n):
            b, off = lds((n % 80) * 1024)
            return f'ds_read_b128 {v(wreg(n), 4)}, {v(b)} offset:{off}'

        stat_ld = [f'buffer_load_dwordx4 {v(KV1 + 4 * q, 4)}, {v(vSTL)}, {WS}, s17 offen offset:{1024 * q} sc1' for q in range(4)]

        def stats():
            for mt in range(2):
                b, st = KV1 + 8 * mt, STT + 4 * mt
                self.pair_stats(b, b + 4)
                self.hi_lo(CB + 2 * mt, b, b + 3)
                self.e(f'v_mov_b32 {v(st + 2)}, {v(b + 2)}')
                self.e(f'v_mul_f32 {v(st)}, {hex(LOG2E)}, {v(b + 2)}')
                self.e(f'v_mul_f32 {v(st + 1)}, {hex(LOG2E | 0x80000000)}, {v(b + 2)}')

        mf, after = [], {}
        DW = 5

        def load_wo(i):
            r = WO_E + 4 * i if i < 20 else WO_L + 4 * (i - 20)
            t = f'buffer_load_dwordx4 {v(r, 4)}, {v(vL16)}, {WS}, s18 offen offset:{(i % 4) * 1024} sc1'
            return t + ('\ns_add_u32 s18, s18, 4096' if i % 4 == 3 else '')

        if L == 0:
            for ks in range(40):
                for T in range(2):
                    for mt in range(2):
                        c = v(acc[T][mt], 16) if ks else '0'
                        mf.append(f'{M32} {v(acc[T][mt], 16)}, {v(wreg(2 * ks + T), 4)}, {a_(self.x_reg(ks, mt), 4)}, {c}')
            e(f's_mul_i32 s33, s{sC}, 81920')
            e(f's_lshl_b32 s34, s{sW}, 12')
            e('s_add_u32 s33, s33, s34')

            def wq(g):
                t = f's_mov_b32 m0, s34\nbuffer_load_dwordx4 {v(vL16)}, {WS}, s33 offen offset:{(g % 4) * 1024} sc1 lds #wq{g // 4}'
                return t + ('\ns_add_u32 s33, s33, 16384\ns_add_u32 s34, s34, 16384' if g % 4 == 3 else '')
            lead, u0 = cfg.wlead, cfg.xpre[1]
            for g in range(lead):
                e(wq(g))
            for u in range(cfg.xpre[0], u0):
                for x in self.x_read(u, False):
                    e(x)
            late_addresses()
            e('s_waitcnt lgkmcnt(0)')
            for x in self.x_dma(u0):
                e(x)
            e('@wait wq0')
            e('s_barrier')
            for n in range(DW):
                e(load_w(n))
            for ch in range(1, 5):
                spread(after, [f'@wait wq{ch}\ns_barrier'], 32 * ch - 2 * DW)
            spread(after, [wq(g) for g in range(lead, 20)], 0, 8)
            step = cfg.xstep
            for u in range(u0, 20):
                at = (u - u0) * step
                if u + 1 < 20:
                    items = self.x_dma(u + 1)
                    if u - 2 >= u0:
                        items[0] = self.x_done(u - 2) + '\n' + items[0]
                    spread(after, items, at + 1, 2)
                rd = at + step + 1
                assert rd + 4 < 16 * (u // 2), (u, rd)
                assert u < 14 or rd > 16 * (u // 2) - 105
                spread(after, self.x_read(u), rd, 1)
            spread(after, [load_w(n) for n in range(DW, 80)], 0, 2)
            spread(after, [self.colsum_dma(CSQ, 35, SP, 'csq')], 30)
            spread(after, ['@wait csq'], 32 * 3 - 2 * DW - 1)
            spread(after, stat_ld, 60, 4)

            def cs():
                self.colsum(E, SP + 1)
                self.e(f'v_cmp_gt_u32 vcc, 512, {v(vL16)}')
                self.e(f'v_cndmask_b32 {v(E + 1)}, 0, {v(E)}, vcc')
                self.e(f'v_cndmask_b32 {v(E + 2)}, {v(E)}, 0, vcc')
                for q in range(4):
                    self.e(f'v_accvgpr_write_b32 {a_(aCQ + q)}, {v(E + 1 + q // 2)}')
            fill(after, self.capture(cs), 88, 116)
            fill(after, self.capture(stats), 119, 150)
            g2 = [f's_add_u32 s{sVAL}, s{sTAG}, {SEQ_G2}'] + [f'v_mov_b32 {v(vT0 + q)}, s{sVAL}' for q in range(4)]
            g2 += ['s_lshl_b32 s39, s2, 7', f's_add_u32 s39, s39, {G2}', f's_cmp_eq_u32 s{sW}, 0\ns_cselect_b32 s36, 0, {OOB}',
                   f'v_add_u32 {v(SP + 2)}, s36, {v(vL16)}',
                   f's_mov_b64 exec, 0xff\nbuffer_store_dwordx4 {v(vT0, 4)}, {v(SP + 2)}, {WS}, s39 offen sc1\ns_mov_b64 exec, -1',
                   f's_mov_b32 s39, {G2}', f's_mul_i32 s47, s{sJ}, 245760', f's_mul_i32 s36, s{sW}, 61440',
                   's_add_u32 s47, s47, s36', f's_add_u32 s47, s47, {W2F + 20 * 1024}']
            self.w2n = 0
            if cfg.late:
                spread(after, self.nc_stores, cfg.nc_at, 1)
                spread(after, [f'v_mov_b32 {v(SP + 3)}, {v(vG2)}'], cfg.nc_at + 8)
                n_in = 0
            else:
                spread(after, g2, 0, 1, 4)
                g2ld = f'buffer_load_dword {v(vT0)}, {v(vG2)}, {WS}, s39 offen sc1'
                spread(after, [g2ld], cfg.g2[0])
                spread(after, [self.late_check(g2ld, f'v_cmp_ne_u32 vcc, s{sVAL}, {v(vT0)}')], cfg.g2[1])
                n_in = (160 - cfg.g2[1] - 1) // 3
                fill(after, [load_wo(i) for i in range(min(n_in, 12))], cfg.g2[1] + 1, 160)
            if cfg.prew:
                spread(after, [f's_add_u32 s36, s24, 0x100000\nv_mov_b32 {v(vT3)}, s{sTAG}\n'
                               f'buffer_store_dwordx4 {v(vT0, 4)}, {v(vKVS)}, {WS}, s24 offen sc1 #nc',
                               f'buffer_store_dwordx4 {v(vT0, 4)}, {v(vKVS)}, {WS}, s36 offen sc1 #nc'], cfg.nc_at + 6, 1)
                assert cfg.late
            spread(after, ['s_barrier'], 159)
            if L == cfg.fine:
                for g in (0, 23, 55, 87, 119, 140):
                    spread(after, self.capture(lambda: self.stamp(f'p1_{L}_g{g}')), g, 0)
            self.weave(mf, after)
            self.stamp(f'p1_{L}_gemm')
            e(f's_mul_i32 s37, s{sC}, 61440')
            e(f's_mul_i32 s38, s{sW}, 15360')
            e('s_add_u32 s37, s37, s38')
            e(f's_add_u32 s37, s37, {W1F}')
            e(f's_add_u32 s38, s38, {LDS_W1}')
            self.w1q = []
            for i in range(15):
                t = f's_mov_b32 m0, s38\nbuffer_load_dwordx4 {v(vL16)}, {WS}, s37 offen offset:{(i % 4) * 1024} sc1 lds'
                self.w1q.append(t + ('\ns_add_u32 s37, s37, 4096\ns_add_u32 s38, s38, 4096' if i % 4 == 3 else ''))
            for q in range(4):
                e(self.mean_term(q % 2, q // 2))
            if cfg.late:
                self.kpart(0, True)
                for x in g2[:9] + ['@wait nc', 's_barrier'] + g2[9:]:
                    e(x)
                body = self.capture(lambda: self.kpart(1, True))
            else:
                body = self.capture(lambda: [self.kpart(0, True), self.kpart(1, True)])
            extra = [f'buffer_load_dwordx2 {v(SP, 2)}, {v(vOM)}, {WS}, s20 offen sc1 {cfg.ntt}',
                     f'buffer_load_dwordx2 {v(SP, 2)}, {v(vOM)}, {WS}, s21 offen sc1 {cfg.ntt}',
                     f'buffer_load_dwordx2 {v(SP, 2)}, {v(vOR)}, {WS}, s22 offen sc1 {cfg.ntt}']
            wo_next = cfg.wo0 if cfg.late else 20
            extra += [load_wo(i) for i in range(min(n_in, 12), wo_next)]
            if not cfg.late:
                extra += self.side(0)
        else:
            for n in range(80):
                for T in range(2):
                    c = v(acc[T][n // 40], 16) if n else '0'
                    pre = f'@need {v(wreg(2 * n), 4)} {v(wreg(2 * n + 1), 4)} {v(areg(n), 4)}\n' if T == 0 else ''
                    mf.append(f'{pre}{M32} {v(acc[T][n // 40], 16)}, {v(wreg(2 * n + T), 4)}, {v(areg(n), 4)}, {c}')
            e(f'v_lshrrev_b32 {v(vT1)}, 2, {v(vL16)}')
            e(f'v_and_b32 {v(vT1)}, 124, {v(vT1)}')
            for n in range(DW):
                e(load_w(n))
            self.flag_line(33, 0, sSW)
            self.poll(33, vT1, 4 * L + F_X)
            self.stamp(f'p1_{L}_go')
            for n in range(cfg.d1):
                e(load_a(n))
            spread(after, [load_a(n) for n in range(cfg.d1, 80)], 0, 2)
            spread(after, stat_ld, 9, 6)
            spread(after, [load_w(n) for n in range(DW, 160)], 0, 1)
            pour(mf, after, self.capture(late_addresses), 2, 44, 5)
            pour(mf, after, self.capture(stats), 44, 70, 5)
            spread(after, [self.mean_term(0, 1, True), self.mean_term(1, 1, True)], 72, 2)
            spread(after, [self.mean_term(0, 0), self.mean_term(1, 0)], 82, 1)
            tail = self.capture(lambda: self.kpart(0, False))
            if cfg.qa:
                tail += self.capture(lambda: self.softmax(A10, STT, A10, False))
            pour(mf, after, tail, 86, 160, cfg.cap1)
            if L == cfg.fine:
                for g in (0, 12, 28, 44, 60, 79, 100, 120, 140):
                    spread(after, self.capture(lambda: self.stamp(f'p1_{L}_g{g}')), g, 0)
            self.weave(mf, after)
            self.stamp(f'p1_{L}_gemm')
            body = self.capture(lambda: self.kpart(1, True))
            extra = [load_wo(i) for i in range(cfg.wo1)]
            wo_next = cfg.wo1
        after = {}
        fill(after, extra, 1, len(body) - 8)
        self.weave(body, after)

        KV2 = A00
        e(f's_mul_i32 s33, s{sW}, 5120')
        e(f'v_add_u32 {v(vT0)}, s33, {v(vB3)}')
        e(f's_lshl_b32 s33, s{sW}, 10')
        e(f'v_add_u32 {v(vT1)}, s33, {v(vB3)}')
        e(f's_lshl_b32 s33, s{sW}, 2')
        e(f'v_add_u32 {v(vT2)}, s33, {v(vB3)}')
        e(f's_add_u32 s{sVAL}, s{sTAG}, {SEQ_KV + L}')
        e(f'v_mov_b32 {v(D16 + 3)}, s{sVAL}')
        for q in range(4):
            e(f'ds_write_b128 {v(vT0)}, {v(KV1 + 4 * q, 4)} offset:{EXO + 1024 * q}')
        e(f'ds_write_b128 {v(vT0)}, {v(KV2, 4)} offset:{EXO + 4096}')
        e('s_waitcnt lgkmcnt(0)')
        e('s_barrier')
        for src in range(4):
            e(f'ds_read_b128 {v(E + 4 * src, 4)}, {v(vT1)} offset:{EXO + 5120 * src}')
            e(f'ds_read_b32 {v(E + 16 + src)}, {v(vT2)} offset:{EXO + 5120 * src + 4096}')
        for h in range(2):
            e(f'v_pk_add_f32 {v(E + 2 * h, 2)}, {v(E + 2 * h, 2)}, {v(E + 4 + 2 * h, 2)}')
        for h in range(2):
            e(f'v_pk_add_f32 {v(E + 8 + 2 * h, 2)}, {v(E + 8 + 2 * h, 2)}, {v(E + 12 + 2 * h, 2)}')
        e(f'v_pk_add_f32 {v(E + 16, 2)}, {v(E + 16, 2)}, {v(E + 18, 2)}')
        for h in range(2):
            e(f'v_pk_add_f32 {v(E + 2 * h, 2)}, {v(E + 2 * h, 2)}, {v(E + 8 + 2 * h, 2)}')
        e(f'v_add_f32 {v(E + 16)}, {v(E + 16)}, {v(E + 17)}')
        e(f'v_cvt_pk_bf16_f32 {v(D16)}, {v(E)}, {v(E + 1)}')
        e(f'v_cvt_pk_bf16_f32 {v(D16 + 1)}, {v(E + 2)}, {v(E + 3)}')
        e(f'v_cvt_pk_bf16_f32 {v(D16 + 2)}, {v(E + 16)}, 0')
        e(f'buffer_store_dwordx4 {v(D16, 4)}, {v(vKVS)}, {WS}, s24 offen sc1')
        e('s_barrier')
        self.stamp(f'p1_{L}_kvpub')
        G = A00
        gld = [f'buffer_load_dwordx4 {v(G + 4 * x, 4)}, {v(vKVL)}, {WS}, s{25 + x} offen sc1' for x in range(7)]
        body = self.capture(lambda: [self.softmax(acc[1][mt], STT + 4 * mt, acc[1][mt], True)
                                     for mt in range(1 if L and cfg.qa else 0, 2)])
        extra = [load_wo(i) for i in range(wo_next, 25)]
        if L == 0 and cfg.late:
            g2ld = f'buffer_load_dword {v(SP + 2)}, {v(SP + 3)}, {WS}, s39 offen sc1'
            e(f's_add_u32 s36, s{sTAG}, {SEQ_G2}')
            extra = [g2ld] + extra + [self.late_check(g2ld, f'v_cmp_ne_u32 vcc, s36, {v(SP + 2)}')]
        if L == 0:
            extra += self.side(1)
        after = {}
        fill(after, extra, 0, len(body) - cfg.gat[L])
        self.weave(body, after)
        if L == 0:
            self.rowmajor(33, 34, vT0, vT1, vT2)
            e(f'buffer_load_dwordx4 {v(SP, 4)}, {v(vT0)}, {s_(S_X, 4)}, s33 offen')
            e(f'buffer_load_dwordx4 {v(SP + 4, 4)}, {v(vT0)}, {s_(S_X, 4)}, s33 offen offset:64')
            e(f'buffer_load_dwordx2 {v(SP + 8, 2)}, {v(vT1)}, {s_(S_X, 4)}, s34 offen')
        self.stamp(f'p1_{L}_smq')
        e(f's_lshr_b32 s33, s{sW}, 1')
        e('s_lshl_b32 s33, s33, 10')
        e(f's_and_b32 s34, s{sW}, 1')
        e('s_lshl_b32 s34, s34, 3')
        e('s_add_u32 s33, s33, s34')
        e(f'v_add_u32 {v(E + 10)}, s33, {v(vB3)}')
        e(f'v_lshrrev_b32 {v(E + 11)}, 1, {v(vL16)}')
        e(f'v_add_u32 {v(E + 11)}, {LDS_EX + 2048}, {v(E + 11)}')
        e(f's_lshl_b32 s33, s{sW}, 1')
        e(f'v_add_u32 {v(E + 12)}, s33, {v(E + 11)}')
        lab = self.label('kv')
        e(f's_mov_b32 s{sCNT}, 0')
        e(f'{lab}:')
        for x in gld:
            e(x)
        e(f's_add_u32 s{sCNT}, s{sCNT}, 1')
        e(f's_cmp_gt_u32 s{sCNT}, 0x40000')
        e('s_cbranch_scc1 Lend')
        for i in range(5):
            if i % 2 == 0:
                e(f'v_lshlrev_b32 {v(E + i)}, 16, {v(D16 + i // 2)}')
            else:
                e(f'v_and_b32 {v(E + i)}, 0xffff0000, {v(D16 + i // 2)}')
        e(f'v_mov_b32 {v(vT0)}, 0')
        for x in range(7):
            for i in range(5):
                e(f'v_dot2c_f32_bf16 {v(E + i)}, s{sHI if i % 2 else sLO}, {v(G + 4 * x + i // 2)}')
            e(f'v_bitop3_b32 {v(vT0)}, {v(vT0)}, {v(G + 4 * x + 3)}, s{sVAL} bitop3:0xf6')
        e(f'v_cmp_ne_u32 vcc, 0, {v(vT0)}')
        e(f's_cbranch_vccnz {lab}')
        self.stamp(f'p1_{L}_kvgot')
        if L == 0:
            for x in self.side(2):
                e(x)
        e(f'v_cvt_pk_bf16_f32 {v(E + 6)}, {v(E)}, {v(E + 1)}')
        e(f'v_cvt_pk_bf16_f32 {v(E + 7)}, {v(E + 2)}, {v(E + 3)}')
        e(f'v_cvt_pk_bf16_f32 {v(E + 8)}, {v(E + 4)}, {v(E + 4)}')
        e(f'ds_write_b64 {v(E + 10)}, {v(E + 6, 2)} offset:{EXO}')
        e(f'ds_write_b16 {v(E + 12)}, {v(E + 8)}')
        e('s_waitcnt lgkmcnt(0)')
        e('s_barrier')
        e(f'ds_read_b128 {v(D16, 4)}, {v(vB3)} offset:{EXO}')
        e(f'ds_read_b128 {v(D16 + 4, 4)}, {v(vB3)} offset:{EXO + 1024}')
        e(f'ds_read_b64 {v(D16 + 8, 2)}, {v(E + 11)}')
        for mt in range(2):
            O, Q = acc[0][mt], acc[1][mt]
            e(f'{M32} {v(O, 16)}, {v(D16, 4)}, {v(Q, 4)}, 0')
            e(f'{M32} {v(O, 16)}, {v(D16 + 4, 4)}, {v(Q + 4, 4)}, {v(O, 16)}')
        for mt in range(2):
            O, Q = acc[0][mt], acc[1][mt]
            e(f'{M32H} {v(O, 16)}, {v(D16 + 8, 2)}, {v(Q + 8, 2)}, {v(O, 16)}')
        for mt in range(2):
            O, P = acc[0][mt], E + 4 * mt
            e(f'v_add_f32 {v(O + 14)}, {hex(EPS_DEN)}, {v(O + 14)}')
            e(f'v_rcp_f32 {v(O + 14)}, {v(O + 14)}')
            for i in range(5):
                e(f'v_pk_mul_f32 {v(O + 4 + 2 * i, 2)}, {v(O + 4 + 2 * i, 2)}, {v(O + 14, 2)} op_sel_hi:[1,0]')
            for i in range(5):
                e(f'v_cvt_pk_bf16_f32 {v(P + i if i < 4 else E + 8 + mt)}, {v(O + 4 + 2 * i)}, {v(O + 5 + 2 * i)}')
            e(f'buffer_store_dwordx4 {v(P, 4)}, {v(vOM)}, {WS}, s{20 + mt} offen {self.st} #o{L}')
        e(f'v_permlane32_swap_b32 {v(E + 8)}, {v(E + 9)}')
        e(f'buffer_store_dwordx2 {v(E + 8, 2)}, {v(vOR)}, {WS}, s22 offen {self.st} #o{L}')
        e(self.flag_store(23, 4 * L + F_O, vT0, f'o{L}'))
        self.stamp(f'p1_{L}_end')
        if L == 0:
            for x in self.side(3):
                e(x)
            self.unpack(R, SP, 10)

    def k_addresses(self, d, nk, abase, gstride, mstride):
        e = self.e
        e(f's_mul_i32 s{d + 4}, s{sSG}, {gstride}')
        e(f's_add_u32 s{d + 4}, s{d + 4}, {abase}')
        e(f's_mul_i32 s{d + 5}, s{sW}, {nk * 1024}')
        e(f's_add_u32 s{d + 4}, s{d + 4}, s{d + 5}')
        for s in range(4):
            e(f's_add_u32 s{d + s}, s{sW}, {s + 1}')
            e(f's_and_b32 s{d + s}, s{d + s}, 3')
            e(f's_mul_i32 s{d + s}, s{d + s}, {mstride}')
            e(f's_add_u32 s{d + s}, s{d + s}, s{d + 4}')
        for s in range(3):
            e(f's_sub_u32 s{d + 4 + s}, s{sW}, {s + 1}')
            e(f's_and_b32 s{d + 4 + s}, s{d + 4 + s}, 3')
            e(f's_mul_i32 s{d + 4 + s}, s{d + 4 + s}, 5120')

    def k_body(self, nk, wreg, areg, X, init3):
        mf = []
        for s in range(4):
            acc = X[s % 2]
            for k in range(nk):
                for t in range(5):
                    c = v(acc + 4 * t, 4) if (k or (s == 3 and init3)) else '0'
                    pre = f'@need {v(areg(s * nk + k), 4)}\n' if t == 0 else ''
                    mf.append(f'{pre}{M16} {v(acc + 4 * t, 4)}, {wreg(k, t)}, {v(areg(s * nk + k), 4)}, {c}')
        return mf

    def k_exchange(self, nk, d, X, Z, pos, after, base, vw, vr):
        wr, r0, a0, a1 = pos
        adds = []
        for s in range(1, 4):
            b, prev = base + s * nk * 5, X[(s - 1) % 2]
            spread(after, ['s_waitcnt lgkmcnt(0)\ns_barrier'], b + wr[0] - 1)
            for t in range(5):
                spread(after, [f'ds_write_b128 {v(vw)}, {v(prev + 4 * t, 4)} offset:{EXO + 1024 * t}'], b + wr[t])
            spread(after, [f'v_add_u32 {v(vr)}, s{d + 3 + s}, {v(vB3)}'], b + r0 - 1)
            spread(after, ['s_waitcnt lgkmcnt(0)\ns_barrier'], b + r0)
            spread(after, [f'ds_read_b128 {v(Z + 4 * t, 4)}, {v(vr)} offset:{EXO + 1024 * t}' for t in range(5)], b + r0 + 1, 1)
            if s < 3 or a1 <= nk * 5:
                adds.append(([f'v_add_f32 {v(R + q)}, {v(R + q)}, {v(Z + q)}' for q in range(20)], b + a0, b + a1))
        return adds

    def k_load(self, i, nk, d, areg):
        s, k = divmod(i, nk)
        t = f'buffer_load_dwordx4 {v(areg(i), 4)}, {v(vL16)}, {WS}, s{d + s} offen offset:{(k % 4) * 1024} sc1'
        return t + (f'\ns_add_u32 s{d + s}, s{d + s}, 4096' if k % 4 == 3 and k + 1 < nk else '')

    def add_tile(self, src):
        for q in range(10):
            self.e(f'v_pk_add_f32 {v(R + 2 * q, 2)}, {v(R + 2 * q, 2)}, {v(src + 2 * q, 2)}')

    def stats_addr(self, d, base):
        e = self.e
        e(f's_lshl_b32 s{d}, s{sSG}, 2')
        e(f's_add_u32 s{d}, s{d}, s{sW}')
        e(f's_lshl_b32 s{d}, s{d}, 2')
        e(f's_lshr_b32 s{d + 1}, s{sJ}, 2')
        e(f's_add_u32 s{d}, s{d}, s{d + 1}')
        e(f's_lshl_b32 s{d}, s{d}, 6')
        e(f's_and_b32 s{d + 1}, s{sJ}, 3')
        e(f's_add_u32 s{d}, s{d}, s{d + 1}')
        e(f's_lshl_b32 s{d}, s{d}, 2')
        e(f's_add_u32 s{d}, s{d}, {base}')
        e(f's_lshl_b32 s{d + 1}, s{sSG}, 3')
        e(f's_add_u32 s{d + 1}, s{d + 1}, s{sJ}')
        e(f's_lshl_b32 s{d + 1}, s{d + 1}, 2')
        e(f's_add_u32 s{d + 1}, s{d + 1}, s{sW}')
        e(f's_lshl_b32 s{d + 1}, s{d + 1}, 2')
        e(f's_add_u32 s{d + 1}, s{d + 1}, {FL}')

    def publish_tile(self, P, d, vpair, step, vsingle, seq):
        e, st, t = self.e, self.st, P + 12
        for q in range(12):
            e(f'v_cvt_pk_bf16_f32 {v(P + q)}, {v(R + 2 * (q if q < 10 else q - 2))}, {v(R + 2 * (q if q < 10 else q - 2) + 1)}')
            if q == 3:
                e(f'buffer_store_dwordx4 {v(P, 4)}, {v(vpair)}, {self.xbuf()}, s{d} offen {st} #x{seq}')
            if q == 7:
                e(f'buffer_store_dwordx4 {v(P + 4, 4)}, {v(vpair)}, {self.xbuf()}, s{d} offen offset:{step} {st} #x{seq}')
        e(f'v_pk_add_f32 {v(t, 2)}, {v(R, 2)}, {v(R + 2, 2)}')
        e(f'v_pk_mul_f32 {v(t + 2, 2)}, {v(R, 2)}, {v(R, 2)}')
        e(f'v_permlane16_swap_b32 {v(P + 8)}, {v(P + 10)}')
        e(f'v_permlane16_swap_b32 {v(P + 9)}, {v(P + 11)}')
        e(f'buffer_store_dwordx4 {v(P + 8, 4)}, {v(vsingle)}, {self.xbuf()}, s{d + 1} offen {st} #x{seq}')
        for i in range(1, 10):
            if i > 1:
                e(f'v_pk_add_f32 {v(t, 2)}, {v(t, 2)}, {v(R + 2 * i, 2)}')
            e(f'v_pk_fma_f32 {v(t + 2, 2)}, {v(R + 2 * i, 2)}, {v(R + 2 * i, 2)}, {v(t + 2, 2)}')
        e(f'v_add_f32 {v(t)}, {v(t)}, {v(t + 1)}')
        e(f'v_add_f32 {v(t + 2)}, {v(t + 2)}, {v(t + 3)}')
        e(f'v_permlane32_swap_b32 {v(t)}, {v(t + 2)}')
        e(f'v_add_f32 {v(t + 1)}, {v(t)}, {v(t + 2)}')
        e(f'v_add_f32 {v(t)}, {v(t)}, {v(t + 2)}')
        e(f'v_permlane16_swap_b32 {v(t)}, {v(t + 1)}')
        e(f'v_add_f32 {v(t)}, {v(t)}, {v(t + 1)}')
        e(f'buffer_store_dword {v(t)}, {v(vST)}, {WS}, s{d + 2} offen {st} #x{seq}')
        e(self.flag_store(d + 3, seq, vT0, f'x{seq}'))

    def p2(self, L):
        e, cfg = self.e, self.cfg
        wreg = lambda k, t: v(WO_E + 4 * (5 * k + t), 4) if k < 4 else v(WO_L + 4 * t, 4)
        areg = lambda i: 44 + 4 * (i % 10)
        self.k_addresses(16, 5, self.act(L, OF_O), self.ostride(), 20480)
        self.flag_line(23, 1, sSG)
        e(f's_lshl_b32 s24, s{sW}, 5')
        e('s_add_u32 s23, s23, s24')
        e(f'v_lshrrev_b32 {v(vT1)}, 2, {v(vL16)}')
        e(f'v_and_b32 {v(vT1)}, 28, {v(vT1)}')
        self.poll(23, vT1, 4 * L + F_O)
        self.stamp(f'p2_{L}_go')
        for i in range(cfg.d2):
            e(self.k_load(i, 5, 16, areg))
        e(f's_mul_i32 s24, s{sW}, 5120')
        e(f'v_add_u32 {v(vT1)}, s24, {v(vB3)}')
        e(f's_lshl_b32 s24, s{sSG}, 2')
        e(f's_add_u32 s24, s24, s{sW}')
        e('s_mul_i32 s24, s24, 20480')
        e(f's_add_u32 s24, s24, {self.act(L, X1F_O)}')
        e(f's_lshl_b32 s25, s{sKSS}, 1')
        e(f's_add_u32 s25, s25, s{sPAR}')
        e('s_lshl_b32 s25, s25, 9')
        e('s_add_u32 s25, s25, s24')
        e(f's_lshl_b32 s26, s{sKSA}, 10')
        e('s_add_u32 s24, s24, s26')
        self.stats_addr(26, self.act(L, ST1_O))
        after = {}
        mf = self.k_body(5, wreg, areg, (84, 104), False)
        adds = self.k_exchange(5, 16, (84, 104), 124, cfg.kp2, after, 0, vT1, vT2)
        spread(after, [self.k_load(i, 5, 16, areg) for i in range(cfg.d2, 20)], 0, 5)
        for items, lo, hi in adds:
            pour(mf, after, items, lo, hi, 2)
        if L == 0:
            rest = self.side(4) + self.w1q
            if rest:
                fill(after, rest, 2, 70)
            spread(after, [f'buffer_load_dwordx2 {v(SP, 2)}, {v(vL16)}, {self.xbuf()}, s24 offen sc1 {cfg.ntt}',
                           f'buffer_load_dwordx2 {v(SP, 2)}, {v(vL16)}, {self.xbuf()}, s24 offen offset:1024 sc1 {cfg.ntt}',
                           f'buffer_load_dwordx2 {v(SP, 2)}, {v(vXS1)}, {self.xbuf()}, s25 offen sc1 {cfg.ntt}'], 5 * (20 - cfg.d2), 1)
        self.weave(mf, after)
        self.add_tile(124)
        self.add_tile(104)
        self.stamp(f'p2_{L}_gemm')
        self.publish_tile(44, 24, vL16, 1024, vXS1, 4 * L + F_X1)
        self.stamp(f'p2_{L}_end')

    def p34(self, L):
        e, cfg = self.e, self.cfg
        ACC, WB, SB, PK, RING, X0, X1, T8 = 44, 92, 128, 144, 160, 208, 228, 248
        acc = lambda lt, n: ACC + 4 * (3 * n + lt)
        wreg = lambda n: WB + (n % 9) * 4
        areg = lambda n: RING + (n % 12) * 4
        if L == 0:
            e('s_barrier')
            e(self.colsum_dma(CS1, 16, vT1, 'cs1'))
            for x in self.w2_loads(cfg.w2split[5]):
                e(x)
        e(f's_mul_i32 s24, s{sSW}, 81920')
        e(f's_add_u32 s24, s24, {self.act(L, X1F_O)}')
        e(f's_lshl_b32 s25, s{sSW}, 12')
        e(f's_add_u32 s25, s25, {self.act(L, ST1_O)}')
        for n in range(4):
            e(f's_add_u32 s{28 + n}, s{sGI}, {n + 1}')
            e(f's_and_b32 s{28 + n}, s{28 + n}, 3')
            e(f's_mul_i32 s{16 + n}, s{28 + n}, 20480')
            e(f's_add_u32 s{16 + n}, s{16 + n}, s24')
            e(f's_lshl_b32 s{20 + n}, s{28 + n}, 10')
            e(f's_add_u32 s{20 + n}, s{20 + n}, s25')
        e(f'v_lshrrev_b32 {v(vT1)}, 2, {v(vL16)}')
        e(f'v_and_b32 {v(vT1)}, 124, {v(vT1)}')

        def load_w(n):
            b, off = lds(LDS_W1 + (n % 60) * 1024)
            return f'ds_read_b128 {v(wreg(n), 4)}, {v(b)} offset:{off}'

        def load_a(n):
            if n >= 80:
                return self.k_load(n - 80, 12, 36, lambda i: areg(80 + i))
            h, r = divmod(n, 40)
            ks, m = divmod(r, 2)
            t = f'buffer_load_dwordx4 {v(areg(n), 4)}, {v(vL16)}, {self.xbuf()}, s{16 + 2 * h + m} offen offset:{(ks % 4) * 1024} sc1'
            return t + (f'\ns_add_u32 s{16 + 2 * h + m}, s{16 + 2 * h + m}, 4096' if ks % 4 == 3 else '')
        DW = 5
        for n in range(DW):
            e(load_w(n))
        self.flag_line(24, 0, sSW)
        self.poll(24, vT1, 4 * L + F_X1)
        self.stamp(f'p3_{L}_go')
        for n in range(cfg.d3):
            e(load_a(n))

        def addresses():
            e = self.e
            e(f's_mul_i32 s32, s{sSW}, 196608')
            e(f's_add_u32 s32, s32, {self.act(L, HF_O)}')
            e(f's_lshr_b32 s33, s{sC}, 1')
            e('s_mul_i32 s33, s33, 3072')
            e('s_add_u32 s32, s32, s33')
            e(f's_lshl_b32 s33, s{sPAR}, 11')
            e('s_add_u32 s33, s33, s32')
            e(f'v_bfe_u32 {v(vT2)}, {v(vL16)}, 8, 1')
            e(f'v_cmp_eq_u32 vcc, 1, {v(vT2)}')
            e(f'v_and_b32 {v(vT2)}, 0x1ff, {v(vXS1)}')
            for n in range(4):
                e(f's_mul_i32 s{28 + n}, s{28 + n}, 49152')
                if n % 2 == 0:
                    e(f'v_mov_b32 {v(T8 + n // 2)}, s{28 + n}')
                else:
                    e(f'v_mov_b32 {v(vT3)}, s{28 + n}')
                    e(f'v_cndmask_b32 {v(T8 + n // 2)}, {v(T8 + n // 2)}, {v(vT3)}, vcc')
                    e(f'v_add_u32 {v(T8 + n // 2)}, {v(T8 + n // 2)}, {v(vT2)}')
                e(f's_add_u32 s{28 + n}, s{28 + n}, s33')
            e(f's_lshl_b32 s33, s{sPAR}, 9')
            e('s_add_u32 s32, s32, s33')
            self.flag_line(33, 1, sSW)
            e(f's_lshl_b32 s34, s{sC}, 2')
            e('s_add_u32 s33, s33, s34')
            e('s_add_u32 s34, s33, 4096')
            self.k_addresses(36, 12, self.act(L, HF_O), 196608, 49152)
            self.flag_line(35, 1, sSG)
            e(f's_lshl_b32 s43, s{sW}, 5')
            e('s_add_u32 s35, s35, s43')
            e(f'v_lshrrev_b32 {v(T8 + 2)}, 2, {v(vL16)}')
            e(f'v_and_b32 {v(T8 + 2)}, 28, {v(T8 + 2)}')
            e(f's_mul_i32 s43, s{sW}, 5120')
            e(f'v_add_u32 {v(T8 + 3)}, s43, {v(vB3)}')
            e('s_mov_b32 s44, 0')
            e('s_mov_b32 s45, 0xffff0000')
            e(f's_add_u32 s{sVAL}, s{sTAG}, {4 * L + F_H}')

        def stats(h):
            e = self.e
            a, b = SB + 8 * h, SB + 8 * h + 4
            self.pair_stats(a, b)
            e(f'v_mul_f32 {v(a + 1)}, {v(a + 1)}, {v(a + 2)}')
            for q in range(3):
                e(f'v_mov_b32 {v(b + q)}, {v(a + q)}')
            for q in range(3):
                e(f'v_permlane16_swap_b32 {v(a + q)}, {v(b + q)}')
            for x in (a, b):
                e(f'v_cndmask_b32 {v(vT2)}, {v(x)}, {v(x + 1)}, s[44:45]')
                self.hi_lo(x, vT2, x + 3)

        def cs():
            e = self.e
            self.colsum(PK, vT3)
            e(f'v_lshrrev_b32 {v(PK + 1)}, 8, {v(vL16)}')
            for lt in range(3):
                e(f'v_cmp_eq_u32 vcc, {lt}, {v(PK + 1)}')
                e(f'v_accvgpr_read_b32 {v(PK + 3)}, {a_(aB1 + lt)}')
                e(f'v_cndmask_b32 {v(PK + 2)}, 0, {v(PK)}, vcc')
                e(f'v_cndmask_b32 {v(PK + 2)}, {v(PK + 2)}, {v(PK + 3)}, s[44:45]')
                e(f'v_accvgpr_write_b32 {a_(aC1 + 2 * lt)}, {v(PK + 2)}')
                e(f'v_accvgpr_write_b32 {a_(aC1 + 2 * lt + 1)}, {v(PK + 2)}')

        def finish(h):
            e, st = self.e, (self.st or (cfg.hs if L == 1 else ''))
            for m in range(2):
                for lt in range(3):
                    n = 2 * h + m
                    e(f'{M16H} {v(acc(lt, n), 4)}, {a_(aC1 + 2 * lt, 2)}, {v(SB + 4 * n, 2)}, {v(acc(lt, n), 4)}')
            for m in range(2):
                n = 2 * h + m
                a = acc(0, n)
                for q in range(6):
                    for z in range(2):
                        x = a + 2 * q + z
                        e(f'v_mul_f32 {v(x)}, {v(x)}, {v(SB + 4 * n + 2)}')
                        e(f'v_mul_f32 {v(x)}, {v(x)}, abs({v(x)})')
                    dst = PK + 4 * m + q if q < 4 else PK + 8 + 2 * m + q - 4
                    e(f'v_cvt_pk_bf16_f32 {v(dst)}, {v(a + 2 * q)}, {v(a + 2 * q + 1)}')
                    e(f'v_pk_max_i16 {v(dst)}, {v(dst)}, 0')
                    if q == 3:
                        e(f'buffer_store_dwordx4 {v(PK + 4 * m, 4)}, {v(vL16)}, {WS}, s{28 + n} offen {st} #h{h}{L}')
            e(f'v_permlane16_swap_b32 {v(PK + 8)}, {v(PK + 10)}')
            e(f'v_permlane16_swap_b32 {v(PK + 9)}, {v(PK + 11)}')
            e(f'buffer_store_dwordx4 {v(PK + 8, 4)}, {v(T8 + h)}, {WS}, s32 offen offset:1024 {st} #h{h}{L}')

        mf, after = [], {}
        for h in range(2):
            for ks in range(20):
                for m in range(2):
                    for lt in range(3):
                        n, wn = 2 * h + m, 60 * h + 3 * ks + lt
                        c = v(acc(lt, n), 4) if ks else '0'
                        pre = ''
                        if lt == 0:
                            regs = [v(areg(40 * h + 2 * ks + m), 4)] + ([v(wreg(wn + q), 4) for q in range(3)] if m == 0 else [])
                            pre = '@need ' + ' '.join(regs) + '\n'
                        mf.append(f'{pre}{M16} {v(acc(lt, n), 4)}, {v(wreg(wn), 4)}, {v(areg(40 * h + 2 * ks + m), 4)}, {c}')
        mf += self.k_body(12, lambda k, t: a_(4 * (5 * k + t), 4), lambda i: areg(80 + i), (X0, X1), True)
        spread(after, [load_w(n) for n in range(DW, 120)], 1, 2)
        spread(after, [f'buffer_load_dwordx4 {v(SB + 4 * n, 4)}, {v(vSTL)}, {WS}, s{20 + n} offen sc1' for n in range(4)], 14, 6)
        adds = self.k_exchange(12, 36, (X0, X1), ACC, cfg.kp4, after, 240, T8 + 3, vT1)
        need = lambda n: 3 * n if n < 80 else 240 + 5 * (n - 80)
        D = cfg.d3
        pl = f'buffer_load_dword {v(vT0)}, {v(T8 + 2)}, {WS}, s35 offen sc1'
        pc = f'v_cmp_ne_u32 vcc, s{sVAL}, {v(vT0)}'
        spread(after, [pl], cfg.ga[0])
        spread(after, [self.late_check(pl, pc) + '\ns_add_u32 s35, s35, 4096'], cfg.ga[1])
        spread(after, [pl], cfg.gb[0])
        spread(after, [self.late_check(pl, pc)], cfg.gb[1])
        for n in range(D, 128):
            at = need(n - D)
            if n >= 80:
                at = max(at, cfg.ga[1] + n - 80)
            if n >= 104:
                at = max(at, cfg.gb[1] + n - 104)
            spread(after, [load_a(n)], at)
        spread(after, [self.flag_store(33, 4 * L + F_H, vT3, f'h0{L}')], cfg.fa[2])
        spread(after, [self.flag_store(34, 4 * L + F_H, vT3, f'h1{L}')], cfg.fb[2])
        BR = X1 + 10

        def bias_addr():
            e = self.e
            e(f'v_lshrrev_b32 {v(T8 + 4)}, 8, {v(vL16)}')
            e(f'v_lshlrev_b32 {v(T8 + 5)}, 3, {v(T8 + 4)}')
            e(f'v_lshlrev_b32 {v(T8 + 4)}, 4, {v(T8 + 4)}')
            e(f's_lshl_b32 s20, s{sKSA}, 6')
            e(f's_lshl_b32 s21, s{sKSS}, 1')
            e(f's_add_u32 s21, s21, s{sPAR}')
            e('s_lshl_b32 s21, s21, 5')
            if L == 1:
                self.rowmajor(24, 25, T8 + 6, T8 + 7, vT2)
            else:
                self.xf_offsets(24, L + 1)
                self.stats_addr(26, self.act(L + 1, ST_O))
        if L == 0:
            spread(after, ['@wait cs1\ns_barrier'], 40)
            rest = self.w2_loads(60)
            if rest:
                fill(after, rest, cfg.w2r[0], cfg.w2r[1])
            for h in range(2):
                spread(after, [f'buffer_load_dwordx2 {v(X0, 2)}, {v(vL16)}, {WS}, s{28 + 2 * h + m} offen sc1 {cfg.ntt}' for m in range(2)] +
                       [f'buffer_load_dwordx2 {v(X0, 2)}, {v(T8 + h)}, {WS}, s32 offen offset:1024 sc1 {cfg.ntt}'], 80 + 110 * h, 3)
        pour(mf, after, self.capture(addresses), 0, 40, cfg.cap3)
        if L == 0:
            pour(mf, after, self.capture(cs), 41, 75, cfg.cap3)
        pour(mf, after, self.capture(lambda: stats(0)), 76, 118, cfg.cap3)
        pour(mf, after, self.capture(lambda: finish(0)), cfg.fa[0], cfg.fa[1], cfg.cap3)
        pour(mf, after, self.capture(lambda: stats(1)) + self.capture(bias_addr), cfg.fa[1], 236, cfg.cap3)
        spread(after, [f'buffer_load_dwordx4 {v(WB, 4)}, {v(T8 + 4)}, {B2}, s20 offen',
                       f'buffer_load_dwordx4 {v(WB + 4, 4)}, {v(T8 + 4)}, {B2}, s20 offen offset:64',
                       f'buffer_load_dwordx2 {v(WB + 8, 2)}, {v(T8 + 5)}, {B2}, s21 offen'], 341, 5)
        pour(mf, after, self.capture(lambda: finish(1)), cfg.fb[0], cfg.fb[1], 2)
        pour(mf, after, self.capture(lambda: self.unpack(X1, WB, 10)), 360 + cfg.kp4[1] + 1, 419, 2)
        for items, lo, hi in adds:
            pour(mf, after, items, lo, hi, 2)
        if L == 0 and cfg.code2:
            pc = self.label('pc')
            spread(after, [f's_getpc_b64 s[22:23]\n{pc}:\ns_lshl_b32 s16, s{sC}, 2\ns_add_u32 s16, s16, s{sW}\ns_lshl_b32 s16, s16, 8\n'
                           f'v_lshl_add_u32 {v(vT2)}, {v(vL16)}, 3, s16\nv_min_u32 {v(vT2)}, {self.end_label}-{pc}, {v(vT2)}\n'
                           f's_mov_b64 exec, 3\nglobal_load_dword {v(vT2)}, {v(vT2)}, s[22:23]\ns_mov_b64 exec, -1'], cfg.code2)
        if L == 1 and cfg.wb:
            skip, join = self.label('nowb'), self.label('wb')
            spread(after, [f's_or_b32 s16, s{sC}, s{sW}\ns_cmp_eq_u32 s16, 0\ns_cbranch_scc1 {skip}\n'
                           f'buffer_load_dword {v(vT0)}, {v(vXS1)}, {B2}, 0 offen\n{join}:'], cfg.wb)
            self.tails.append(self.capture(lambda: self.e(f'{skip}:\nbuffer_wbl2 sc1\ns_branch {join}')))
        if L + 2 == cfg.fine:
            for g in cfg.fg:
                spread(after, self.capture(lambda: self.stamp(f'p3_{L}_g{g}')), g, 0)
        self.weave(mf, after)
        self.add_tile(X1)
        self.stamp(f'p4_{L}_gemm')
        if L == 1:
            for q in range(10):
                e(f'v_cvt_pk_bf16_f32 {v(PK + q)}, {v(R + 2 * q)}, {v(R + 2 * q + 1)}')
            e(f'buffer_store_dwordx4 {v(PK, 4)}, {v(T8 + 6)}, {OUT}, s24 offen {self.st}')
            e(f'buffer_store_dwordx4 {v(PK + 4, 4)}, {v(T8 + 6)}, {OUT}, s24 offen offset:64 {self.st}')
            e(f'buffer_store_dwordx2 {v(PK + 8, 2)}, {v(T8 + 7)}, {OUT}, s25 offen {self.st}')
        else:
            self.publish_tile(PK, 24, vXF, 2048, vXS2, 4 * (L + 1) + F_X)
            e('s_barrier')
        self.stamp(f'p4_{L}_end')

    def body(self):
        e = self.e
        for L in range(2):
            self.p1(L)
            self.p2(L)
            self.p34(L)
        e(f's_add_u32 s{sVAL}, s{sTAG}, 16')
        e(f'v_mov_b32 {v(vT0)}, s{sVAL}')
        e(f's_mov_b32 s16, {EPOCH}')
        e(f's_or_b32 s17, s2, s{sW}')
        e('s_cmp_eq_u32 s17, 0')
        e(f's_cselect_b32 s17, 0, {OOB}')
        e(f'v_mov_b32 {v(vT1)}, s17')
        e('s_mov_b64 exec, 1')
        e(f'buffer_store_dword {v(vT0)}, {v(vT1)}, {WS}, s16 offen sc1')
        e('s_mov_b64 exec, -1')
        if self.cfg.diag:
            lab = self.label('diag')
            e(f'{lab}:')
            e('s_memrealtime s[62:63]')
            e('s_waitcnt lgkmcnt(0)')
            e('s_sub_u32 s62, s62, s100')
            e(f's_cmp_lt_u32 s62, {self.cfg.diag}')
            e(f's_cbranch_scc1 {lab}')
        if self.stamping:
            e('s_waitcnt vmcnt(0)')
            self.stamp('done')
            e('s_memrealtime s[62:63]')
            e('s_waitcnt lgkmcnt(0)')
            e('s_mov_b32 s101, s62')
            e('s_lshl_b32 s16, s2, 2')
            e(f's_add_u32 s16, s16, s{sW}')
            e('s_lshl_b32 s16, s16, 8')
            e(f's_add_u32 s16, s16, {STAMP}')
            for i in range(38):
                e(f'v_mov_b32 {v(44 + i)}, s{sSTAMP + i}')
            e('s_mov_b64 exec, 1')
            for i in range(10):
                e(f'buffer_store_dwordx4 {v(44 + 4 * i, 4)}, {v(vL16)}, {WS}, s16 offen offset:{16 * i}')
        e('s_endpgm')
        tails, self.tails = self.tails, []
        for t in tails:
            e.reset()
            e.extend(t)

    def build(self):
        e, cfg = self.e, self.cfg
        self.prologue()
        self.st, self.end_label = ('sc1' if cfg.force_slow else ''), 'Lfast_end'
        self.body()
        e('Lfast_end:')
        e('Lend:')
        e('s_endpgm')
        if cfg.both:
            e.reset()
            e('Lslow:')
            self.st, self.stamping, self.end_label = 'sc1', False, 'Lslow_end'
            self.body()
            e('Lslow_end:')
            e('s_endpgm')
        txt = f'; @launch grid=(256,1,1) block=(256,1,1) lds={LDS_TOTAL}\n'
        txt += '.amdgcn_target "amdgcn-amd-amdhsa--gfx950"\n.text\n' + re.sub(r'; gap \d+\n', '', e.finalize()).replace(' offset:0', '').replace('    ', ' ')
        txt += f""".section .rodata,"a"
.p2align 6
.amdhsa_kernel {NAME}_kernel
  .amdhsa_next_free_vgpr 512
  .amdhsa_next_free_sgpr 102
  .amdhsa_accum_offset 256
  .amdhsa_group_segment_fixed_size 0
  .amdhsa_kernarg_size 96
  .amdhsa_user_sgpr_count 2
  .amdhsa_user_sgpr_kernarg_segment_ptr 1
  .amdhsa_system_sgpr_workgroup_id_x 1
.end_amdhsa_kernel
"""
        return txt


def parse_cfg(args):
    cfg = Cfg()
    for a in args:
        if '=' in a:
            k, val = a.split('=')
            assert hasattr(cfg, k), k
            setattr(cfg, k, val if isinstance(getattr(cfg, k), str) else eval(val))
    return cfg


def build(cfg):
    g = Gen(cfg)
    return g.build(), g.e, g


if __name__ == '__main__':
    txt, e, g = build(parse_cfg(sys.argv[2:]))
    open(sys.argv[1], 'w').write(txt)
    print('instructions', len(e.ins), e.stats, 'bytes', len(txt), 'pending at labels:', e.pending)
```

```python
import re, sys
from asmlib import *
from layout import *

NAME = 'interleave_layers__linear_kernel_hedgehog__dense_activation_squared_relu__prompt'
M32 = 'v_mfma_f32_32x32x16_bf16'
M32H = 'v_mfma_f32_32x32x8_bf16'
M16 = 'v_mfma_f32_16x16x32_bf16'
M16H = 'v_mfma_f32_16x16x16_bf16'

P_X, P_WQKV, P_WPHI, P_WO, P_BX, P_W1, P_B1, P_W2, P_B2, P_OUT, P_DBG, P_WS = [64 + 2 * i for i in range(12)]
S_WS, S_OUT, S_B2, S_W1, S_WQKV, S_WPHI, S_WO, S_B1, S_W2, S_X = range(4, 44, 4)
WS, OUT, B2 = s_(S_WS, 4), s_(S_OUT, 4), s_(S_B2, 4)
sW = 3
sSET, sC, sGI, sJ, sTAG, sSG, sSW, sCNT, sVAL, sKSA, sKSS, sPAR, sLO, sHI = range(48, 62)
sSTAMP = 64
STAMP_SKIP = ('consts', 'nc_iss')

vL16, vB2, vB3, vWE, vWO, vRA, vRS, vHS, vOM, vOR, vKVS, vKVL, vT0, vT1, vT2, vT3 = range(16)
vSTL = vL16
R = 16
PA, PB = 36, 40
A00, A01, A10, A11 = 44, 60, 76, 92
E, D16, KV1, CB, SP, STT = 108, 128, 144, 160, 164, 168
WO_E, WO_L = 176, 144
KX0, KX1, KZ = 84, 104, 124
vP, vPL8, vPL32, vBS = 168, 171, 172, 173
aCQ, aC1, aB1 = 240, 244, 250
LOG2E, INV640, EPS_LN, EPS_DEN = 0x3fb8aa3b, 0x3acccccd, 0x3727c5ac, 0x358637bd
EXO = LDS_EX - 131072
SEQ_G1, SEQ_G2, SEQ_G3, SEQ_KV = 11, 12, 13, 9
F_X, F_O, F_X1, F_H = range(4)
vXG, vXL, XB = R, R + 4, 49152
sXG, sXL = 44, 45
sRB, sHD = sCNT, sVAL
NCF, vG2 = 184, 205
KVS = 768


class Cfg:
    stamps = False
    rt = False
    alias = True
    force_slow = False
    both = True
    d1 = 7
    d1x = 10
    d2 = 5
    d3 = 7
    w2split = (0, 8, 8, 8, 8, 20)
    wb = 0
    drop = ''
    kp2 = ((2, 6, 8, 11, 13), 18)
    kp4 = ((2, 6, 11, 13, 17), 22)
    f2 = 24
    gl = (4, 12)
    warm = True
    rese = True
    tl = 'oh'
    te = 'a'
    tat = 150
    nt1 = ''
    nt2 = ''
    ntq = ''
    cw = (4, 0)
    db = 10
    bl = (2, 7)
    fw = (16, 10)
    g3b = (84, 98)
    g1b = (52, 64)
    f4 = (184, 204)
    tch = (71, 190)
    qa = False
    cap1 = 6.5
    cap3 = 3.5
    wo1 = 16
    tlb = False
    wlead = 8
    xstep = 12
    wo0 = 10
    w2r = (30, 100)
    rg = True
    g3 = (121, 224, 238)
    ntt = ''
    w1split = (0, 2, 3, 4, 6, 0)
    g2 = (104, 122)
    gat = (20, 20)
    hs = ''
    os = ''
    code2 = 300
    fine = -1
    fg = (0, 60, 119, 180, 239, 270, 299, 359, 419)
    skip = ''
    nt = 'nt'
    ntx = 'nt'
    late = True
    reord = False
    outa = True
    prew = False
    xe = (0, 0)
    xpre = (3, 10)
    nc_at = 130
    diag = 0
    diag_at = 'start'
    fa = (123, 165, 180)
    ga = (200, 218)
    fb = (242, 290, 303)
    gb = (322, 338)


def lds(off):
    return (vL16, vB2, vB3)[off >> 16], off & 0xffff


def spread(after, items, start, step=1, per=1):
    for n, x in enumerate(items):
        after.setdefault(start + (n // per) * step, []).append(x)


def fill(after, items, start, end):
    n = len(items)
    for k, x in enumerate(items):
        after.setdefault(start + k * (end - start) // n, []).append(x)


def cost(x):
    n = 0
    for t in ([x.text] if isinstance(x, Ins) else x.split('\n')):
        t = t.strip()
        if t.endswith(':') or t.startswith('; gap'):
            continue
        if t.startswith('v_mfma'):
            continue
        elif t.startswith(('ds_write_b128', 'buffer_store_dwordx4')):
            n += 5
        elif t.startswith('ds_write_b64'):
            n += 3
        elif t.startswith(TRANS) or 'permlane' in t or t.startswith(('ds_write', 'buffer_store')):
            n += 2
        else:
            n += 1
    return n


def pour(mf, after, items, start, end, cap):
    base = {g: sum(cost(x) for x in after.get(g, ())) + (g + 1 < len(mf) and str(mf[g + 1]).startswith('@need'))
            for g in range(start, end)}
    c = cap
    while True:
        load, g, place, prev_mfma = dict(base), start, [], False
        for x in items:
            if isinstance(x, Ins) and x.text.startswith('; gap'):
                g += int(x.text.split()[-1])
                place.append(min(g, end - 1))
                continue
            if isinstance(x, Ins) and x.cls == 'mfma':
                g += prev_mfma
                prev_mfma = True
                if g >= end:
                    break
                load[g] = 0
                place.append(g)
                continue
            prev_mfma = False
            k = cost(x)
            while g < end and load[g] + k > int(c * (g + 1)) - int(c * g) and not (load[g] <= 0):
                g += 1
            if g >= end:
                break
            load[g] += k
            place.append(g)
        else:
            for g, x in zip(place, items):
                after.setdefault(g, []).append(x)
            return place[-1]
        c += 0.125


class Gen:
    def __init__(self, cfg):
        self.e, self.cfg = Asm(), cfg
        self.nstamp, self.nlab, self.stamp_names, self.tails = 0, 0, [], []
        self.st, self.stamping = '', cfg.stamps

    def act(self, L, off):
        if self.cfg.alias and self.cfg.outa and off in (XF_O, X1F_O):
            return 0
        if self.cfg.alias and self.cfg.rg and off in (OF_O, HF_O):
            return RG
        if self.cfg.alias:
            return ACT + {XF_O: XF_O, X1F_O: XF_O, OF_O: HF_O, HF_O: HF_O, ST_O: ST_O, ST1_O: ST_O}[off]
        return ACT + L * ACT_STRIDE + off

    def xbuf(self):
        return OUT if self.cfg.outa and self.cfg.alias else WS

    def ostride(self):
        return self.hstride() if self.cfg.alias else 81920

    def hstride(self):
        return RSTR if self.cfg.alias and self.cfg.rg else 196608

    def stamp(self, name):
        if self.cfg.diag and name == self.cfg.diag_at:
            self.e('s_memrealtime s[100:101]')
            self.e('s_waitcnt lgkmcnt(0)')
        if not self.stamping or name in STAMP_SKIP or (self.cfg.skip and self.cfg.skip in name) or (self.cfg.skip == 'all' and name != 'done'):
            return
        e = self.e
        e(('s_memrealtime' if self.cfg.rt else 's_memtime') + ' s[62:63]')
        e('s_waitcnt lgkmcnt(0)')
        e(f's_mov_b32 s{sSTAMP + self.nstamp}, s62')
        self.stamp_names.append(name)
        self.nstamp += 1
        assert self.nstamp <= 36

    def label(self, base):
        self.nlab += 1
        return f'L{base}_{self.nlab}'

    def srd(self, d, p, nbytes):
        e = self.e
        e(f's_mov_b32 s{d}, s{p}')
        e(f's_and_b32 s{d + 1}, s{p + 1}, 0xffff')
        e(f's_mov_b32 s{d + 2}, {nbytes}')
        e(f's_mov_b32 s{d + 3}, 0x20000')

    def sdiv(self, q, r, x, d):
        e = self.e
        e(f's_mul_i32 s{q}, s{x}, {(1 << 16) // d + 1}')
        e(f's_lshr_b32 s{q}, s{q}, 16')
        e(f's_mul_i32 s{r}, s{q}, {d}')
        e(f's_sub_u32 s{r}, s{x}, s{r}')

    def capture(self, fn):
        keep, self.e = self.e, Asm()
        fn()
        out, self.e = self.e.ins, keep
        return out

    def weave(self, main, after):
        for i, m in enumerate(main):
            self.e(m)
            for x in after.pop(i, ()):
                self.e(x)
        assert not after, sorted(after)

    def flag_line(self, d, line, sidx):
        self.e(f's_lshl_b32 s{d}, s{sidx}, 7')
        self.e(f's_add_u32 s{d}, s{d}, {FL + line * 4096}')

    def spin(self, load, check):
        e, lab = self.e, self.label('poll')
        e(f's_mov_b32 s{sCNT}, 0')
        e(f'{lab}:')
        e(load)
        e(f's_add_u32 s{sCNT}, s{sCNT}, 1')
        e(f's_cmp_gt_u32 s{sCNT}, 0x80000')
        e('s_cbranch_scc1 Lend')
        e('s_waitcnt vmcnt(0)')
        e(check)
        e(f's_cbranch_vccnz {lab}')

    def late_check(self, load, check):
        out, back = self.label('retry'), self.label('back')

        def tail():
            self.e(f'{out}:')
            self.e('s_nop 7')
            self.e('s_nop 3')
            self.spin(load, check)
            self.e(f's_branch {back}')
        self.tails.append(self.capture(tail))
        return check + f'\ns_cbranch_vccnz {out}\n{back}:'

    def poll(self, sflag, vpoll, seq):
        self.e(f's_add_u32 s{sVAL}, s{sTAG}, {seq}')
        self.spin(f'buffer_load_dword {v(vT0)}, {v(vpoll)}, {WS}, s{sflag} offen sc1',
                  f'v_cmp_ne_u32 vcc, s{sVAL}, {v(vT0)}')

    def flag_store(self, sflag, seq, t, tag):
        return (f'v_mov_b32 {v(t)}, {seq}\nv_add_u32 {v(t)}, s{sTAG}, {v(t)}\n@wait {tag}\ns_mov_b64 exec, 1\n'
                f'buffer_store_dword {v(t)}, {v(vL16)}, {WS}, s{sflag} offen {self.st}\ns_mov_b64 exec, -1')

    def unpack(self, dst, src, n):
        for i in range(n):
            self.e(f'v_lshlrev_b32 {v(dst + 2 * i)}, 16, {v(src + i)}')
            self.e(f'v_and_b32 {v(dst + 2 * i + 1)}, 0xffff0000, {v(src + i)}')

    def hi_lo(self, dst, x, t):
        e = self.e
        e(f'v_cvt_pk_bf16_f32 {v(dst)}, {v(x)}, {v(x)}')
        e(f'v_lshlrev_b32 {v(t)}, 16, {v(dst)}')
        e(f'v_sub_f32 {v(t)}, {v(x)}, {v(t)}')
        e(f'v_cvt_pk_bf16_f32 {v(dst + 1)}, {v(t)}, {v(t)}')

    def pair_stats(self, a, b):
        e = self.e
        for q in range(1, 4):
            e(f'v_add_f32 {v(a)}, {v(a)}, {v(a + q)}')
            e(f'v_add_f32 {v(b)}, {v(b)}, {v(b + q)}')
        e(f'v_permlane16_swap_b32 {v(a)}, {v(b)}')
        e(f'v_add_f32 {v(a)}, {v(a)}, {v(b)}')
        e(f'v_mov_b32 {v(a + 1)}, {v(a)}')
        e(f'v_permlane32_swap_b32 {v(a)}, {v(a + 1)}')
        e(f'v_mul_f32 {v(a)}, {hex(INV640 | 0x80000000)}, {v(a)}')
        e(f'v_mul_f32 {v(a + 1)}, {hex(INV640)}, {v(a + 1)}')
        e(f'v_fma_f32 {v(a + 1)}, -{v(a)}, {v(a)}, {v(a + 1)}')
        e(f'v_max_f32 {v(a + 1)}, 0, {v(a + 1)}')
        e(f'v_add_f32 {v(a + 1)}, {hex(EPS_LN)}, {v(a + 1)}')
        e(f'v_rsq_f32 {v(a + 2)}, {v(a + 1)}')

    def colsum(self, t, addr):
        e = self.e
        e(f'v_lshrrev_b32 {v(addr)}, 2, {v(vL16)}')
        e(f'v_add_u32 {v(addr)}, {LDS_EX}, {v(addr)}')
        for h in range(2):
            for q in range(4 if h else 5):
                e(f'ds_read2st64_b32 {v(t + 2 * q + 2 * h, 2)}, {v(addr)} offset0:{10 * h + 2 * q} offset1:{10 * h + 2 * q + 1}')
            for q in range(2 if h else 1, 10):
                e(f'v_add_f32 {v(t)}, {v(t)}, {v(t + q)}')
        e(f'ds_read2st64_b32 {v(t + 2, 2)}, {v(addr)} offset0:18 offset1:19')
        e(f'v_add_f32 {v(t)}, {v(t)}, {v(t + 2)}')
        e(f'v_add_f32 {v(t)}, {v(t)}, {v(t + 3)}')
        e(f'v_cvt_pk_bf16_f32 {v(t + 1)}, {v(t)}, {v(t)}')
        e(f'v_lshlrev_b32 {v(t + 1)}, 16, {v(t + 1)}')
        e(f'v_sub_f32 {v(t + 2)}, {v(t)}, {v(t + 1)}')
        e(f'v_cvt_pk_bf16_f32 {v(t)}, {v(t + 1)}, {v(t + 2)}')

    def colsum_dma(self, base, s0, t, tag):
        return (f's_mul_i32 s{s0}, s{sC}, 5120\ns_mul_i32 s{s0 + 1}, s{sW}, 1280\ns_add_u32 s{s0}, s{s0}, s{s0 + 1}\n'
                f's_add_u32 s{s0}, s{s0}, {base}\ns_add_u32 m0, s{s0 + 1}, {LDS_EX}\n'
                f'v_lshrrev_b32 {v(t)}, 2, {v(vL16)}\n'
                f'buffer_load_dwordx4 {v(vL16)}, {WS}, s{s0} offen sc1 lds #{tag}\n'
                f'buffer_load_dword {v(t)}, {WS}, s{s0} offen offset:1024 sc1 lds #{tag}')

    def lane_offsets(self, dst, t, ms, hs, gs=None, g1=None, g2=None):
        e = self.e
        e(f'v_bfe_u32 {v(dst)}, {v(vL16)}, 4, 3')
        e(f'v_mul_u32_u24 {v(dst)}, {ms}, {v(dst)}')
        parts = [(7, 1, hs)] + ([(8, 2, gs)] if gs else [(8, 1, g1), (9, 1, g2)])
        for pos, width, mul in parts:
            e(f'v_bfe_u32 {v(t)}, {v(vL16)}, {pos}, {width}')
            e(f'v_lshl_add_u32 {v(dst)}, {v(t)}, {mul.bit_length() - 1}, {v(dst)}')

    def tile_addresses(self, kind, L, d, vp, t):
        e = self.e
        e(f's_mul_i32 s{d}, s{sSG}, 81920')
        e(f's_lshl_b32 s{d + 1}, s{sKSS}, 1')
        e(f's_add_u32 s{d + 1}, s{d + 1}, s{sPAR}')
        if kind == 'row':
            e(f's_mul_i32 s62, s{sW}, 10240')
            shift = (6, 5)
            self.lane_offsets(vp, t, 1280, 64, gs=16)
            self.lane_offsets(vp + 1, t, 1280, 4, gs=8)
        elif kind == 'x1':
            e(f's_lshr_b32 s62, s{sW}, 1')
            e('s_mul_i32 s62, s62, 20224')
            e(f's_lshl_b32 s63, s{sW}, 7')
            e('s_add_u32 s62, s62, s63')
            e(f's_add_u32 s62, s62, {self.act(L, X1F_O)}')
            shift = (10, 9)
            self.lane_offsets(vp, t, 16, 1024, gs=256)
            self.lane_offsets(vp + 1, t, 16, 4, g1=8, g2=256)
        else:
            e(f's_lshl_b32 s62, s{sW}, 7')
            e(f's_add_u32 s62, s62, {self.act(L, XF_O)}')
            shift = (11, 10)
            self.lane_offsets(vp, t, 16, 2048, gs=512)
            self.lane_offsets(vp + 1, t, 16, 4, g1=8, g2=512)
        e(f's_add_u32 s{d}, s{d}, s62')
        e(f's_lshl_b32 s{d + 1}, s{d + 1}, {shift[1]}')
        e(f's_add_u32 s{d + 1}, s{d + 1}, s{d}')
        e(f's_lshl_b32 s62, s{sKSA}, {shift[0]}')
        e(f's_add_u32 s{d}, s{d}, s62')
        if kind == 'row':
            return
        self.lane_offsets(vp + 2, t, 16, 1 << 30, g1=1 << 29, g2=512)
        e(f's_lshl_b32 s{d + 2}, s{sSG}, 2')
        e(f's_lshr_b32 s62, s{sW}, 1')
        e(f's_add_u32 s{d + 2}, s{d + 2}, s62')
        e(f's_lshl_b32 s{d + 2}, s{d + 2}, 2')
        e(f's_lshr_b32 s62, s{sJ}, 2')
        e(f's_add_u32 s{d + 2}, s{d + 2}, s62')
        e(f's_lshl_b32 s{d + 2}, s{d + 2}, 1')
        e(f's_and_b32 s62, s{sW}, 1')
        e(f's_add_u32 s{d + 2}, s{d + 2}, s62')
        e(f's_lshl_b32 s{d + 2}, s{d + 2}, 5')
        e(f's_and_b32 s62, s{sJ}, 3')
        e(f's_add_u32 s{d + 2}, s{d + 2}, s62')
        e(f's_lshl_b32 s{d + 2}, s{d + 2}, 2')
        e(f's_add_u32 s{d + 2}, s{d + 2}, {self.act(L, ST1_O if kind == "x1" else ST_O)}')
        e(f's_lshl_b32 s{d + 3}, s{sSG}, 3')
        e(f's_add_u32 s{d + 3}, s{d + 3}, s{sJ}')
        e(f's_lshl_b32 s{d + 3}, s{d + 3}, 2')
        e(f's_add_u32 s{d + 3}, s{d + 3}, s{sW}')
        e(f's_lshl_b32 s{d + 3}, s{d + 3}, 2')
        e(f's_add_u32 s{d + 3}, s{d + 3}, {FL}')

    def x_slot(self, u):
        n0, n1 = self.cfg.xpre
        return u if u < n0 else (u - n0 if u < n1 else 2 + (u - n1) % 3)

    def x_dma(self, u):
        kq, mt = divmod(u, 2)
        pre = f's_add_u32 s46, s{sXG}, {40960 * mt + 128 * kq}\n'
        m0 = f's_add_u32 m0, s{sXL}, {16384 * self.x_slot(u)}\n'
        return [(pre if i == 0 else '') + m0 +
                f'buffer_load_dwordx4 {v(vXG + i)}, {s_(S_X, 4)}, s46 offen offset:{1024 * i} lds #xa{u}' for i in range(4)]

    def x_reg(self, ks, mt):
        return 4 * ((2 * ks + mt) % 60)

    def x_read(self, u, wait=True):
        kq, mt = divmod(u, 2)
        sl = self.x_slot(u)
        t = [f'ds_read_b128 {a_(self.x_reg(4 * kq + q, mt), 4)}, {v(vXL + q + 4 * (sl // 4))} offset:{16384 * (sl % 4)}' for q in range(4)]
        if wait:
            t[0] = f'@wait xa{u}\n' + t[0]
        return t

    def x_done(self, u):
        kq, mt = divmod(u, 2)
        return f'@need {a_(self.x_reg(4 * kq + 3, mt), 4)}'

    def prologue(self):
        e, cfg = self.e, self.cfg
        name = NAME + '_kernel'
        nt = cfg.nt
        RQ, RS, R1, R2, RO = 0, 17408, 18432, 30720, 38912
        e(f'.globl {name}\n.p2align 8\n.type {name},@function\n{name}:')
        e('s_cmp_ge_u32 s2, 256')
        e('s_cbranch_scc1 Lend')
        e('s_getpc_b64 s[44:45]')
        e('Lpc:')
        e('s_load_dwordx16 s[64:79], s[0:1], 0')
        e('s_load_dwordx8 s[80:87], s[0:1], 64')
        if cfg.diag:
            e('s_memrealtime s[100:101]')
        if cfg.stamps:
            e('s_memrealtime s[100:101]')
            e(('s_memrealtime' if cfg.rt else 's_memtime') + ' s[98:99]')
        e(f's_lshr_b32 s{sC}, s2, 3')
        e('v_lshrrev_b32 v44, 6, v0')
        e('v_and_b32 v45, 3, v0')
        e('v_lshl_add_u32 v45, v44, 2, v45')
        e(f's_lshl_b32 s46, s{sC}, 4')
        e('v_add_u32 v45, s46, v45')
        e('v_lshlrev_b32 v45, 7, v45')
        e('v_min_u32 v45, Lfast_end-Lpc, v45')
        e('s_mov_b64 exec, 15')
        e('global_load_dword v46, v45, s[44:45]')
        e('s_mov_b64 exec, -1')
        e(f'v_readfirstlane_b32 s{sW}, v44')
        LANE, M16_, G4, M32_, G2 = 47, 48, 49, 50, 51
        e(f'v_and_b32 {v(LANE)}, 63, v0')
        e(f'v_and_b32 {v(M32_)}, 31, v0')
        e(f'v_bfe_u32 {v(G2)}, v0, 5, 1')
        e(f's_and_b32 s{sSET}, s2, 7')
        e(f'v_mul_u32_u24 v52, 205, {v(LANE)}')
        e('v_lshrrev_b32 v52, 11, v52')
        e('v_mul_u32_u24 v53, 1120, v52')
        e(f'v_lshl_add_u32 v53, {v(LANE)}, 4, v53')
        e('s_cmp_lt_u32 s2, 160')
        e(f's_cselect_b32 s88, 0, {OOB}')
        e(f'v_mov_b32 v54, {OOB}')
        e(f'v_cmp_gt_u32 vcc, 60, {v(LANE)}')
        e('v_add_u32 v53, s88, v53')
        e('v_cndmask_b32 v53, v54, v53, vcc')
        e(f's_mul_i32 s{sRB}, s{sSET}, 20')
        e(f's_add_u32 s{sRB}, s{sRB}, s{sC}')
        e(f's_and_b32 s{sHD}, s{sRB}, 7')
        e(f's_lshr_b32 s{sRB}, s{sRB}, 3')
        e(f's_lshl_b32 s89, s{sRB}, 2')
        e(f's_add_u32 s89, s89, s{sW}')
        e(f's_mul_i32 s89, s89, {8 * 3840}')
        e(f's_mul_i32 s90, s{sHD}, 160')
        e('s_add_u32 s89, s89, s90')
        e(f's_lshl_b32 s{sHD}, s{sHD}, 2')
        e(f's_add_u32 s{sHD}, s{sHD}, s{sW}')
        e(f's_mul_i32 s90, s{sW}, 4160')
        e(f'v_and_b32 v55, 7, {v(LANE)}')
        e(f'v_lshrrev_b32 v56, 3, {v(LANE)}')
        e('v_mul_u32_u24 v63, 1280, v56')
        e('v_lshl_add_u32 v57, v55, 4, v63')
        e(f's_lshl_b32 s93, s{sSET}, 5')
        e(f's_add_u32 s93, s93, s{sC}')
        e('s_mul_i32 s94, s93, 10240')
        e(f's_lshl_b32 s95, s{sW}, 7')
        e('s_add_u32 s94, s94, s95')
        e(f's_cmp_lt_u32 s{sW}, 2')
        e(f's_cselect_b32 s95, 0, {OOB}')
        e('v_add_u32 v58, s95, v57')
        e(f'v_and_b32 v59, 19, {v(M32_)}')
        e(f'v_bfe_u32 v60, {v(M32_)}, 2, 1')
        e('v_lshl_add_u32 v59, v60, 3, v59')
        e(f'v_bfe_u32 v61, {v(M32_)}, 3, 1')
        e('v_lshl_add_u32 v59, v61, 2, v59')
        e('v_mul_u32_u24 v61, 40, v59')
        e('v_cmp_gt_u32 vcc, 20, v59')
        e(f's_lshl_b32 s{sSG}, s{sSET}, 2')
        e(f's_add_u32 s{sSW}, s{sSG}, s{sW}')
        e('v_cndmask_b32 v61, v54, v61, vcc')
        e(f'v_lshl_add_u32 v62, {v(G2)}, 30, v61')
        e(f'v_lshl_add_u32 v61, {v(G2)}, 4, v61')
        e(f's_mul_i32 s91, s{sHD}, 800')
        e('s_waitcnt lgkmcnt(0)')
        self.srd(S_WQKV, P_WQKV, 640 * 3840)
        AQ, AK, AV, AT0, AT1, AP, APT, XR = 64, 68, 72, 76, 78, 80, 84, 88
        for q in range(4):
            e('s_mov_b32 m0, s90')
            e('s_add_u32 s90, s90, 1040')
            e(f'buffer_load_dwordx4 v53, {s_(S_WQKV, 4)}, s89 offen {nt} lds #rq')
            e('s_add_u32 s89, s89, 7680')
        self.srd(S_WPHI, P_WPHI, 32 * 800)
        e(f'buffer_load_dwordx4 {v(AP, 4)}, v61, {s_(S_WPHI, 4)}, s91 offen')
        e(f'buffer_load_dwordx2 {v(APT, 2)}, v62, {s_(S_WPHI, 4)}, s91 offen offset:32')
        self.srd(S_X, P_X, 2048 * 1280)
        xs = s_(S_X, 4)
        e(f'buffer_load_dwordx4 {v(XR, 4)}, v57, {xs}, s94 offen {cfg.ntx}')
        e(f'buffer_load_dwordx4 {v(XR + 4, 4)}, v57, {xs}, s94 offen offset:512 {cfg.ntx}')
        e(f'buffer_load_dwordx4 {v(XR + 8, 4)}, v58, {xs}, s94 offen offset:1024 {cfg.ntx}')
        e(f's_add_u32 s46, s{P_WS}, {EPOCH}')
        e(f's_addc_u32 s47, s{P_WS + 1}, 0')
        e(f's_load_dword s{sTAG}, s[46:47], 0')
        self.srd(S_WS, P_WS, WS_USED)
        self.srd(S_OUT, P_OUT, 2048 * 1280)
        self.srd(S_B2, P_B2, 1280)
        self.srd(S_WO, P_WO, 640 * 1280)
        self.srd(S_W1, P_W1, 640 * 3072)
        self.srd(S_W2, P_W2, 1536 * 1280)
        self.srd(S_B1, P_B1, 3072)
        if cfg.stamps:
            e(f's_mov_b32 s{sSTAMP}, s98')
            self.stamp_names.append('start')
            self.nstamp = 1
        self.stamp('issued')
        e(f'v_and_b32 {v(M16_)}, 15, {v(LANE)}')
        e(f'v_lshrrev_b32 {v(G4)}, 4, {v(LANE)}')
        e(f'v_lshlrev_b32 {v(vL16)}, 4, {v(LANE)}')
        e(f's_lshr_b32 s{sGI}, s2, 6')
        e(f's_and_b32 s{sJ}, s{sC}, 7')
        e(f's_add_u32 s{sSG}, s{sSG}, s{sGI}')
        e(f's_lshr_b32 s{sKSS}, s{sJ}, 1')
        e(f's_mul_i32 s{sKSS}, s{sKSS}, 5')
        e(f's_and_b32 s{sPAR}, s{sJ}, 1')
        e(f's_mul_i32 s{sKSA}, s{sPAR}, 3')
        e(f's_add_u32 s{sKSA}, s{sKSA}, s{sKSS}')
        e(f's_add_u32 s{sKSS}, s{sKSS}, 2')
        e(f's_mov_b32 s{sLO}, 0x3f80')
        e(f's_mov_b32 s{sHI}, 0x3f800000')
        e('s_lshr_b32 s80, s93, 1')
        e('s_lshl_b32 s80, s80, 2')
        e(f's_add_u32 s80, s80, s{sW}')
        e('s_lshl_b32 s80, s80, 1')
        e(f's_add_u32 s80, s80, s{sPAR}')
        e('s_lshl_b32 s80, s80, 7')
        e(f's_add_u32 s80, s80, {self.act(0, ST_O)}')
        e(f's_mul_i32 s81, s{sHD}, {RSTR}')
        e(f's_add_u32 s81, s81, {RG}')
        e(f's_lshl_b32 s82, s{sRB}, 12')
        e('s_add_u32 s81, s81, s82')
        e(f's_mul_i32 s82, s{sHD}, 5120')
        e(f's_lshl_b32 s83, s{sRB}, 8')
        e('s_add_u32 s82, s82, s83')
        e(f's_add_u32 s82, s82, {CSQ}')
        e(f'v_add_u32 v100, s88, {v(vL16)}')
        e(f'v_lshl_add_u32 v101, {v(LANE)}, 2, s88')

        def second_stage_loads(part):
            def colblock(src, base, jstride, stage, vst, vrd, so, tag):
                e('s_mul_i32 s93, s93, 1280')
                e('s_mul_i32 s94, s94, 1280')
                e('s_lshl_b32 s95, s92, 8')
                e('s_add_u32 s93, s93, s95')
                e('s_add_u32 s94, s94, s95')
                e('s_sub_u32 s94, s94, 1024')
                e('v_mul_u32_u24 v52, 1280, v52')
                e(f'v_lshl_add_u32 v52, {v(M16_)}, 4, v52')
                e('v_add_u32 v52, s88, v52')
                e(f's_lshl_b32 s95, s{sW}, 11')
                e(f's_add_u32 m0, s95, {stage}')
                e('s_lshl_b32 s92, s92, 2')
                e(f'buffer_load_dwordx4 v52, {src}, s93 offen {nt} lds #{tag}')
                e(f'buffer_load_dwordx4 v52, {src}, s94 offen offset:1024 {nt} lds #{tag}')
                e(f's_add_u32 s92, s92, s{sW}')
                self.sdiv(89, 96, 92, 5)
                e('s_cmp_eq_u32 s96, 2')
                e('s_cselect_b32 s92, 3, 4')
                e('s_cselect_b32 s95, 32, 8')
                e(f's_mov_b32 s{so + 1}, {jstride}')
                e(f's_cselect_b32 s{so + 1}, s{so + 1}, 1024')
                e(f'v_lshl_add_u32 {v(vrd)}, v219, s92, v220')
                e(f'v_add_u32 {v(vrd + 1)}, s95, {v(vrd)}')
                e(f'v_add_u32 {v(vst)}, s88, {v(vL16)}')
                e('s_lshl_b32 s89, s89, 1')
                e('s_sub_u32 s92, s96, 3')
                e('s_cmp_gt_u32 s96, 2')
                e('s_cselect_b32 s92, s92, s96')
                e('s_addc_u32 s89, s89, 0')
                e(f's_mul_i32 s89, s89, {jstride}')
                e('s_lshl_b32 s92, s92, 11')
                e('s_add_u32 s89, s89, s92')
                e('s_mul_i32 s92, s91, 5120')
                e('s_add_u32 s89, s89, s92')
                e(f's_add_u32 s{so}, s89, {base}')
                e(f's_add_u32 s{so + 1}, s{so + 1}, s{so}')

            if part == 0:
                e(f'v_and_b32 v219, 3, {v(LANE)}')
                e(f'v_bfe_u32 v218, {v(LANE)}, 2, 2')
                e(f'v_lshl_add_u32 v218, {v(G4)}, 3, v218')
                e('v_lshlrev_b32 v220, 8, v218')
                e(f's_lshl_b32 s95, s{sW}, 6')
                e('v_add_u32 v220, s95, v220')
                e('s_sub_u32 s96, s2, 156')
                e(f's_cselect_b32 s88, {OOB}, 0')
                e('s_cselect_b32 s96, 0, s96')
                self.sdiv(91, 92, 96, 5)
                self.sdiv(89, 90, 91, 5)
                e('s_mul_i32 s93, s89, 160')
                e('s_mul_i32 s95, s90, 40')
                e('s_cmp_eq_u32 s90, 4')
                e('s_cselect_b32 s95, 8, s95')
                e('s_cselect_b32 s94, 20, 4')
                e('s_cselect_b32 s96, 40, 10')
                e('s_cselect_b32 s90, 8, 0')
                e(f's_mul_i32 s96, s96, s{sW}')
                e('s_add_u32 s93, s93, s95')
                e('s_add_u32 s93, s93, s96')
                e('s_add_u32 s94, s94, s93')
                e(f'v_mul_u32_u24 v52, s90, {v(G2)}')
                e(f'v_add_u32 v52, v52, {v(G4)}')
                colblock(s_(S_WO, 4), WOF, 102400, RO, 208, 212, 84, 'ro')
                return
            e(f's_sub_u32 s91, s{sC}, 12')
            e(f's_cselect_b32 s88, {OOB}, 0')
            e('s_cselect_b32 s91, 0, s91')
            e('s_lshl_b32 s92, s91, 2')
            e(f's_add_u32 s92, s92, s{sW}')
            e(f's_mul_i32 s92, s92, {8 * 3072}')
            e(f's_mul_i32 s93, s{sSET}, 384')
            e('s_add_u32 s92, s92, s93')
            e(f's_mul_i32 s93, s{sW}, 3072')
            e(f's_add_u32 m0, s93, {R1}')
            for q in range(3):
                e(f'v_add_u32 v52, {64 * q}, {v(LANE)}')
                e('v_mul_u32_u24 v52, 171, v52')
                e('v_lshrrev_b32 v52, 12, v52')
                e(f'v_mul_u32_u24 v52, {3072 - 384}, v52')
                e(f'v_add3_u32 v52, v52, {v(vL16)}, s88')
                e(f'buffer_load_dwordx4 v52, {s_(S_W1, 4)}, s92 offen offset:{1024 * q} {nt} lds #rn')
            e('v_mul_u32_u24 v216, 384, v218')
            e(f's_mul_i32 s93, s{sW}, 96')
            e('v_add_u32 v216, s93, v216')
            e('v_lshl_add_u32 v217, v219, 3, v216')
            e('v_lshl_add_u32 v216, v219, 4, v216')
            e(f'v_add_u32 v210, s88, {v(vL16)}')
            e(f'v_lshl_add_u32 v211, {v(LANE)}, 2, s88')
            e(f's_mul_i32 s78, s{sSW}, {RSTR}')
            e('s_mul_i32 s79, s91, 3072')
            e('s_add_u32 s78, s78, s79')
            e(f's_add_u32 s78, s78, {RG + RG_W1}')
            e(f's_mul_i32 s79, s{sSW}, 5120')
            e('s_lshl_b32 s91, s91, 8')
            e('s_add_u32 s79, s79, s91')
            e(f's_add_u32 s79, s79, {CS1}')
            e('s_cmp_lt_u32 s2, 240')
            e(f's_cselect_b32 s88, 0, {OOB}')
            e('s_cselect_b32 s96, s2, 0')
            self.sdiv(91, 92, 96, 5)
            self.sdiv(89, 90, 91, 3)
            e('s_mul_i32 s93, s89, 96')
            e('s_mul_i32 s95, s90, 24')
            e('s_cmp_eq_u32 s90, 1')
            e('s_cselect_b32 s95, 32, s95')
            e('s_cselect_b32 s94, 32, 0')
            e('s_add_u32 s93, s93, s95')
            e(f's_lshr_b32 s95, s{sW}, 1')
            e('s_mul_i32 s94, s94, s95')
            e('s_add_u32 s93, s93, s94')
            e(f's_lshl_b32 s95, s{sW}, 3')
            e('s_add_u32 s93, s93, s95')
            e('s_add_u32 s94, s93, 4')
            e(f'v_mov_b32 v52, {v(G4)}')
            colblock(s_(S_W2, 4), RG + RG_W2, 4 * RSTR, R2, 209, 214, 86, 'rn')
            self.sdiv(89, 90, 91, 12)
            e(f's_mul_i32 s89, s89, {RSTR - 61440}')
            e('s_add_u32 s86, s86, s89')
            e('s_add_u32 s87, s87, s89')
            if cfg.warm:
                e(f'v_lshlrev_b32 v52, 7, {v(LANE)}')
                e(f'buffer_load_dword v222, v52, {B2}, 0 offen')
                e(f'v_lshlrev_b32 v52, 12, {v(G4)}')
                e(f's_lshl_b32 s89, s{sSW}, 7')
                e(f's_add_u32 s89, s89, {FL}')
                e(f'buffer_load_dword v222, v52, {WS}, s89 offen sc1')
            e(f'v_lshrrev_b32 v52, 2, {v(M16_)}')
            e('v_lshl_add_u32 v52, v52, 3, v219')
            e('v_lshlrev_b32 v52, 1, v52')
            e(f'v_lshlrev_b32 v221, 1, {v(M16_)}')
            e(f's_mul_i32 s89, s{sC}, 96')
            e(f'buffer_load_ushort {a_(aB1)}, v52, {s_(S_B1, 4)}, s89 offen')
            e(f'buffer_load_ushort {a_(aB1 + 1)}, v52, {s_(S_B1, 4)}, s89 offen offset:8')
            e(f'buffer_load_ushort {a_(aB1 + 2)}, v221, {s_(S_B1, 4)}, s89 offen offset:64')

        second_stage_loads(0)
        if not cfg.reord:
            second_stage_loads(1)
        SEL, SELT, BV0, BV1, BT0, BT1, BP, ONES = 112, 116, 120, 124, 128, 130, 132, 136
        e(f'v_lshrrev_b32 v52, 3, {v(M32_)}')
        e(f'v_and_b32 v53, 3, {v(M32_)}')
        e('v_lshl_add_u32 v52, v52, 2, v53')
        e('v_mul_u32_u24 v60, 10, v60')
        e('v_add_u32 v60, v60, v52')
        e(f'v_and_b32 v53, 1, {v(M32_)}')
        e('v_lshlrev_b32 v53, 4, v53')
        e(f'v_lshlrev_b32 v53, v53, s{sLO}')
        e(f'v_lshlrev_b32 v61, 2, {v(G2)}')
        for (b4, b2, off, lo, hi, tg) in ((SEL, SELT, 0, 0, 10, 0), (BV0, BT0, 10, 10, 16, 1), (BV1, BT1, 4, 10, 14, 1)):
            e(f'v_subrev_u32 v57, {off}, v60')
            e('v_lshrrev_b32 v57, 1, v57')
            e(f'v_subrev_u32 v58, {lo}, v52')
            e(f'v_cmp_gt_u32 vcc, {hi - lo}, v58')
            e(f'v_cmp_eq_u32 s[46:47], {tg}, {v(G2)}')
            e('v_cndmask_b32 v57, 32, v57, vcc')
            e('v_sub_u32 v58, v57, v61')
            e('v_cndmask_b32 v57, 32, v57, s[46:47]')
            for h in range(2):
                for q in range(3 * h, 3 * h + 3):
                    e(f'v_cmp_eq_u32 s[{20 + 2 * (q % 3)}:{21 + 2 * (q % 3)}], {q if q < 4 else q + 4}, {"v58" if q < 4 else "v57"}')
                for q in range(3 * h, 3 * h + 3):
                    e(f'v_cndmask_b32 {v(b4 + q if q < 4 else b2 + q - 4)}, 0, v53, s[{20 + 2 * (q % 3)}:{21 + 2 * (q % 3)}]')
        for i in range(4):
            e(f'v_mov_b32 {v(ONES + i)}, 0x3f803f80')
        e('v_lshrrev_b32 v57, 1, v59')
        e('v_mul_u32_u24 v57, 1040, v57')
        e('v_and_b32 v58, 1, v59')
        e('v_mul_u32_u24 v58, 480, v58')
        e(f's_mul_i32 s89, s{sW}, 40')
        e('v_add3_u32 v57, v57, v58, s89')
        e(f'v_mul_u32_u24 v58, 160, {v(G2)}')
        e('v_add_u32 v59, v57, v58')
        e('v_add_u32 v58, v59, v58')
        e(f'v_lshl_add_u32 v57, {v(G2)}, 4, v57')
        e('v_and_b32 v61, 3, v55')
        e('v_lshlrev_b32 v60, 7, v61')
        e('v_lshl_add_u32 v60, v56, 4, v60')
        e(f's_lshl_b32 s89, s{sW}, 2')
        e(f's_add_u32 s89, s89, {RS}')
        e('v_add_u32 v60, s89, v60')
        e('v_cmp_eq_u32 s[20:21], 0, v61')
        e('v_cmp_eq_u32 s[22:23], 2, v61')
        e(f'v_lshlrev_b32 v102, 2, {v(M32_)}')
        e(f's_lshl_b32 s89, s{sW}, 7')
        e(f's_add_u32 s89, s89, {RS}')
        e('v_add_u32 v103, s89, v102')
        e(f'v_lshl_add_u32 v102, {v(G2)}, 30, v102')
        def staging_addresses():
            e(f'v_lshrrev_b32 v61, 4, {v(LANE)}')
            e(f'v_and_b32 v62, 7, {v(LANE)}')
            e('v_xor_b32 v61, v61, v62')
            e(f'v_lshrrev_b32 v63, 3, {v(LANE)}')
            e('v_mul_u32_u24 v63, 1280, v63')
            for i in range(4):
                if i:
                    e('v_xor_b32 v61, 4, v61')
                e(f'v_lshl_add_u32 {v(vXG + i)}, v61, 4, v63')
                if i:
                    e(f'v_add_u32 {v(vXG + i)}, {9216 * i}, {v(vXG + i)}')
            e(f's_mul_i32 s{sXG}, s{sSW}, {64 * 1280}')
            e(f's_lshl_b32 s{sXL}, s{sW}, 12')
            e(f's_add_u32 s{sXL}, s{sXL}, {XB}')
            e(f'v_bfe_u32 v61, {v(M32_)}, 1, 3')
            e(f'v_xor_b32 v61, v61, {v(G2)}')
            e(f'v_lshl_add_u32 v63, {v(M32_)}, 7, s{sXL}')
            for q in range(4):
                e(f'v_xor_b32 v62, {2 * q}, v61')
                e(f'v_lshl_add_u32 {v(vXL + q)}, v62, 4, v63')
                e(f'v_add_u32 {v(vXL + 4 + q)}, 0x10000, {v(vXL + q)}')
        if not cfg.reord:
            staging_addresses()
        e('v_mov_b32 v62, 0')
        e('v_mov_b32 v63, 0')
        D0, D1, FR = 144, 160, 176
        e(f'{M32} {v(D0, 16)}, {v(AP, 4)}, {v(SEL, 4)}, 0')
        e(f'{M32H} {v(D0, 16)}, {v(APT, 2)}, {v(SELT, 2)}, {v(D0, 16)}')
        e('s_barrier')
        self.stamp('landed')
        early = [x for u in range(cfg.xpre[0]) for x in self.x_dma(u)]
        e(f'ds_read2_b64 {v(AV, 4)}, v57 offset0:40 offset1:41')
        e(f'ds_read2_b64 {v(AK, 4)}, v57 offset0:20 offset1:21')
        e(f'ds_read2_b64 {v(AQ, 4)}, v57 offset0:0 offset1:1')
        e(f'ds_read_b64 {v(AT0, 2)}, v59 offset:192')
        e(f'ds_read_b64 {v(AT1, 2)}, v58 offset:32')
        for x in early[:cfg.xe[0]]:
            e(x)
        for q in range(4):
            e(f'v_cvt_pk_bf16_f32 {v(BP + q)}, {v(D0 + 2 * q)}, {v(D0 + 2 * q + 1)}')
        for q in range(2):
            e(f'v_cvt_pk_bf16_f32 v61, {v(D0 + 8 + 2 * q)}, {v(D0 + 9 + 2 * q)}')
            e(f'v_or_b32 {v(BT0 + q)}, {v(BT0 + q)}, v61')
            e(f'v_or_b32 {v(BT1 + q)}, {v(BT1 + q)}, v61')
        e(f'{M32} {v(D0, 16)}, {v(AV, 4)}, {v(BV0, 4)}, 0')
        e(f'{M32} {v(D1, 16)}, {v(AV, 4)}, {v(BV1, 4)}, 0')
        e(f'{M32} {v(D0, 16)}, {v(AK, 4)}, {v(BP, 4)}, {v(D0, 16)}')
        e(f'{M32} {v(D1, 16)}, {v(AQ, 4)}, {v(BP, 4)}, {v(D1, 16)}')
        e(f'{M32H} {v(D0, 16)}, {v(AT0, 2)}, {v(BT0, 2)}, {v(D0, 16)}')
        e(f'{M32H} {v(D1, 16)}, {v(AT1, 2)}, {v(BT1, 2)}, {v(D1, 16)}')
        for T, D in ((0, D0), (1, D1)):
            for half in range(2):
                f = FR + 8 * T + 4 * half
                for q in range(4):
                    e(f'v_cvt_pk_bf16_f32 {v(f + q)}, {v(D + 8 * half + 2 * q)}, {v(D + 8 * half + 2 * q + 1)}')
                e(f'buffer_store_dwordx4 {v(f, 4)}, v100, {WS}, s81 offen offset:{2048 * half + 1024 * T} sc1 #c')
            e(f'{M32} {v(D, 16)}, {v(ONES, 4)}, {v(FR + 8 * T, 4)}, 0')
            e(f'{M32} {v(D, 16)}, {v(ONES, 4)}, {v(FR + 8 * T + 4, 4)}, {v(D, 16)}')
        for x in early[cfg.xe[0]:cfg.xe[1]]:
            e(x)
        for q in range(12):
            e(f'v_dot2c_f32_bf16 v62, {v(ONES)}, {v(XR + q)}')
            e(f'v_dot2c_f32_bf16 v63, {v(XR + q)}, {v(XR + q)}')
        e(f'v_cmp_eq_u32 vcc, 1, {v(G2)}')
        e(f'v_cndmask_b32 v55, {v(D0)}, {v(D1)}, vcc')
        e(f'buffer_store_dword v55, v101, {WS}, s82 offen sc1 #c')
        for ctl in ('quad_perm:[1,0,3,2]', 'quad_perm:[2,3,0,1]', 'row_half_mirror'):
            e(f'v_add_f32_dpp v62, v62, v62 {ctl} row_mask:0xf bank_mask:0xf')
            e(f'v_add_f32_dpp v63, v63, v63 {ctl} row_mask:0xf bank_mask:0xf')
        e('v_cndmask_b32 v62, 0, v62, s[20:21]')
        e('v_cndmask_b32 v62, v62, v63, s[22:23]')
        e('ds_write_b32 v60, v62')
        e('@wait ro')
        e('s_waitcnt lgkmcnt(0)')
        e('s_barrier')
        e('ds_read_b32 v62, v103')
        for n in range(2):
            for T in range(2):
                e(f'ds_read_b64_tr_b16 {v(64 + 4 * n + 2 * T, 2)}, {v(212 + n)} offset:{RO + 1024 * T}')
        e(f'buffer_store_dword v62, v102, {WS}, s80 offen sc1 #c')
        for n in range(2):
            e(f'buffer_store_dwordx4 {v(64 + 4 * n, 4)}, v208, {WS}, s{84 + n} offen sc1 #c')
        self.stamp('stored')
        if cfg.reord:
            second_stage_loads(1)
            staging_addresses()
        units = cfg.xpre
        for x in early[cfg.xe[1]:]:
            e(x)

        e('s_getreg_b32 s97, hwreg(HW_REG_XCC_ID, 0, 4)')
        e(f's_add_u32 s{sVAL}, s{sTAG}, {SEQ_G1}')
        e(f'v_mov_b32 v56, s{sVAL}')
        e('v_mov_b32 v57, s97')
        e(f'v_mov_b32 v58, s{sVAL}')
        e('v_mov_b32 v59, s97')
        e('s_lshl_b32 s89, s2, 7')
        e(f's_add_u32 s89, s89, {G1}')
        e(f's_cmp_eq_u32 s{sW}, 0')
        e(f's_cselect_b32 s90, 0, {OOB}')
        e(f'v_add_u32 v55, s90, {v(vL16)}')
        e('@wait c')
        e('s_barrier')
        e('s_mov_b64 exec, 0xff')
        e(f'buffer_store_dwordx4 v[56:59], v55, {WS}, s89 offen sc1')
        e('s_mov_b64 exec, -1')
        self.stamp('g1set')

        def constants():
            e = self.e
            e(f'v_add_u32 {v(vB2)}, 0x10000, {v(vL16)}')
            e(f'v_add_u32 {v(vB3)}, 0x20000, {v(vL16)}')
            e(f's_mul_i32 s91, s{sW}, 5120')
            e(f'v_add_u32 {v(vWE)}, s91, {v(vB3)}')
            e(f's_xor_b32 s91, s{sW}, 2')
            e('s_mul_i32 s91, s91, 5120')
            e(f'v_add_u32 {v(vWO)}, s91, {v(vB3)}')
            e(f's_and_b32 s91, s{sW}, 2')
            e('s_mul_i32 s91, s91, 5120')
            e(f's_and_b32 s92, s{sW}, 1')
            e('s_lshl_b32 s92, s92, 7')
            e('s_add_u32 s91, s91, s92')
            e(f'v_and_b32 v52, 0xfffffb7f, {v(vB3)}')
            e('v_add_u32 v52, s91, v52')
            e(f'v_bfe_u32 v60, {v(LANE)}, 3, 1')
            e(f'v_lshl_add_u32 {v(vRA)}, v60, 11, v52')
            e(f'v_lshl_add_u32 {v(vRS)}, v60, 3, v52')
            e(f'v_and_b32 v52, 1, {v(G4)}')
            e(f'v_lshlrev_b32 v60, 4, {v(M16_)}')
            e(f'v_mul_u32_u24 {v(vHS)}, 49152, v52')
            e(f'v_lshl_add_u32 v61, {v(G2)}, 8, v60')
            e(f'v_add_u32 {v(vHS)}, {v(vHS)}, v61')
            e(f'v_mul_u32_u24 {v(vOM)}, 20480, v52')
            e(f'v_add_u32 {v(vOM)}, {v(vOM)}, v60')
            e(f'v_lshl_add_u32 {v(vOM)}, {v(G2)}, 8, {v(vOM)}')
            e(f'v_mul_u32_u24 {v(vOR)}, 20480, {v(G4)}')
            e(f'v_add_u32 {v(vOR)}, {v(vOR)}, v60')
            e(f'v_subrev_u32 v60, 8, {v(M32_)}')
            e(f'v_cmp_lt_u32 vcc, 27, {v(M32_)}')
            e('v_subb_co_u32 v60, vcc, v60, 0, vcc')
            e('v_cmp_gt_u32 vcc, 22, v60')
            e(f'v_mul_u32_u24 v62, 22, {v(G2)}')
            e('v_cndmask_b32 v61, 0, v60, vcc')
            e(f'v_add_lshl_u32 {v(vKVL)}, v61, v62, 4')
            e(f'v_cmp_ne_u32 s[20:21], 27, {v(M32_)}')
            e('s_and_b64 vcc, vcc, s[20:21]')
            e(f'v_cndmask_b32 {v(vKVS)}, v54, {v(vKVL)}, vcc')
            e(f'v_bfe_u32 v61, {v(M32_)}, 2, 1')
            e(f'v_cmp_eq_u32 vcc, v61, {v(G2)}')
            e(f'v_bfe_u32 v62, {v(M32_)}, 1, 1')
            e(f'v_lshrrev_b32 v60, 3, {v(M32_)}')
            e('v_cndmask_b32 v61, 0, v53, vcc')
            e('v_lshl_add_u32 v62, v60, 1, v62')
            for h in range(2):
                for q in range(4):
                    e(f'v_cmp_eq_u32 s[{20 + 2 * q}:{21 + 2 * q}], {4 * h + q}, v62')
                for q in range(4):
                    e(f'v_cndmask_b32 {v(PA + 4 * h + q)}, 0, v61, s[{20 + 2 * q}:{21 + 2 * q}]')
            e(f's_lshr_b32 s91, s{sC}, 2')
            e(f's_lshl_b32 s92, s{sW}, 3')
            e('s_add_u32 s92, s92, s91')
            e(f'v_min_u32 v52, 4, {v(M16_)}')
            e('v_lshl_add_u32 v53, v52, 5, s92')
            e('v_mul_u32_u24 v60, 205, v53')
            e('v_lshrrev_b32 v60, 12, v60')
            e('v_mul_u32_u24 v60, 159, v60')
            e('v_lshlrev_b32 v53, 3, v53')
            e('v_sub_u32 v53, v53, v60')
            e(f's_sub_u32 s93, s{sKSA}, s{sPAR}')
            e(f'v_and_b32 v60, 1, {v(LANE)}')
            e('v_lshl_add_u32 v60, v60, 1, s93')
            e('v_lshrrev_b32 v60, 2, v60')
            e(f'v_lshrrev_b32 v61, 1, {v(M16_)}')
            e('v_min_u32 v61, 4, v61')
            e(f's_mul_i32 s93, s{sW}, 25')
            e('s_add_u32 s93, s93, 156')
            e('v_mul_u32_u24 v61, 5, v61')
            e('v_add3_u32 v61, v61, v60, s93')
            e(f'v_cmp_eq_u32 vcc, 3, {v(G4)}')
            e(f'v_cmp_eq_u32 s[20:21], 1, {v(G2)}')
            e(f'v_lshl_add_u32 v62, {v(M32_)}, 3, s{sSET}')
            e('v_cndmask_b32 v53, v53, v61, vcc')
            e('v_cndmask_b32 v53, v62, v53, s[20:21]')
            e(f'v_lshlrev_b32 {v(vT2)}, 7, v53')
            e(f's_mul_i32 s92, s{sW}, 40')
            e('s_add_u32 s92, s92, s91')
            e('s_add_u32 s92, s92, 96')
            e('v_lshl_add_u32 v52, v52, 3, s92')
            e(f'v_lshrrev_b32 v61, 1, {v(M32_)}')
            e('v_min_u32 v61, 11, v61')
            e(f's_mul_i32 s93, s{sW}, 60')
            e('v_mul_u32_u24 v61, 5, v61')
            e('v_add3_u32 v61, v61, v60, s93')
            e('v_cndmask_b32 v52, v52, v61, s[20:21]')
            e(f's_lshl_b32 s92, s{sSW}, 3')
            e(f'v_and_or_b32 v61, {v(LANE)}, 7, s92')
            e(f'v_cmp_eq_u32 vcc, 1, {v(G4)}')
            e('v_cndmask_b32 v52, v52, v61, vcc')
            e(f'v_lshlrev_b32 {v(vG2)}, 7, v52')

        def second_stage():
            e = self.e
            if cfg.reord:
                e('@wait rn')
                e('s_barrier')
            jobs = [(216, R1, 1536, 210, 78, 0), (216, R1 + 8, 1536, 210, 78, 1024), (217, R1 + 64, 1536, 210, 78, 2048),
                    (214, R2, 1024, 209, 86, 0), (215, R2, 1024, 209, 87, 0)]
            for n, (vrd, stage, step, _, _, _) in enumerate(jobs):
                for T in range(2):
                    e(f'ds_read_b64_tr_b16 {v(NCF + 4 * n + 2 * T, 2)}, {v(vrd)} offset:{stage + step * T}')
            self.nc_stores = []
            for n, (_, _, _, vst, so, off) in enumerate(jobs):
                self.nc_stores.append(f'buffer_store_dwordx4 {v(NCF + 4 * n, 4)}, {v(vst)}, {WS}, s{so} offen offset:{off} sc1 #nc')
                if n < 3:
                    e(f'{M16} {v(144 + 4 * n, 4)}, {v(ONES, 4)}, {v(NCF + 4 * n, 4)}, 0')
            e(f'v_cmp_eq_u32 vcc, 1, {v(G4)}')
            e(f'v_cmp_eq_u32 s[20:21], 2, {v(G4)}')
            e('s_waitcnt lgkmcnt(0)')
            e('s_barrier')
            e('v_cndmask_b32 v204, v144, v148, vcc')
            e('v_cndmask_b32 v204, v204, v152, s[20:21]')
            self.nc_stores.append(f'buffer_store_dword v204, v211, {WS}, s79 offen sc1 #nc')

        assert units[1] - units[0] <= 7 and units[1] <= 14
        if units[0]:
            second_stage()
            e(f'@wait xa{units[0] - 1}')
            for x in ([] if cfg.late else self.nc_stores):
                e(x)
            for u in range(units[0]):
                for x in self.x_read(u, False):
                    e(x)
            e('s_waitcnt lgkmcnt(0)')
        for u in range(units[0], units[1]):
            if u == 2 and not units[0]:
                constants()
                second_stage()
            for x in self.x_dma(u):
                e(x)
        if units[0]:
            constants()
        if cfg.rese:
            self.tile_addresses('row', 0, 90, 52, 54)
            for h in range(2):
                e(f'buffer_load_dwordx4 {v(R + 12 + 4 * h, 4)}, v52, {s_(S_X, 4)}, s90 offen')
                e(f'buffer_load_dword {v(206 + h)}, v53, {s_(S_X, 4)}, s91 offen')
                if h == 0:
                    e('s_add_u32 s90, s90, 40960')
                    e('s_add_u32 s91, s91, 40960')
        self.stamp('pre_done')
        e(f's_mov_b32 s89, {G1}')
        self.spin(f'buffer_load_dwordx2 {v(vT0, 2)}, {v(vT2)}, {WS}, s89 offen sc1',
                  f'v_cmp_ne_u32 vcc, s{sVAL}, {v(vT0)}')
        e(f'v_cmp_ne_u32 vcc, s97, {v(vT1)}')
        e('s_waitcnt lgkmcnt(0)')
        e('s_cmp_lg_u32 vcc_lo, 0')
        if cfg.both:
            e('s_cbranch_scc1 Lslow')
        self.stamp('g1got')

    def softmax(self, a, sp, dst, pk):
        e = self.e
        t0, t1, t2, t3 = vT0, vT1, vT2, vT3
        e(f'v_max3_f32 {v(t0)}, {v(a)}, {v(a + 1)}, {v(a + 2)}')
        e(f'v_max3_f32 {v(t1)}, -{v(a)}, -{v(a + 1)}, -{v(a + 2)}')
        for i in (3, 5, 7):
            e(f'v_max3_f32 {v(t0)}, {v(t0)}, {v(a + i)}, {v(a + i + 1)}')
            e(f'v_max3_f32 {v(t1)}, {v(t1)}, -{v(a + i)}, -{v(a + i + 1)}')
        e(f'v_max_f32 {v(t0)}, {v(t0)}, {v(a + 9)}')
        e(f'v_max_f32 {v(t1)}, {v(t1)}, -{v(a + 9)}')
        e(f'v_permlane32_swap_b32 {v(t0)}, {v(t1)}')
        e(f'v_max_f32 {v(t0)}, {v(t0)}, {v(t1)}')
        e(f'v_mul_f32 {v(t1)}, {v(t0)}, {v(sp + 1)}')
        e(f'v_mul_f32 {v(t0)}, {v(t0)}, {v(sp + 1)}')
        e(f'v_permlane32_swap_b32 {v(t0)}, {v(t1)}')
        for i in range(10):
            if pk:
                sel = (a + i) & 1
                e(f'v_pk_fma_f32 {v(E + 2 * i, 2)}, {v((a + i) & ~1, 2)}, {v(sp, 2)}, {v(t0, 2)} '
                  f'op_sel:[{sel},0,0] op_sel_hi:[{sel},1,1]')
            else:
                for h in range(2):
                    e(f'v_fma_f32 {v(E + 2 * i + h)}, {v(a + i)}, {v(sp + h)}, {v(t0 + h)}')
        for i in range(20):
            e(f'v_exp_f32 {v(E + i)}, {v(E + i)}')
        if pk:
            e(f'v_pk_add_f32 {v(t2, 2)}, {v(E, 2)}, {v(E + 2, 2)}')
            for i in range(2, 10):
                e(f'v_pk_add_f32 {v(t2, 2)}, {v(t2, 2)}, {v(E + 2 * i, 2)}')
        else:
            for i in range(1, 10):
                for h in range(2):
                    e(f'v_add_f32 {v(t2 + h)}, {v(t2 + h if i > 1 else E + h)}, {v(E + 2 * i + h)}')
        e(f'v_permlane32_swap_b32 {v(t2)}, {v(t3)}')
        e(f'v_add_f32 {v(t2)}, {v(t2)}, {v(t3)}')
        e(f'v_rcp_f32 {v(t2)}, {v(t2)}')
        e(f'v_mov_b32 {v(t3)}, {v(t2)}')
        e(f'v_permlane32_swap_b32 {v(t2)}, {v(t3)}')
        for i in range(10):
            if pk:
                e(f'v_pk_mul_f32 {v(E + 2 * i, 2)}, {v(E + 2 * i, 2)}, {v(t2, 2)}')
            else:
                for h in range(2):
                    e(f'v_mul_f32 {v(E + 2 * i + h)}, {v(E + 2 * i + h)}, {v(t2 + h)}')
            e(f'v_cvt_pk_bf16_f32 {v(dst + i)}, {v(E + 2 * i)}, {v(E + 2 * i + 1)}')

    def mean_term(self, T, mt, first=False):
        a = ((A00, A01), (A10, A11))[T][mt]
        return f'{M32H} {v(a, 16)}, {a_(aCQ + 2 * T, 2)}, {v(CB + 2 * mt, 2)}, {0 if first else v(a, 16)}'

    def kpart(self, mt, pk):
        e = self.e
        a0, a1, st, KV2 = (A00, A01)[mt], (A10, A11)[mt], STT + 4 * mt, A00
        e(f'v_mov_b32 {v(D16 + 15)}, s{sLO}')
        self.softmax(a0, st, D16, pk)
        X, Y = E, a0
        gap = (lambda n: None) if pk else (lambda n: e(f'; gap {n}'))
        e(f'{M32} {v(X, 16)}, {v(D16, 4)}, {v(PA, 4)}, 0')
        e(f'{M32} {v(X, 16)}, {v(D16 + 4, 4)}, {v(PB, 4)}, {v(X, 16)}')
        for i, src in enumerate((a0 + 10, a0 + 12, a0 + 14, a1 + 10, a1 + 12)):
            for h in range(2):
                e(f'v_mul_f32 {v(src + h)}, {v(src + h)}, {v(st + 2)}')
            e(f'v_cvt_pk_bf16_f32 {v(D16 + 10 + i)}, {v(src)}, {v(src + 1)}')
        gap(1)
        e(f'{M32} {v(Y, 16)}, {v(D16 + 8, 4)}, {v(PA, 4)}, 0')
        e(f'{M32} {v(Y, 16)}, {v(D16 + 12, 4)}, {v(PB, 4)}, {v(Y, 16)}')
        for q in range(8):
            e(f'v_cvt_pk_bf16_f32 {v(D16 + q)}, {v(X + 2 * q)}, {v(X + 2 * q + 1)}')
        gap(2)
        for q in range(8):
            e(f'v_cvt_pk_bf16_f32 {v(D16 + 8 + q)}, {v(Y + 2 * q)}, {v(Y + 2 * q + 1)}')
        gap(1)
        for h in range(2):
            c = v(KV1, 16) if mt or h else '0'
            e(f'{M32} {v(KV1, 16)}, {v(D16 + 4 * h, 4)}, {v(D16 + 8 + 4 * h, 4)}, {c}')
        for h in range(2):
            c = v(KV2, 16) if mt or h else '0'
            e(f'{M32} {v(KV2, 16)}, {v(D16 + 8 + 4 * h, 4)}, {v(D16 + 8 + 4 * h, 4)}, {c}')

    def w2_loads(self, n):
        out = []
        for k in range(self.w2n, min(60, self.w2n + n)):
            i = (k + 20) % 60
            t = f'buffer_load_dwordx4 {a_(4 * i, 4)}, {v(vL16)}, {WS}, s47 offen offset:{(i % 4) * 1024} sc1 {self.cfg.nt2}'
            if i == 59:
                t += f'\ns_sub_u32 s47, s47, {56 * 1024}'
            elif i % 4 == 3:
                t += '\ns_add_u32 s47, s47, 4096'
            out.append(t)
        self.w2n += len(out)
        return out

    def touch_all(self, which):
        t = [f's_lshl_b32 s62, s{sSET}, 5\ns_add_u32 s62, s62, s{sC}\ns_lshl_b32 s62, s62, 2\ns_add_u32 s62, s62, s{sW}\n'
             f'v_lshlrev_b32 {v(SP + 1)}, 3, {v(vL16)}']
        for name, buf, share, base in (('b', WS, 6144, self.act(0, HF_O)), ('a', self.xbuf(), 2560, self.act(0, X1F_O))):
            if name in which:
                mask = (1 << (share // 128)) - 1
                t[0] += (f'\ns_mul_i32 s63, s62, {share}\ns_add_u32 s63, s63, {base}\ns_mov_b32 exec_lo, {hex(mask & 0xffffffff)}\n'
                         f's_mov_b32 exec_hi, {hex(mask >> 32)}\nbuffer_load_dword {v(SP)}, {v(SP + 1)}, {buf}, s63 offen sc1\ns_mov_b64 exec, -1')
        return t

    def side(self, k):
        a = [self.w1q.pop(0) for _ in range(min(self.cfg.w1split[k], len(self.w1q)))]
        b = self.w2_loads(self.cfg.w2split[k])
        keyed = [((i + 0.5) / len(a), x) for i, x in enumerate(a)] + [((i + 0.5) / len(b), x) for i, x in enumerate(b)]
        out = [x for _, x in sorted(keyed, key=lambda t: t[0])]
        return out

    def p1(self, L, chain=None):
        e, cfg = self.e, self.cfg
        acc = ((A00, A01), (A10, A11))
        areg = lambda n: 176 + (n % 12) * 4
        wreg = lambda n: 224 + (n % 8) * 4

        def early_addresses():
            e = self.e
            e(f's_mul_i32 s16, s{sSW}, 81920')
            e(f's_add_u32 s16, s16, {self.act(L, XF_O)}')
            e(f's_lshl_b32 s17, s{sSW}, 12')
            e(f's_add_u32 s17, s17, {self.act(L, ST_O)}')
        if L == 0:
            early_addresses()

        def late_addresses():
            e = self.e
            e(f's_mul_i32 s18, s{sJ}, 102400')
            e(f's_mul_i32 s19, s{sW}, 25600')
            e('s_add_u32 s18, s18, s19')
            e(f's_add_u32 s18, s18, {WOF}')
            e(f's_mul_i32 s20, s{sSW}, {self.ostride()}')
            e(f's_add_u32 s20, s20, {self.act(L, OF_O)}')
            e(f's_mul_i32 s21, s{sGI}, 5120')
            e('s_add_u32 s20, s20, s21')
            e(f's_lshr_b32 s22, s{sJ}, 1')
            e('s_lshl_b32 s22, s22, 5')
            e(f's_add_u32 s22, s22, s{sPAR}')
            e('s_lshl_b32 s22, s22, 3')
            e('s_add_u32 s22, s22, s20')
            e('s_add_u32 s22, s22, 4096')
            e(f's_lshl_b32 s21, s{sJ}, 9')
            e('s_add_u32 s20, s20, s21')
            e('s_add_u32 s21, s20, 40960')
            self.flag_line(23, 1, sSW)
            e(f's_lshl_b32 s24, s{sC}, 2')
            e('s_add_u32 s23, s23, s24')
            e(f's_add_u32 s24, s24, s{sW}')
            e(f's_mul_i32 s24, s24, {8 * KVS}')
            e(f's_add_u32 s24, s24, {KVP + L * 0x100000}')
            for x in range(1, 8):
                e(f's_xor_b32 s{24 + x}, s{sSET}, {x}')
                e(f's_mul_i32 s{24 + x}, s{24 + x}, {KVS}')
                e(f's_add_u32 s{24 + x}, s{24 + x}, s24')
            e(f's_mul_i32 s32, s{sSET}, {KVS}')
            e('s_add_u32 s24, s24, s32')

        def load_a(n):
            t = f'buffer_load_dwordx4 {v(areg(n), 4)}, {v(vL16)}, {self.xbuf()}, s16 offen offset:{(n % 4) * 1024} sc1'
            return t + ('\ns_add_u32 s16, s16, 4096' if n % 4 == 3 else '')

        def load_w(n):
            b, off = lds((n % 80) * 1024)
            return f'ds_read_b128 {v(wreg(n), 4)}, {v(b)} offset:{off}'

        stat_ld = [f'buffer_load_dwordx4 {v(KV1 + 4 * q, 4)}, {v(vSTL)}, {WS}, s17 offen offset:{1024 * q} sc1' for q in range(4)]

        def stats(tiles=(0, 1)):
            for mt in tiles:
                b, st = KV1 + 8 * mt, STT + 4 * mt
                self.pair_stats(b, b + 4)
                self.hi_lo(CB + 2 * mt, b, b + 3)
                self.e(f'v_mov_b32 {v(st + 2)}, {v(b + 2)}')
                self.e(f'v_mul_f32 {v(st)}, {hex(LOG2E)}, {v(b + 2)}')
                self.e(f'v_mul_f32 {v(st + 1)}, {hex(LOG2E | 0x80000000)}, {v(b + 2)}')

        mf, after = [], {}
        DW = 5

        def load_wo(i):
            r = WO_E + 4 * i if i < 20 else WO_L + 4 * (i - 20)
            t = f'buffer_load_dwordx4 {v(r, 4)}, {v(vL16)}, {WS}, s18 offen offset:{(i % 4) * 1024} sc1'
            return t + ('\ns_add_u32 s18, s18, 4096' if i % 4 == 3 else '')

        if L == 0:
            for ks in range(40):
                for T in range(2):
                    for mt in range(2):
                        c = v(acc[T][mt], 16) if ks else '0'
                        mf.append(f'{M32} {v(acc[T][mt], 16)}, {v(wreg(2 * ks + T), 4)}, {a_(self.x_reg(ks, mt), 4)}, {c}')
            e(f's_mul_i32 s33, s{sC}, {RSTR}')
            e(f's_add_u32 s33, s33, {RG}')
            e(f's_lshl_b32 s34, s{sW}, 12')
            e('s_add_u32 s33, s33, s34')

            def wq(g):
                t = f's_mov_b32 m0, s34\nbuffer_load_dwordx4 {v(vL16)}, {WS}, s33 offen offset:{(g % 4) * 1024} sc1 {cfg.ntq} lds #wq{g // 4}'
                return t + ('\ns_add_u32 s33, s33, 16384\ns_add_u32 s34, s34, 16384' if g % 4 == 3 else '')
            lead, u0 = cfg.wlead, cfg.xpre[1]
            for g in range(lead):
                e(wq(g))
            for u in range(cfg.xpre[0], u0):
                for x in self.x_read(u, False):
                    e(x)
            late_addresses()
            e('s_waitcnt lgkmcnt(0)')
            for x in self.x_dma(u0):
                e(x)
            e('@wait wq0')
            e('s_barrier')
            for n in range(DW):
                e(load_w(n))
            for ch in range(1, 5):
                spread(after, [f'@wait wq{ch}\ns_barrier'], 32 * ch - 2 * DW)
            spread(after, [wq(g) for g in range(lead, 20)], 0, 8)
            step = cfg.xstep
            for u in range(u0, 20):
                at = (u - u0) * step
                if u + 1 < 20:
                    items = self.x_dma(u + 1)
                    if u - 2 >= u0:
                        items[0] = self.x_done(u - 2) + '\n' + items[0]
                    spread(after, items, at + 1, 2)
                rd = at + step + 1
                assert rd + 4 < 16 * (u // 2), (u, rd)
                assert u < 14 or rd > 16 * (u // 2) - 105
                spread(after, self.x_read(u), rd, 1)
            spread(after, [load_w(n) for n in range(DW, 80)], 0, 2)
            spread(after, [self.colsum_dma(CSQ, 35, SP, 'csq')], 30)
            spread(after, ['@wait csq'], 32 * 3 - 2 * DW - 1)
            spread(after, stat_ld, 60, 4)

            def cs():
                self.colsum(E, SP + 1)
                self.e(f'v_cmp_gt_u32 vcc, 512, {v(vL16)}')
                self.e(f'v_cndmask_b32 {v(E + 1)}, 0, {v(E)}, vcc')
                self.e(f'v_cndmask_b32 {v(E + 2)}, {v(E)}, 0, vcc')
                for q in range(4):
                    self.e(f'v_accvgpr_write_b32 {a_(aCQ + q)}, {v(E + 1 + q // 2)}')
            fill(after, self.capture(cs), 88, 116)
            fill(after, self.capture(stats), 119, 150)
            g2 = [f's_add_u32 s{sVAL}, s{sTAG}, {SEQ_G2}'] + [f'v_mov_b32 {v(vT0 + q)}, s{sVAL}' for q in range(4)]
            g2 += ['s_lshl_b32 s39, s2, 7', f's_add_u32 s39, s39, {G2}', f's_cmp_eq_u32 s{sW}, 0\ns_cselect_b32 s36, 0, {OOB}',
                   f'v_add_u32 {v(SP + 2)}, s36, {v(vL16)}',
                   f's_mov_b64 exec, 0xff\nbuffer_store_dwordx4 {v(vT0, 4)}, {v(SP + 2)}, {WS}, s39 offen sc1\ns_mov_b64 exec, -1',
                   f's_mov_b32 s39, {G2}', f's_mul_i32 s47, s{sJ}, {4 * RSTR}', f's_mul_i32 s36, s{sW}, {RSTR}',
                   's_add_u32 s47, s47, s36', f's_add_u32 s47, s47, {RG + RG_W2 + 20 * 1024}']
            self.w2n = 0
            if cfg.late:
                spread(after, self.nc_stores, cfg.nc_at, 1)
                spread(after, [f'v_mov_b32 {v(SP + 3)}, {v(vG2)}'], cfg.nc_at + 8)
                n_in = 0
            else:
                spread(after, g2, 0, 1, 4)
                g2ld = f'buffer_load_dword {v(vT0)}, {v(vG2)}, {WS}, s39 offen sc1'
                spread(after, [g2ld], cfg.g2[0])
                spread(after, [self.late_check(g2ld, f'v_cmp_ne_u32 vcc, s{sVAL}, {v(vT0)}')], cfg.g2[1])
                n_in = (160 - cfg.g2[1] - 1) // 3
                fill(after, [load_wo(i) for i in range(min(n_in, 12))], cfg.g2[1] + 1, 160)
            if cfg.prew:
                spread(after, [f's_add_u32 s36, s24, 0x100000\nv_mov_b32 {v(vT3)}, s{sTAG}\n'
                               f'buffer_store_dwordx4 {v(vT0, 4)}, {v(vKVS)}, {WS}, s24 offen sc1 #nc',
                               f'buffer_store_dwordx4 {v(vT0, 4)}, {v(vKVS)}, {WS}, s36 offen sc1 #nc'], cfg.nc_at + 6, 1)
                assert cfg.late
            if cfg.te and cfg.tat:
                spread(after, self.touch_all(cfg.te), cfg.tat)
            spread(after, ['s_barrier'], 159)
            if L == cfg.fine:
                for g in (0, 23, 55, 87, 119, 140):
                    spread(after, self.capture(lambda: self.stamp(f'p1_{L}_g{g}')), g, 0)
            self.weave(mf, after)
            self.stamp(f'p1_{L}_gemm')
            e(f's_mul_i32 s37, s{sC}, {RSTR}')
            e(f's_mul_i32 s38, s{sW}, 15360')
            e('s_add_u32 s37, s37, s38')
            e(f's_add_u32 s37, s37, {RG + RG_W1}')
            e(f's_add_u32 s38, s38, {LDS_W1}')
            self.w1q = []
            for i in range(15):
                t = f's_mov_b32 m0, s38\nbuffer_load_dwordx4 {v(vL16)}, {WS}, s37 offen offset:{(i % 4) * 1024} sc1 {cfg.nt1} lds'
                self.w1q.append(t + ('\ns_add_u32 s37, s37, 4096\ns_add_u32 s38, s38, 4096' if i % 4 == 3 else ''))
            for q in range(4):
                e(self.mean_term(q % 2, q // 2))
                if cfg.rese and q < 2:
                    b = R + 10 * q
                    for z in range(4):
                        e(f'v_lshlrev_b32 {v(b + 2 * z)}, 16, {v(R + 12 + 4 * q + z)}')
                        e(f'v_and_b32 {v(b + 2 * z + 1)}, 0xffff0000, {v(R + 12 + 4 * q + z)}')
                    e(f'v_lshlrev_b32 {v(b + 8)}, 16, {v(206 + q)}')
                    e(f'v_and_b32 {v(b + 9)}, 0xffff0000, {v(206 + q)}')
            if cfg.late:
                self.kpart(0, True)
                self.stamp('k0_0_')
                for x in g2[:9] + ['@wait nc', 's_barrier'] + g2[9:]:
                    e(x)
                self.stamp('nc_0_')
                body = self.capture(lambda: self.kpart(1, True))
            else:
                body = self.capture(lambda: [self.kpart(0, True), self.kpart(1, True)])
            extra = [f'buffer_load_dwordx2 {v(SP, 2)}, {v(vOM)}, {WS}, s20 offen sc1 {cfg.ntt}',
                     f'buffer_load_dwordx2 {v(SP, 2)}, {v(vOM)}, {WS}, s21 offen sc1 {cfg.ntt}',
                     f'buffer_load_dwordx2 {v(SP, 2)}, {v(vOR)}, {WS}, s22 offen sc1 {cfg.ntt}'] if 'o' in cfg.tl else []
            if cfg.te and not cfg.tat:
                extra = self.touch_all(cfg.te) + extra
            wo_next = cfg.wo0 if cfg.late else 20
            extra += [load_wo(i) for i in range(min(n_in, 12), wo_next)]
            if not cfg.late:
                extra += self.side(0)
        else:
            mf, after, boundary, tail_b = chain
            B = len(mf)
            for n in range(80):
                for T in range(2):
                    c = v(acc[T][n // 40], 16) if n else '0'
                    pre = f'@need {v(wreg(2 * n), 4)} {v(wreg(2 * n + 1), 4)} {v(areg(n), 4)}\n' if T == 0 else ''
                    mf.append(f'{pre}{M32} {v(acc[T][n // 40], 16)}, {v(wreg(2 * n + T), 4)}, {v(areg(n), 4)}, {c}')
            pour(mf, after, self.capture(early_addresses), B - 58, B - 30, 2)
            boundary(B, 4 * L + F_X, [load_a(n) for n in range(cfg.db)], [load_w(n) for n in range(DW)])
            gate = B + cfg.g1b[1]
            self.gate(after, B + cfg.g1b[0], gate, vPL32, 33, 4 * L + F_X)
            for n in range(cfg.db, 80):
                at = B + 2 * (n - cfg.d1)
                spread(after, [load_a(n)], max(at, gate + n - 40) if n >= 40 else at)
            spread(after, stat_ld[:2], B + 9, 6)
            spread(after, stat_ld[2:], gate + 9, 2)
            spread(after, [load_w(n) for n in range(DW, 160)], B, 1)
            last = tail_b(B, 6)
            spread(after, ['s_barrier'], last + 1)
            pour(mf, after, self.capture(lambda: stats((0,))), last + 1, B + 78, 5)
            pour(mf, after, self.capture(late_addresses), last + 2, B + 80, 6)
            spread(after, [self.mean_term(0, 0), self.mean_term(1, 0)], B + 82, 1)
            pour(mf, after, self.capture(lambda: stats((1,))) + self.capture(lambda: self.kpart(0, False)), B + 86, B + 156, cfg.cap1)
            for q in (80, 81):
                mf[B + q] = mf[B + q].rsplit(', ', 1)[0] + ', 0'
            self.weave(mf, after)
            e(self.mean_term(0, 1))
            e(self.mean_term(1, 1))
            self.stamp(f'p1_{L}_gemm')
            body = self.capture(lambda: self.kpart(1, True))
            extra = [load_wo(i) for i in range(cfg.wo1)]
            wo_next = cfg.wo1
        after = {}
        fill(after, extra, 1, len(body) - 8)
        self.weave(body, after)

        self.stamp(f'k1_{L}_')
        KV2 = A00
        e(f's_lshl_b32 s33, s{sW}, 10')
        e(f'v_add_u32 {v(vT1)}, s33, {v(vB3)}')
        e(f's_lshl_b32 s33, s{sW}, 2')
        e(f'v_add_u32 {v(vT2)}, s33, {v(vB3)}')
        e(f's_add_u32 s{sVAL}, s{sTAG}, {SEQ_KV + L}')
        e(f'v_mov_b32 {v(D16 + 3)}, s{sVAL}')
        for q in range(4):
            e(f'ds_write_b128 {v(vWE)}, {v(KV1 + 4 * q, 4)} offset:{EXO + 1024 * q}')
        e(f'ds_write_b128 {v(vWE)}, {v(KV2, 4)} offset:{EXO + 4096}')
        e('s_waitcnt lgkmcnt(0)')
        e('s_barrier')
        for src in range(4):
            e(f'ds_read_b128 {v(E + 4 * src, 4)}, {v(vT1)} offset:{EXO + 5120 * src}')
            e(f'ds_read_b32 {v(E + 16 + src)}, {v(vT2)} offset:{EXO + 5120 * src + 4096}')
        for h in range(2):
            e(f'v_pk_add_f32 {v(E + 2 * h, 2)}, {v(E + 2 * h, 2)}, {v(E + 4 + 2 * h, 2)}')
        for h in range(2):
            e(f'v_pk_add_f32 {v(E + 8 + 2 * h, 2)}, {v(E + 8 + 2 * h, 2)}, {v(E + 12 + 2 * h, 2)}')
        e(f'v_pk_add_f32 {v(E + 16, 2)}, {v(E + 16, 2)}, {v(E + 18, 2)}')
        for h in range(2):
            e(f'v_pk_add_f32 {v(E + 2 * h, 2)}, {v(E + 2 * h, 2)}, {v(E + 8 + 2 * h, 2)}')
        e(f'v_add_f32 {v(E + 16)}, {v(E + 16)}, {v(E + 17)}')
        e(f'v_cvt_pk_bf16_f32 {v(D16)}, {v(E)}, {v(E + 1)}')
        e(f'v_cvt_pk_bf16_f32 {v(D16 + 1)}, {v(E + 2)}, {v(E + 3)}')
        e(f'v_cvt_pk_bf16_f32 {v(D16 + 2)}, {v(E + 16)}, 0')
        e(f'buffer_store_dwordx4 {v(D16, 4)}, {v(vKVS)}, {WS}, s24 offen sc1')
        e('s_barrier')
        self.stamp(f'p1_{L}_kvpub')
        G = A00
        gld = [f'buffer_load_dwordx4 {v(G + 4 * x, 4)}, {v(vKVL)}, {WS}, s{25 + x} offen sc1' for x in range(7)]
        body = self.capture(lambda: [self.softmax(acc[1][mt], STT + 4 * mt, acc[1][mt], True)
                                     for mt in range(1 if L and cfg.qa else 0, 2)])
        extra = [load_wo(i) for i in range(wo_next, 25)]
        if L == 0 and cfg.late:
            g2ld = f'buffer_load_dword {v(SP + 2)}, {v(SP + 3)}, {WS}, s39 offen sc1'
            e(f's_add_u32 s36, s{sTAG}, {SEQ_G2}')
            extra = [g2ld] + extra + [self.late_check(g2ld, f'v_cmp_ne_u32 vcc, s36, {v(SP + 2)}')]
        if L == 0:
            extra += self.side(1)
        after = {}
        fill(after, extra, 0, len(body) - cfg.gat[L])
        self.weave(body, after)
        if L == 0 and not cfg.rese:
            self.tile_addresses('row', 0, 33, vT0, vT2)
            for h in range(2):
                e(f'buffer_load_dwordx4 {v(R + 10 * h + 4, 4)}, {v(vT0)}, {s_(S_X, 4)}, s33 offen')
                e(f'buffer_load_dword {v(R + 10 * h + 9)}, {v(vT1)}, {s_(S_X, 4)}, s34 offen')
                if h == 0:
                    e('s_add_u32 s33, s33, 40960')
                    e('s_add_u32 s34, s34, 40960')
        self.stamp(f'p1_{L}_smq')
        e(f's_lshr_b32 s33, s{sW}, 1')
        e('s_lshl_b32 s33, s33, 10')
        e(f's_and_b32 s34, s{sW}, 1')
        e('s_lshl_b32 s34, s34, 3')
        e('s_add_u32 s33, s33, s34')
        e(f'v_add_u32 {v(E + 10)}, s33, {v(vB3)}')
        e(f'v_lshrrev_b32 {v(E + 11)}, 1, {v(vL16)}')
        e(f'v_add_u32 {v(E + 11)}, {LDS_EX + 2048}, {v(E + 11)}')
        e(f's_lshl_b32 s33, s{sW}, 1')
        e(f'v_add_u32 {v(E + 12)}, s33, {v(E + 11)}')
        lab = self.label('kv')
        e(f's_mov_b32 s{sCNT}, 0')
        e(f'{lab}:')
        for x in gld:
            e(x)
        e(f's_add_u32 s{sCNT}, s{sCNT}, 1')
        e(f's_cmp_gt_u32 s{sCNT}, 0x40000')
        e('s_cbranch_scc1 Lend')
        for i in range(5):
            if i % 2 == 0:
                e(f'v_lshlrev_b32 {v(E + i)}, 16, {v(D16 + i // 2)}')
            else:
                e(f'v_and_b32 {v(E + i)}, 0xffff0000, {v(D16 + i // 2)}')
        e(f'v_mov_b32 {v(vT0)}, 0')
        for x in range(7):
            for i in range(5):
                e(f'v_dot2c_f32_bf16 {v(E + i)}, s{sHI if i % 2 else sLO}, {v(G + 4 * x + i // 2)}')
            e(f'v_bitop3_b32 {v(vT0)}, {v(vT0)}, {v(G + 4 * x + 3)}, s{sVAL} bitop3:0xf6')
        e(f'v_cmp_ne_u32 vcc, 0, {v(vT0)}')
        e(f's_cbranch_vccnz {lab}')
        self.stamp(f'p1_{L}_kvgot')
        if L == 0:
            for x in self.side(2):
                e(x)
        def addresses():
            self.k_addresses(24, 5, self.act(L, OF_O), self.ostride(), 20480)
            self.flag_line(28, 1, sSG)
            self.e(f's_lshl_b32 s62, s{sW}, 5')
            self.e('s_add_u32 s28, s28, s62')
            self.e(f'v_lshrrev_b32 {v(vPL32)}, 2, {v(vL16)}')
            self.e(f'v_and_b32 {v(vPL8)}, 28, {v(vPL32)}')
            self.e(f'v_and_b32 {v(vPL32)}, 124, {v(vPL32)}')
        pad = self.capture(addresses)
        late = self.capture(lambda: self.tile_addresses('x1', L, 29, vP, vT2))

        def slack(n):
            for _ in range(n):
                if pad:
                    e(pad.pop(0))
        e(f'v_cvt_pk_bf16_f32 {v(E + 6)}, {v(E)}, {v(E + 1)}')
        e(f'v_cvt_pk_bf16_f32 {v(E + 7)}, {v(E + 2)}, {v(E + 3)}')
        e(f'v_cvt_pk_bf16_f32 {v(E + 8)}, {v(E + 4)}, {v(E + 4)}')
        e(f'ds_write_b64 {v(E + 10)}, {v(E + 6, 2)} offset:{EXO}')
        e(f'ds_write_b16 {v(E + 12)}, {v(E + 8)}')
        slack(8)
        e('s_waitcnt lgkmcnt(0)')
        e('s_barrier')
        e(f'ds_read_b64 {v(D16 + 8, 2)}, {v(E + 11)}')
        e(f'ds_read_b128 {v(D16, 4)}, {v(vB3)} offset:{EXO}')
        e(f'ds_read_b128 {v(D16 + 4, 4)}, {v(vB3)} offset:{EXO + 1024}')
        slack(10)
        for mt in range(2):
            e(f'{M32H} {v(acc[0][mt], 16)}, {v(D16 + 8, 2)}, {v(acc[1][mt] + 8, 2)}, 0')
            slack(5)
        for mt in range(2):
            O, Q = acc[0][mt], acc[1][mt]
            e(f'{M32} {v(O, 16)}, {v(D16, 4)}, {v(Q, 4)}, {v(O, 16)}')
            e(f'{M32} {v(O, 16)}, {v(D16 + 4, 4)}, {v(Q + 4, 4)}, {v(O, 16)}')
        slack(100)
        for mt in range(2):
            O, P = acc[0][mt], E + 4 * mt
            e(f'v_add_f32 {v(O + 14)}, {hex(EPS_DEN)}, {v(O + 14)}')
            e(f'v_rcp_f32 {v(O + 14)}, {v(O + 14)}')
            for i in range(5):
                if mt:
                    e(f'v_pk_mul_f32 {v(O + 4 + 2 * i, 2)}, {v(O + 4 + 2 * i, 2)}, {v(O + 14, 2)} op_sel_hi:[1,0]')
                else:
                    for z in range(2):
                        e(f'v_mul_f32 {v(O + 4 + 2 * i + z)}, {v(O + 4 + 2 * i + z)}, {v(O + 14)}')
            for i in range(5):
                e(f'v_cvt_pk_bf16_f32 {v(P + i if i < 4 else E + 8 + mt)}, {v(O + 4 + 2 * i)}, {v(O + 5 + 2 * i)}')
            e(f'buffer_store_dwordx4 {v(P, 4)}, {v(vOM)}, {WS}, s{20 + mt} offen {self.st} #o{L}')
        e(f'v_permlane32_swap_b32 {v(E + 8)}, {v(E + 9)}')
        e(f'buffer_store_dwordx2 {v(E + 8, 2)}, {v(vOR)}, {WS}, s22 offen {self.st} #o{L}')
        for x in late:
            e(x)
        if L == 0 and not cfg.rese:
            for h in range(2):
                b = R + 10 * h
                for q in range(4):
                    e(f'v_lshlrev_b32 {v(b + 2 * q)}, 16, {v(b + 4 + q)}')
                    e(f'v_and_b32 {v(b + 2 * q + 1)}, 0xffff0000, {v(b + 4 + q)}')
                e(f'v_lshlrev_b32 {v(b + 8)}, 16, {v(b + 9)}')
                e(f'v_and_b32 {v(b + 9)}, 0xffff0000, {v(b + 9)}')
        e(self.flag_store(23, 4 * L + F_O, vT0, f'o{L}'))
        self.stamp(f'p1_{L}_end')
        if L == 0:
            e('s_add_u32 s62, s29, 40960')
            e('s_add_u32 s63, s30, 40960')
            for vo, so in ((vP, 29), (vP + 1, 30), (vP, 62), (vP + 1, 63)) if 'x' in cfg.tl else ():
                e(f'buffer_load_dword {v(SP)}, {v(vo)}, {self.xbuf()}, s{so} offen sc1')
            for x in self.side(3):
                e(x)

    def k_addresses(self, d, nk, abase, gstride, mstride):
        e = self.e
        e(f's_mul_i32 s{d}, s{sSG}, {gstride}')
        e(f's_add_u32 s{d}, s{d}, {abase}')
        e(f's_mul_i32 s{d + 1}, s{sW}, {nk * 1024}')
        e(f's_add_u32 s{d}, s{d}, s{d + 1}')
        e(f's_lshr_b32 s{d + 2}, s{sW}, 1')
        e(f's_mul_i32 s{d + 2}, s{d + 2}, {mstride}')
        e(f's_add_u32 s{d + 1}, s{d}, {mstride}')
        e(f's_sub_u32 s{d + 1}, s{d + 1}, s{d + 2}')
        e(f's_add_u32 s{d}, s{d}, s{d + 2}')
        e(f's_add_u32 s{d + 2}, s{d}, {2 * mstride}')
        e(f's_add_u32 s{d + 3}, s{d + 1}, {2 * mstride}')

    def k_steps(self, steps, nk, wreg, areg):
        mf = []
        for s in steps:
            acc = (KX0, KX1)[s % 2]
            for k in range(nk):
                for t in range(5):
                    c = v(acc + 4 * t, 4) if k else '0'
                    pre = f'@need {v(areg(s * nk + k), 4)}\n' if t == 0 else ''
                    mf.append(f'{pre}{M16} {v(acc + 4 * t, 4)}, {wreg(k, t)}, {v(areg(s * nk + k), 4)}, {c}')
        return mf

    def x_writes(self, s):
        return [f'ds_write_b128 {v((vWE, vWO)[s % 2])}, {v((KX0, KX1)[s % 2] + 4 * t, 4)} offset:{EXO + 1024 * t}' for t in range(5)]

    def x_reads(self):
        out = []
        for u in range(2):
            out += [f'ds_read_b128 {v(KZ + 10 * u + 4 * q, 4)}, {v(vRA)} offset:{EXO + 5120 * u + 1024 * q}' for q in range(2)]
            out.append(f'ds_read_b64 {v(KZ + 10 * u + 8, 2)}, {v(vRS)} offset:{EXO + 5120 * u + 4096}')
        return out

    def x_adds(self, h, pk):
        b = R + 10 * h
        if pk:
            return [f'v_pk_add_f32 {v(b + 2 * q, 2)}, {v(b + 2 * q, 2)}, {v(KZ + 10 * u + 2 * q, 2)}' for u in range(2) for q in range(5)]
        return [f'v_add_f32 {v(b + q)}, {v(b + q)}, {v(KZ + 10 * u + q)}' for u in range(2) for q in range(10)]

    def x_weave(self, after, s, b, pos):
        wr, r0 = pos
        spread(after, ['s_waitcnt lgkmcnt(0)\ns_barrier'], b + wr[0] - 1)
        for t, x in enumerate(self.x_writes(s)):
            spread(after, [x], b + wr[t])
        spread(after, ['s_waitcnt lgkmcnt(0)\ns_barrier'], b + r0)
        spread(after, self.x_reads(), b + r0 + 1, 1)

    def x_block(self, s, pad):
        out, k = ['s_waitcnt lgkmcnt(0)', 's_barrier'], -(-len(pad) // 5)
        for t, x in enumerate(self.x_writes(s)):
            out += [x] + (pad[t] if pad and isinstance(pad[0], list) else pad[k * t:k * t + k])
        return out + ['s_waitcnt lgkmcnt(0)', 's_barrier'] + self.x_reads()

    def finish_rows(self, h, seq, pk):
        e, st, b, P, t = self.e, self.st, R + 10 * h, KZ, KZ + 6
        for q in range(5):
            e(f'v_cvt_pk_bf16_f32 {v(P + q)}, {v(b + 2 * q)}, {v(b + 2 * q + 1)}')
        buf = self.xbuf() if seq else OUT
        e(f'buffer_store_dwordx4 {v(P, 4)}, {v(vP)}, {buf}, s29 offen {st} #x{seq}{h}')
        e(f'buffer_store_dword {v(P + 4)}, {v(vP + 1)}, {buf}, s30 offen {st} #x{seq}{h}')
        if seq:
            if pk:
                e(f'v_pk_add_f32 {v(t, 2)}, {v(b, 2)}, {v(b + 2, 2)}')
                e(f'v_pk_mul_f32 {v(t + 2, 2)}, {v(b, 2)}, {v(b, 2)}')
                for i in range(1, 5):
                    if i > 1:
                        e(f'v_pk_add_f32 {v(t, 2)}, {v(t, 2)}, {v(b + 2 * i, 2)}')
                    e(f'v_pk_fma_f32 {v(t + 2, 2)}, {v(b + 2 * i, 2)}, {v(b + 2 * i, 2)}, {v(t + 2, 2)}')
                e(f'v_add_f32 {v(t)}, {v(t)}, {v(t + 1)}')
                e(f'v_add_f32 {v(t + 2)}, {v(t + 2)}, {v(t + 3)}')
            else:
                e(f'v_add_f32 {v(t)}, {v(b)}, {v(b + 1)}')
                e(f'v_mul_f32 {v(t + 2)}, {v(b)}, {v(b)}')
                for i in range(1, 10):
                    if i > 1:
                        e(f'v_add_f32 {v(t)}, {v(t)}, {v(b + i)}')
                    e(f'v_fmac_f32 {v(t + 2)}, {v(b + i)}, {v(b + i)}')
            e(f'v_permlane32_swap_b32 {v(t)}, {v(t + 2)}')
            e(f'v_add_f32 {v(t + 1)}, {v(t)}, {v(t + 2)}')
            e(f'v_add_f32 {v(t)}, {v(t)}, {v(t + 2)}')
            e(f'v_permlane16_swap_b32 {v(t)}, {v(t + 1)}')
            e(f'v_add_f32 {v(t)}, {v(t)}, {v(t + 1)}')
            e(f'v_add_f32_dpp {v(t)}, {v(t)}, {v(t)} row_ror:8 row_mask:0xf bank_mask:0xf')
            e(f'buffer_store_dword {v(t)}, {v(vP + 2)}, {WS}, s31 offen {st} #x{seq}{h}')
        if h == 0:
            e('s_add_u32 s29, s29, 40960')
            e('s_add_u32 s30, s30, 40960')
            if seq:
                e('s_add_u32 s31, s31, 2048')

    def gate(self, after, at_load, at_check, vpoll, sflag, seq):
        pl = f'buffer_load_dword {v(vT0)}, {v(vpoll)}, {WS}, s{sflag} offen sc1'
        spread(after, [f's_add_u32 s{sVAL}, s{sTAG}, {seq}\n' + pl], at_load)
        spread(after, [self.late_check(pl, f'v_cmp_ne_u32 vcc, s{sVAL}, {v(vT0)}')], at_check)

    def k_load(self, i, nk, areg):
        s, k = divmod(i, nk)
        t = f'buffer_load_dwordx4 {v(areg(i), 4)}, {v(vL16)}, {WS}, s{24 + s} offen offset:{(k % 4) * 1024} sc1'
        return t + (f'\ns_add_u32 s{24 + s}, s{24 + s}, 4096' if k % 4 == 3 and k + 1 < nk else '')

    def chain(self, L):
        e, cfg = self.e, self.cfg
        ring = lambda n: 44 + 4 * (n % 10)
        wo = lambda k, t: v(WO_E + 4 * (5 * k + t), 4) if k < 4 else v(WO_L + 4 * t, 4)
        WB, SB, BQ = 176, 236, 252
        acc = lambda lt, n: (212, 144)[n // 2] + 4 * (3 * (n % 2) + lt)
        wreg = lambda n: WB + (n % 9) * 4
        seq1 = 4 * L + F_X1

        self.poll(28, vPL8, 4 * L + F_O)
        self.stamp(f'p2_{L}_go')
        for i in range(cfg.d2):
            e(self.k_load(i, 5, ring))
        e(f's_mul_i32 s16, s{sSW}, 81920')
        e(f's_add_u32 s16, s16, {self.act(L, X1F_O)}')
        for n in range(1, 4):
            e(f's_add_u32 s{16 + n}, s16, {20480 * n}')
        e(f's_lshl_b32 s20, s{sSW}, 12')
        e(f's_add_u32 s20, s20, {self.act(L, ST1_O)}')
        mf, after = self.k_steps((0, 1), 5, wo, ring), {}
        self.x_weave(after, 0, 25, cfg.kp2)
        spread(after, [self.k_load(i, 5, ring) for i in range(cfg.d2, cfg.d2 + 10)], 0, 5)
        if L == 0:
            rest = self.side(4) + self.w1q
            if rest:
                fill(after, rest, 2, 48)
        self.weave(mf, after)
        more = [self.k_load(i, 5, ring) for i in range(cfg.d2 + 10, 20)]
        for x in self.x_block(1, self.x_adds(0, True) + more) + self.x_adds(0, True):
            e(x)
        self.finish_rows(0, seq1, True)
        self.stamp(f'p2_{L}_a')

        mf, after = self.k_steps((2, 3), 5, wo, ring), {}
        self.x_weave(after, 2, 25, cfg.kp2)
        spread(after, [self.flag_store(32, seq1, vT3, f'x{seq1}0') + '\ns_add_u32 s32, s32, 12288'], cfg.f2)

        def boundary(B, seq, loads, reads, pending=True):
            lab = self.label('gate')
            pl = f'buffer_load_dword {v(vT0)}, {v(vPL32)}, {WS}, s33 offen sc1'
            ck = f'v_cmp_ne_u32 vcc, s{sVAL}, {v(vT0)}'
            pre = self.capture(lambda: self.flag_line(33, 0, sSW))
            spread(after, pre + [f's_add_u32 s{sVAL}, s{sTAG}, {seq}\n' + pl], B - cfg.gl[0 if pending else 1], 0)
            spin = self.capture(lambda: self.spin(pl, ck))
            check = ['s_waitcnt vmcnt(0)', ck, f's_cbranch_vccz {lab}'] + spin + [f'{lab}:', 's_add_u32 s33, s33, 12288']
            n0, n1 = cfg.bl
            cw = cfg.cw[0 if pending else 1]
            other = (self.x_adds(1, True) if pending else []) + reads
            k, mid, pad = -(-len(other) // 5), loads[n0:n1], []
            for t in range(5):
                here = other[k * t:k * t + k]
                if t == cw - 1:
                    here += check + loads[:n0]
                if t >= cw:
                    here = mid[(t - cw) * len(mid) // (5 - cw):(t - cw + 1) * len(mid) // (5 - cw)] + here
                pad.append(here)
            items = (check + loads[:n0] if cw == 0 else []) + self.x_block(3, pad) + (mid if cw == 5 else []) + loads[n1:]
            spread(after, items, B - 1, 0)

        def tail(seq):
            def place(B, cap):
                last = pour(mf, after, self.x_adds(1, False) + self.capture(lambda: self.finish_rows(1, seq, False)), B + 2, B + 70, cap)
                at = last + (cfg.fw[0] if cap < 5 else cfg.fw[1])
                spread(after, [self.flag_store(32, seq, vT3, f'x{seq}1')], at)
                return at
            return place

        B3 = len(mf)
        areg = lambda n: ring(20 + n)

        def load_w(n):
            b, off = lds(LDS_W1 + (n % 60) * 1024)
            return f'ds_read_b128 {v(wreg(n), 4)}, {v(b)} offset:{off}'

        def load_a(n):
            if n >= 80:
                return self.k_load(n - 80, 12, lambda i: areg(80 + i))
            h, r = divmod(n, 40)
            ks, m = divmod(r, 2)
            t = f'buffer_load_dwordx4 {v(areg(n), 4)}, {v(vL16)}, {self.xbuf()}, s{16 + 2 * h + m} offen offset:{(ks % 4) * 1024} sc1'
            return t + (f'\ns_add_u32 s{16 + 2 * h + m}, s{16 + 2 * h + m}, 4096' if ks % 4 == 3 else '')
        for h in range(2):
            for ks in range(20):
                for m in range(2):
                    for lt in range(3):
                        n, wn = 2 * h + m, 60 * h + 3 * ks + lt
                        c = v(acc(lt, n), 4) if ks else '0'
                        pre = ''
                        if lt == 0:
                            regs = [v(areg(40 * h + 2 * ks + m), 4)] + ([v(wreg(wn + q), 4) for q in range(3)] if m == 0 else [])
                            pre = '@need ' + ' '.join(regs) + '\n'
                        mf.append(f'{pre}{M16} {v(acc(lt, n), 4)}, {v(wreg(wn), 4)}, {v(areg(40 * h + 2 * ks + m), 4)}, {c}')
        B4 = len(mf)
        mf += self.k_steps(range(4), 12, lambda k, t: a_(4 * (5 * k + t), 4), lambda i: areg(80 + i))
        DW, D = 5, cfg.d3
        side5 = self.w2_loads(cfg.w2split[5]) if L == 0 else []
        if side5:
            fill(after, side5, 0, 40)
        boundary(B3, seq1, [load_a(n) for n in range(cfg.db)], [load_w(n) for n in range(DW)])

        def addresses():
            e = self.e
            e(f's_mul_i32 s35, s{sSW}, {self.hstride()}')
            e(f's_add_u32 s35, s35, {self.act(L, HF_O)}')
            e(f's_lshr_b32 s34, s{sC}, 1')
            e('s_mul_i32 s34, s34, 3072')
            e('s_add_u32 s35, s35, s34')
            e(f's_lshl_b32 s34, s{sPAR}, 11')
            e('s_add_u32 s34, s34, s35')
            e(f's_lshl_b32 s36, s{sPAR}, 9')
            e('s_add_u32 s35, s35, s36')
            self.flag_line(36, 1, sSW)
            e(f's_lshl_b32 s21, s{sC}, 2')
            e('s_add_u32 s36, s36, s21')
            self.k_addresses(24, 12, self.act(L, HF_O), self.hstride(), 49152)
            e('s_mov_b32 s44, 0')
            e('s_mov_b32 s45, 0xffff0000')

        def bias():
            e = self.e
            e(f's_lshl_b32 s21, s{sKSA}, 6')
            e(f's_lshl_b32 s22, s{sKSS}, 1')
            e(f's_add_u32 s22, s22, s{sPAR}')
            e('s_lshl_b32 s22, s22, 5')
            self.lane_offsets(BQ, vT2, 0, 64, gs=16)
            self.lane_offsets(vBS, vT2, 0, 4, gs=8)
            e(f'buffer_load_dwordx4 {v(BQ, 4)}, {v(BQ)}, {B2}, s21 offen')
            e(f'buffer_load_dword {v(vBS)}, {v(vBS)}, {B2}, s22 offen')

        def bias_add():
            for q in range(10):
                src = BQ + q // 2 if q < 8 else vBS
                self.e(f'v_and_b32 {v(vT2)}, 0xffff0000, {v(src)}' if q % 2 else f'v_lshlrev_b32 {v(vT2)}, 16, {v(src)}')
                for h in range(2):
                    self.e(f'v_add_f32 {v(R + 10 * h + q)}, {v(R + 10 * h + q)}, {v(vT2)}')

        def stats(h):
            e = self.e
            a, b = SB + 8 * h, SB + 8 * h + 4
            self.pair_stats(a, b)
            e(f'v_mul_f32 {v(a + 1)}, {v(a + 1)}, {v(a + 2)}')
            for q in range(3):
                e(f'v_mov_b32 {v(b + q)}, {v(a + q)}')
            for q in range(3):
                e(f'v_permlane16_swap_b32 {v(a + q)}, {v(b + q)}')
            for x in (a, b):
                e(f'v_cndmask_b32 {v(vT2)}, {v(x)}, {v(x + 1)}, s[44:45]')
                self.hi_lo(x, vT2, x + 3)

        def cs():
            e, PK = self.e, KX0
            self.colsum(PK, vT1)
            e(f'v_lshrrev_b32 {v(PK + 1)}, 8, {v(vL16)}')
            for lt in range(3):
                e(f'v_cmp_eq_u32 s[22:23], {lt}, {v(PK + 1)}')
                e(f'v_accvgpr_read_b32 {v(PK + 3)}, {a_(aB1 + lt)}')
                e(f'v_cndmask_b32 {v(PK + 2)}, 0, {v(PK)}, s[22:23]')
                e(f'v_cndmask_b32 {v(PK + 2)}, {v(PK + 2)}, {v(PK + 3)}, s[44:45]')
                e(f'v_accvgpr_write_b32 {a_(aC1 + 2 * lt)}, {v(PK + 2)}')
                e(f'v_accvgpr_write_b32 {a_(aC1 + 2 * lt + 1)}, {v(PK + 2)}')

        def terms(h):
            return [f'{M16H} {v(acc(lt, n), 4)}, {a_(aC1 + 2 * lt, 2)}, {v(SB + 4 * n, 2)}, {v(acc(lt, n), 4)}'
                    for n in (2 * h, 2 * h + 1) for lt in range(3)]

        def finish(h):
            e, st, PK = self.e, self.st, KZ
            for m in range(2):
                n = 2 * h + m
                a = acc(0, n)
                for q in range(6):
                    for z in range(2):
                        x = a + 2 * q + z
                        e(f'v_mul_f32 {v(x)}, {v(x)}, {v(SB + 4 * n + 2)}')
                        e(f'v_mul_f32 {v(x)}, {v(x)}, abs({v(x)})')
                    dst = PK + 4 * m + q if q < 4 else PK + 8 + 2 * m + q - 4
                    e(f'v_cvt_pk_bf16_f32 {v(dst)}, {v(a + 2 * q)}, {v(a + 2 * q + 1)}')
                    e(f'v_pk_max_i16 {v(dst)}, {v(dst)}, 0')
                    if q == 3:
                        e(f'buffer_store_dwordx4 {v(PK + 4 * m, 4)}, {v(vL16)}, {WS}, s34 offen {st} #h{h}{L}')
                        e('s_add_u32 s34, s34, 49152')
            e(f'v_permlane16_swap_b32 {v(PK + 8)}, {v(PK + 10)}')
            e(f'v_permlane16_swap_b32 {v(PK + 9)}, {v(PK + 11)}')
            e(f'buffer_store_dwordx4 {v(PK + 8, 4)}, {v(vHS)}, {WS}, s35 offen offset:1024 {st} #h{h}{L}')
            e('s_add_u32 s35, s35, 98304')

        spread(after, [load_w(n) for n in range(DW, 120)], B3 + 1, 2)
        g3 = B3 + cfg.g3b[1]
        self.gate(after, B3 + cfg.g3b[0], g3, vPL32, 33, seq1)
        self.gate(after, B3 + cfg.ga[0], B3 + cfg.ga[1], vPL8, 28, 4 * L + F_H)
        spread(after, ['s_add_u32 s28, s28, 4096'], B3 + cfg.ga[1])
        self.gate(after, B3 + cfg.gb[0], B3 + cfg.gb[1], vPL8, 28, 4 * L + F_H)
        need = lambda n: B3 + (3 * n if n < 80 else 240 + 5 * (n - 80))
        for n in range(cfg.db, 128):
            at = max(need(max(n - D, 0)), need(n - 10) + 2 if n - 10 < 80 else need(n - 10) + 4) if n >= 10 else need(0)
            for first, g in ((40, g3), (80, B3 + cfg.ga[1]), (104, B3 + cfg.gb[1])):
                if n >= first:
                    at = max(at, g + n - first)
            assert at < need(n)
            spread(after, [load_a(n)], at)
        st_ld = [f'buffer_load_dwordx4 {v(SB + 4 * n, 4)}, {v(vSTL)}, {WS}, s20 offen offset:{1024 * n} sc1' for n in range(4)]
        spread(after, st_ld[:2], B3 + 14, 6)
        spread(after, st_ld[2:], g3 + 14, 6)
        spread(after, [self.flag_store(36, 4 * L + F_H, vT3, f'h0{L}') + '\ns_add_u32 s36, s36, 4096'], B3 + cfg.fa[2])
        spread(after, [self.flag_store(36, 4 * L + F_H, vT3, f'h1{L}')], B3 + cfg.fb[2])
        seq4 = 0 if L else 4 + F_X
        for s in range(3):
            self.x_weave(after, s, B4 + 60 * (s + 1), cfg.kp4)
        spread(after, terms(0), B3 + cfg.fa[0] - 2, 1, 3)
        spread(after, terms(1), B3 + cfg.fb[0] - 2, 1, 3)
        last = tail(seq1)(B3, cfg.cap3)
        assert last < g3 - 8, (last, g3)
        if L == 0:
            spread(after, ['s_barrier\n' + self.colsum_dma(CS1, 22, vT1, 'cs1')], B3 + 24)
            rest = self.w2_loads(60)
            if rest:
                fill(after, rest, B3 + cfg.w2r[0], B3 + cfg.w2r[1])
            spread(after, ['@wait cs1\ns_barrier'], B3 + 70)
            g3s = B3 + cfg.g3[0]
            assert cfg.w2r[1] < cfg.g3[0] and cfg.g3[2] < cfg.fb[0]
            spread(after, [f's_add_u32 s22, s{sTAG}, {SEQ_G3}\n' + '\n'.join(f'v_mov_b32 {v(KX1 + 4 + q)}, s22' for q in range(4)) +
                           f'\ns_cmp_eq_u32 s{sW}, 0\ns_cselect_b32 s22, 0, {OOB}\nv_add_u32 {v(KX1 + 8)}, s22, {v(vL16)}\n'
                           f's_lshl_b32 s22, s2, 7\ns_add_u32 s22, s22, {G3}\n@need {a_(0, 240)}\ns_barrier\ns_mov_b64 exec, 0xff\n'
                           f'buffer_store_dwordx4 {v(KX1 + 4, 4)}, {v(KX1 + 8)}, {WS}, s22 offen sc1\ns_mov_b64 exec, -1'], g3s)
            spread(after, [f'v_bfe_u32 {v(KX1 + 9)}, {v(vL16)}, 7, 2\nv_lshl_add_u32 {v(KX1 + 9)}, {v(KX1 + 9)}, 3, s{sSET}\n'
                           f'v_mov_b32 {v(KX1 + 10)}, s{sSW}\nv_cmp_gt_u32 vcc, 512, {v(vL16)}\n'
                           f'v_cndmask_b32 {v(KX1 + 9)}, {v(KX1 + 10)}, {v(KX1 + 9)}, vcc\n'
                           f'v_and_b32 {v(KX1 + 10)}, 0x70, {v(vL16)}\nv_lshlrev_b32 {v(KX1 + 10)}, 3, {v(KX1 + 10)}\n'
                           f'v_lshl_add_u32 {v(KX1 + 9)}, {v(KX1 + 9)}, 10, {v(KX1 + 10)}\ns_mov_b32 s46, {G3}'], g3s + 2)
            self.gate(after, B3 + cfg.g3[1], B3 + cfg.g3[2], KX1 + 9, 46, SEQ_G3)
        a_end = pour(mf, after, self.capture(addresses), B3 + 26, B3 + 70, cfg.cap3 + 0.5)
        if L == 0 and 'h' in cfg.tl:
            for h in range(2):
                spread(after, [f'buffer_load_dwordx2 {v(KX1, 2)}, {v(vL16)}, {WS}, s34 offen sc1',
                               f's_add_u32 s23, s34, 49152\nbuffer_load_dwordx2 {v(KX1, 2)}, {v(vL16)}, {WS}, s23 offen sc1',
                               f'buffer_load_dwordx2 {v(KX1, 2)}, {v(vHS)}, {WS}, s35 offen offset:1024 sc1'],
                       B3 + (cfg.tch[0] if h == 0 else cfg.tch[1]), 2)
            assert a_end < B3 + cfg.tch[0] and cfg.tch[0] + 4 < 71 + 9 and cfg.tch[1] >= cfg.fa[1]
        pour(mf, after, (self.capture(cs) if L == 0 else []) + self.capture(lambda: stats(0)), B3 + 80, B3 + cfg.fa[0] - 3, cfg.cap3)
        pour(mf, after, self.capture(lambda: finish(0)), B3 + cfg.fa[0] + 2, B3 + cfg.fa[1], cfg.cap3)
        more = self.capture(bias) + self.capture(lambda: stats(1))
        more += self.capture(lambda: self.tile_addresses('row' if L else 'x', 1, 29, vP, vT2)) + self.capture(bias_add)
        pour(mf, after, more, max(B3 + cfg.fa[1], last + 1), B3 + 238, cfg.cap3)
        pour(mf, after, self.capture(lambda: finish(1)), B3 + cfg.fb[0] + 2, B3 + cfg.fb[1], 2)
        r1 = cfg.kp4[1] + 9
        pour(mf, after, self.x_adds(0, False), B4 + 60 + r1, B4 + 120, 2)
        fin = pour(mf, after, self.x_adds(0, False) + self.capture(lambda: self.finish_rows(0, seq4, False)),
                   B4 + 120 + r1, B4 + cfg.f4[0], 2)
        assert fin < B4 + 180 + cfg.kp4[1]
        if seq4:
            spread(after, [self.flag_store(32, seq4, vT3, f'x{seq4}0') + '\ns_add_u32 s32, s32, 12288'], B4 + cfg.f4[1])
        pour(mf, after, self.x_adds(1, False), B4 + 180 + r1, B4 + 239, 2)
        if L == 0 and cfg.code2:
            pc = self.label('pc')
            spread(after, [f's_getpc_b64 s[22:23]\n{pc}:\ns_lshl_b32 s21, s{sC}, 2\ns_add_u32 s21, s21, s{sW}\ns_lshl_b32 s21, s21, 8\n'
                           f'v_lshl_add_u32 {v(vT2)}, {v(vL16)}, 3, s21\nv_min_u32 {v(vT2)}, {self.end_label}-{pc}, {v(vT2)}\n'
                           f's_mov_b64 exec, 3\nglobal_load_dword {v(vT2)}, {v(vT2)}, s[22:23]\ns_mov_b64 exec, -1'], B3 + cfg.code2)
        for g in ((B3 - 1, B3 + 119, B4 - 1, B4 + 119) if cfg.fine < 0 else cfg.fg if L + 2 == cfg.fine else ()):
            spread(after, self.capture(lambda: self.stamp(f'c_{L}_g{g}')), g, 0)
        if L == 0:
            spread(after, self.capture(lambda: self.stamp(f'p4_{L}_gemm')), B4 + 238, 0)
            self.p1(1, (mf, after, lambda B, seq, loads, reads: boundary(B, seq, loads, reads, False), tail(seq4)))
            return
        self.weave(mf, after)
        self.stamp(f'p4_{L}_gemm')
        for x in self.x_block(3, []) + self.x_adds(1, True):
            e(x)
        self.finish_rows(1, 0, True)
        self.stamp(f'p4_{L}_end')

    def body(self):
        e = self.e
        self.p1(0)
        self.chain(0)
        self.chain(1)
        e(f's_add_u32 s{sVAL}, s{sTAG}, 16')
        e(f'v_mov_b32 {v(vT0)}, s{sVAL}')
        e(f's_mov_b32 s16, {EPOCH}')
        e(f's_or_b32 s17, s2, s{sW}')
        e('s_cmp_eq_u32 s17, 0')
        e(f's_cselect_b32 s17, 0, {OOB}')
        e(f'v_mov_b32 {v(vT1)}, s17')
        e('s_mov_b64 exec, 1')
        e(f'buffer_store_dword {v(vT0)}, {v(vT1)}, {WS}, s16 offen sc1')
        e('s_mov_b64 exec, -1')
        if self.cfg.diag:
            lab = self.label('diag')
            e(f'{lab}:')
            e('s_memrealtime s[62:63]')
            e('s_waitcnt lgkmcnt(0)')
            e('s_sub_u32 s62, s62, s100')
            e(f's_cmp_lt_u32 s62, {self.cfg.diag}')
            e(f's_cbranch_scc1 {lab}')
        if self.stamping:
            e('s_waitcnt vmcnt(0)')
            self.stamp('done')
            e('s_memrealtime s[62:63]')
            e('s_waitcnt lgkmcnt(0)')
            e('s_mov_b32 s101, s62')
            e('s_lshl_b32 s16, s2, 2')
            e(f's_add_u32 s16, s16, s{sW}')
            e('s_lshl_b32 s16, s16, 8')
            e(f's_add_u32 s16, s16, {STAMP}')
            for i in range(38):
                e(f'v_mov_b32 {v(44 + i)}, s{sSTAMP + i}')
            e('s_mov_b64 exec, 1')
            for i in range(10):
                e(f'buffer_store_dwordx4 {v(44 + 4 * i, 4)}, {v(vL16)}, {WS}, s16 offen offset:{16 * i}')
        e('s_endpgm')
        tails, self.tails = self.tails, []
        for t in tails:
            e.reset()
            e.extend(t)

    def build(self):
        e, cfg = self.e, self.cfg
        self.prologue()
        self.st, self.end_label = ('sc1' if cfg.force_slow else ''), 'Lfast_end'
        self.body()
        e('Lfast_end:')
        e('Lend:')
        e('s_endpgm')
        if cfg.both:
            e.reset()
            e('Lslow:')
            self.st, self.stamping, self.end_label = 'sc1', False, 'Lslow_end'
            self.body()
            e('Lslow_end:')
            e('s_endpgm')
        txt = f'; @launch grid=(256,1,1) block=(256,1,1) lds={LDS_TOTAL}\n'
        txt += '.amdgcn_target "amdgcn-amd-amdhsa--gfx950"\n.text\n' + re.sub(r'; gap \d+\n', '', e.finalize()).replace(' offset:0', '').replace('    ', ' ')
        txt += f""".section .rodata,"a"
.p2align 6
.amdhsa_kernel {NAME}_kernel
  .amdhsa_next_free_vgpr 512
  .amdhsa_next_free_sgpr 102
  .amdhsa_accum_offset 256
  .amdhsa_group_segment_fixed_size 0
  .amdhsa_kernarg_size 96
  .amdhsa_user_sgpr_count 2
  .amdhsa_user_sgpr_kernarg_segment_ptr 1
  .amdhsa_system_sgpr_workgroup_id_x 1
.end_amdhsa_kernel
"""
        return txt


def parse_cfg(args):
    cfg = Cfg()
    for a in args:
        if '=' in a:
            k, val = a.split('=')
            assert hasattr(cfg, k), k
            setattr(cfg, k, val if isinstance(getattr(cfg, k), str) else eval(val))
    return cfg


def build(cfg):
    g = Gen(cfg)
    return g.build(), g.e, g


if __name__ == '__main__':
    txt, e, g = build(parse_cfg(sys.argv[2:]))
    open(sys.argv[1], 'w').write(txt)
    print('instructions', len(e.ins), e.stats, 'bytes', len(txt), 'pending at labels:', e.pending)
```

```python
import re, sys
from asmlib import *
from layout import *

NAME = 'interleave_layers__linear_kernel_hedgehog__dense_activation_squared_relu__prompt'
M32 = 'v_mfma_f32_32x32x16_bf16'
M32H = 'v_mfma_f32_32x32x8_bf16'
M16 = 'v_mfma_f32_16x16x32_bf16'
M16H = 'v_mfma_f32_16x16x16_bf16'

P_X, P_WQKV, P_WPHI, P_WO, P_BX, P_W1, P_B1, P_W2, P_B2, P_OUT, P_DBG, P_WS = [64 + 2 * i for i in range(12)]
S_WS, S_OUT, S_B2, S_W1, S_WQKV, S_WPHI, S_WO, S_B1, S_W2, S_X = range(4, 44, 4)
WS, OUT, B2 = s_(S_WS, 4), s_(S_OUT, 4), s_(S_B2, 4)
sW = 3
sSET, sC, sGI, sJ, sTAG, sSG, sSW, sCNT, sVAL, sKSA, sKSS, sPAR, sLO, sHI = range(48, 62)
sSTAMP = 64
STAMP_SKIP = ('consts', 'nc_iss')

vL16, vB2, vB3, vWE, vWO, vRA, vRS, vHS, vOM, vOR, vKVS, vKVL, vT0, vT1, vT2, vT3 = range(16)
vSTL = vL16
R = 16
PA, PB = 36, 40
A00, A01, A10, A11 = 44, 60, 76, 92
E, D16, KV1, CB, SP, STT = 108, 128, 144, 160, 164, 168
WO_E, WO_L = 176, 144
KX0, KX1, KZ = 84, 104, 124
vP, vPL8, vPL32, vBS = 168, 171, 172, 173
aCQ, aC1, aB1 = 240, 244, 250
LOG2E, INV640, EPS_LN, EPS_DEN = 0x3fb8aa3b, 0x3acccccd, 0x3727c5ac, 0x358637bd
EXO = LDS_EX - 131072
SEQ_G1, SEQ_G2, SEQ_G3, SEQ_KV = 11, 12, 13, 9
F_X, F_O, F_X1, F_H = range(4)
vXG, vXL, XB = R, R + 4, 49152
sXG, sXL = 44, 45
sRB, sHD = sCNT, sVAL
NCF, vG2 = 184, 205
KVS = 768


class Cfg:
    stamps = False
    rt = False
    alias = True
    force_slow = False
    both = True
    d1 = 7
    d1x = 10
    d2 = 5
    d3 = 7
    w2split = (8, 8, 8, 8, 8, 12)
    wb = 0
    drop = ''
    kp2 = ((2, 6, 8, 11, 13), 18)
    kp4 = ((2, 6, 11, 13, 17), 22)
    f2 = 24
    gl = (4, 12)
    warm = True
    rese = True
    tl = 'oh'
    te = 'a'
    tat = 120
    nt1 = ''
    nt2 = ''
    ntq = ''
    cw = (4, 0)
    db = 10
    bl = (2, 7)
    fw = (16, 10)
    g3b = (84, 98)
    g1b = (52, 64)
    f4 = (184, 204)
    tch = (71, 190)
    qa = False
    cap1 = 6.5
    cap3 = 3.5
    wo1 = 16
    tlb = False
    wlead = 8
    xstep = 12
    wo0 = 10
    w2r = (30, 100)
    rg = False
    g3 = (121, 224, 238)
    ntt = ''
    w1split = (3, 2, 2, 2, 6, 0)
    g2 = (104, 122)
    gat = (20, 20)
    hs = ''
    os = ''
    code2 = 300
    fine = -1
    fg = (0, 60, 119, 180, 239, 270, 299, 359, 419)
    skip = ''
    nt = 'nt'
    ntx = ''
    late = False
    reord = False
    outa = True
    prew = False
    xe = (0, 0)
    xpre = (3, 10)
    nc_at = 130
    diag = 0
    diag_at = 'start'
    fa = (123, 165, 180)
    ga = (200, 218)
    fb = (242, 290, 303)
    gb = (322, 338)


def lds(off):
    return (vL16, vB2, vB3)[off >> 16], off & 0xffff


def spread(after, items, start, step=1, per=1):
    for n, x in enumerate(items):
        after.setdefault(start + (n // per) * step, []).append(x)


def fill(after, items, start, end):
    n = len(items)
    for k, x in enumerate(items):
        after.setdefault(start + k * (end - start) // n, []).append(x)


def cost(x):
    n = 0
    for t in ([x.text] if isinstance(x, Ins) else x.split('\n')):
        t = t.strip()
        if t.endswith(':') or t.startswith('; gap'):
            continue
        if t.startswith('v_mfma'):
            continue
        elif t.startswith(('ds_write_b128', 'buffer_store_dwordx4')):
            n += 5
        elif t.startswith('ds_write_b64'):
            n += 3
        elif t.startswith(TRANS) or 'permlane' in t or t.startswith(('ds_write', 'buffer_store')):
            n += 2
        else:
            n += 1
    return n


def pour(mf, after, items, start, end, cap):
    base = {g: sum(cost(x) for x in after.get(g, ())) + (g + 1 < len(mf) and str(mf[g + 1]).startswith('@need'))
            for g in range(start, end)}
    c = cap
    while True:
        load, g, place, prev_mfma = dict(base), start, [], False
        for x in items:
            if isinstance(x, Ins) and x.text.startswith('; gap'):
                g += int(x.text.split()[-1])
                place.append(min(g, end - 1))
                continue
            if isinstance(x, Ins) and x.cls == 'mfma':
                g += prev_mfma
                prev_mfma = True
                if g >= end:
                    break
                load[g] = 0
                place.append(g)
                continue
            prev_mfma = False
            k = cost(x)
            while g < end and load[g] + k > int(c * (g + 1)) - int(c * g) and not (load[g] <= 0):
                g += 1
            if g >= end:
                break
            load[g] += k
            place.append(g)
        else:
            for g, x in zip(place, items):
                after.setdefault(g, []).append(x)
            return place[-1]
        c += 0.125


class Gen:
    def __init__(self, cfg):
        self.e, self.cfg = Asm(), cfg
        self.nstamp, self.nlab, self.stamp_names, self.tails = 0, 0, [], []
        self.st, self.stamping = '', cfg.stamps

    def act(self, L, off):
        if self.cfg.alias and self.cfg.outa and off in (XF_O, X1F_O):
            return 0
        if self.cfg.alias and self.cfg.rg and off in (OF_O, HF_O):
            return RG
        if self.cfg.alias:
            return ACT + {XF_O: XF_O, X1F_O: XF_O, OF_O: HF_O, HF_O: HF_O, ST_O: ST_O, ST1_O: ST_O}[off]
        return ACT + L * ACT_STRIDE + off

    def xbuf(self):
        return OUT if self.cfg.outa and self.cfg.alias else WS

    def ostride(self):
        return self.hstride() if self.cfg.alias else 81920

    def hstride(self):
        return RSTR if self.cfg.alias and self.cfg.rg else 196608

    def stamp(self, name):
        if self.cfg.diag and name == self.cfg.diag_at:
            self.e('s_memrealtime s[100:101]')
            self.e('s_waitcnt lgkmcnt(0)')
        if not self.stamping or name in STAMP_SKIP or (self.cfg.skip and self.cfg.skip in name) or (self.cfg.skip == 'all' and name != 'done'):
            return
        e = self.e
        e(('s_memrealtime' if self.cfg.rt else 's_memtime') + ' s[62:63]')
        e('s_waitcnt lgkmcnt(0)')
        e(f's_mov_b32 s{sSTAMP + self.nstamp}, s62')
        self.stamp_names.append(name)
        self.nstamp += 1
        assert self.nstamp <= 36

    def label(self, base):
        self.nlab += 1
        return f'L{base}_{self.nlab}'

    def srd(self, d, p, nbytes):
        e = self.e
        e(f's_mov_b32 s{d}, s{p}')
        e(f's_and_b32 s{d + 1}, s{p + 1}, 0xffff')
        e(f's_mov_b32 s{d + 2}, {nbytes}')
        e(f's_mov_b32 s{d + 3}, 0x20000')

    def sdiv(self, q, r, x, d):
        e = self.e
        e(f's_mul_i32 s{q}, s{x}, {(1 << 16) // d + 1}')
        e(f's_lshr_b32 s{q}, s{q}, 16')
        e(f's_mul_i32 s{r}, s{q}, {d}')
        e(f's_sub_u32 s{r}, s{x}, s{r}')

    def capture(self, fn):
        keep, self.e = self.e, Asm()
        fn()
        out, self.e = self.e.ins, keep
        return out

    def weave(self, main, after):
        for i, m in enumerate(main):
            self.e(m)
            for x in after.pop(i, ()):
                self.e(x)
        assert not after, sorted(after)

    def flag_line(self, d, line, sidx):
        self.e(f's_lshl_b32 s{d}, s{sidx}, 7')
        self.e(f's_add_u32 s{d}, s{d}, {FL + line * 4096}')

    def spin(self, load, check):
        e, lab = self.e, self.label('poll')
        e(f's_mov_b32 s{sCNT}, 0')
        e(f'{lab}:')
        e(load)
        e(f's_add_u32 s{sCNT}, s{sCNT}, 1')
        e(f's_cmp_gt_u32 s{sCNT}, 0x80000')
        e('s_cbranch_scc1 Lend')
        e('s_waitcnt vmcnt(0)')
        e(check)
        e(f's_cbranch_vccnz {lab}')

    def late_check(self, load, check):
        out, back = self.label('retry'), self.label('back')

        def tail():
            self.e(f'{out}:')
            self.e('s_nop 7')
            self.e('s_nop 3')
            self.spin(load, check)
            self.e(f's_branch {back}')
        self.tails.append(self.capture(tail))
        return check + f'\ns_cbranch_vccnz {out}\n{back}:'

    def poll(self, sflag, vpoll, seq):
        self.e(f's_add_u32 s{sVAL}, s{sTAG}, {seq}')
        self.spin(f'buffer_load_dword {v(vT0)}, {v(vpoll)}, {WS}, s{sflag} offen sc1',
                  f'v_cmp_ne_u32 vcc, s{sVAL}, {v(vT0)}')

    def flag_store(self, sflag, seq, t, tag):
        return (f'v_mov_b32 {v(t)}, {seq}\nv_add_u32 {v(t)}, s{sTAG}, {v(t)}\n@wait {tag}\ns_mov_b64 exec, 1\n'
                f'buffer_store_dword {v(t)}, {v(vL16)}, {WS}, s{sflag} offen {self.st}\ns_mov_b64 exec, -1')

    def unpack(self, dst, src, n):
        for i in range(n):
            self.e(f'v_lshlrev_b32 {v(dst + 2 * i)}, 16, {v(src + i)}')
            self.e(f'v_and_b32 {v(dst + 2 * i + 1)}, 0xffff0000, {v(src + i)}')

    def hi_lo(self, dst, x, t):
        e = self.e
        e(f'v_cvt_pk_bf16_f32 {v(dst)}, {v(x)}, {v(x)}')
        e(f'v_lshlrev_b32 {v(t)}, 16, {v(dst)}')
        e(f'v_sub_f32 {v(t)}, {v(x)}, {v(t)}')
        e(f'v_cvt_pk_bf16_f32 {v(dst + 1)}, {v(t)}, {v(t)}')

    def pair_stats(self, a, b):
        e = self.e
        for q in range(1, 4):
            e(f'v_add_f32 {v(a)}, {v(a)}, {v(a + q)}')
            e(f'v_add_f32 {v(b)}, {v(b)}, {v(b + q)}')
        e(f'v_permlane16_swap_b32 {v(a)}, {v(b)}')
        e(f'v_add_f32 {v(a)}, {v(a)}, {v(b)}')
        e(f'v_mov_b32 {v(a + 1)}, {v(a)}')
        e(f'v_permlane32_swap_b32 {v(a)}, {v(a + 1)}')
        e(f'v_mul_f32 {v(a)}, {hex(INV640 | 0x80000000)}, {v(a)}')
        e(f'v_mul_f32 {v(a + 1)}, {hex(INV640)}, {v(a + 1)}')
        e(f'v_fma_f32 {v(a + 1)}, -{v(a)}, {v(a)}, {v(a + 1)}')
        e(f'v_max_f32 {v(a + 1)}, 0, {v(a + 1)}')
        e(f'v_add_f32 {v(a + 1)}, {hex(EPS_LN)}, {v(a + 1)}')
        e(f'v_rsq_f32 {v(a + 2)}, {v(a + 1)}')

    def colsum(self, t, addr):
        e = self.e
        e(f'v_lshrrev_b32 {v(addr)}, 2, {v(vL16)}')
        e(f'v_add_u32 {v(addr)}, {LDS_EX}, {v(addr)}')
        for h in range(2):
            for q in range(4 if h else 5):
                e(f'ds_read2st64_b32 {v(t + 2 * q + 2 * h, 2)}, {v(addr)} offset0:{10 * h + 2 * q} offset1:{10 * h + 2 * q + 1}')
            for q in range(2 if h else 1, 10):
                e(f'v_add_f32 {v(t)}, {v(t)}, {v(t + q)}')
        e(f'ds_read2st64_b32 {v(t + 2, 2)}, {v(addr)} offset0:18 offset1:19')
        e(f'v_add_f32 {v(t)}, {v(t)}, {v(t + 2)}')
        e(f'v_add_f32 {v(t)}, {v(t)}, {v(t + 3)}')
        e(f'v_cvt_pk_bf16_f32 {v(t + 1)}, {v(t)}, {v(t)}')
        e(f'v_lshlrev_b32 {v(t + 1)}, 16, {v(t + 1)}')
        e(f'v_sub_f32 {v(t + 2)}, {v(t)}, {v(t + 1)}')
        e(f'v_cvt_pk_bf16_f32 {v(t)}, {v(t + 1)}, {v(t + 2)}')

    def colsum_dma(self, base, s0, t, tag):
        return (f's_mul_i32 s{s0}, s{sC}, 5120\ns_mul_i32 s{s0 + 1}, s{sW}, 1280\ns_add_u32 s{s0}, s{s0}, s{s0 + 1}\n'
                f's_add_u32 s{s0}, s{s0}, {base}\ns_add_u32 m0, s{s0 + 1}, {LDS_EX}\n'
                f'v_lshrrev_b32 {v(t)}, 2, {v(vL16)}\n'
                f'buffer_load_dwordx4 {v(vL16)}, {WS}, s{s0} offen sc1 lds #{tag}\n'
                f'buffer_load_dword {v(t)}, {WS}, s{s0} offen offset:1024 sc1 lds #{tag}')

    def lane_offsets(self, dst, t, ms, hs, gs=None, g1=None, g2=None):
        e = self.e
        e(f'v_bfe_u32 {v(dst)}, {v(vL16)}, 4, 3')
        e(f'v_mul_u32_u24 {v(dst)}, {ms}, {v(dst)}')
        parts = [(7, 1, hs)] + ([(8, 2, gs)] if gs else [(8, 1, g1), (9, 1, g2)])
        for pos, width, mul in parts:
            e(f'v_bfe_u32 {v(t)}, {v(vL16)}, {pos}, {width}')
            e(f'v_lshl_add_u32 {v(dst)}, {v(t)}, {mul.bit_length() - 1}, {v(dst)}')

    def tile_addresses(self, kind, L, d, vp, t):
        e = self.e
        e(f's_mul_i32 s{d}, s{sSG}, 81920')
        e(f's_lshl_b32 s{d + 1}, s{sKSS}, 1')
        e(f's_add_u32 s{d + 1}, s{d + 1}, s{sPAR}')
        if kind == 'row':
            e(f's_mul_i32 s62, s{sW}, 10240')
            shift = (6, 5)
            self.lane_offsets(vp, t, 1280, 64, gs=16)
            self.lane_offsets(vp + 1, t, 1280, 4, gs=8)
        elif kind == 'x1':
            e(f's_lshr_b32 s62, s{sW}, 1')
            e('s_mul_i32 s62, s62, 20224')
            e(f's_lshl_b32 s63, s{sW}, 7')
            e('s_add_u32 s62, s62, s63')
            e(f's_add_u32 s62, s62, {self.act(L, X1F_O)}')
            shift = (10, 9)
            self.lane_offsets(vp, t, 16, 1024, gs=256)
            self.lane_offsets(vp + 1, t, 16, 4, g1=8, g2=256)
        else:
            e(f's_lshl_b32 s62, s{sW}, 7')
            e(f's_add_u32 s62, s62, {self.act(L, XF_O)}')
            shift = (11, 10)
            self.lane_offsets(vp, t, 16, 2048, gs=512)
            self.lane_offsets(vp + 1, t, 16, 4, g1=8, g2=512)
        e(f's_add_u32 s{d}, s{d}, s62')
        e(f's_lshl_b32 s{d + 1}, s{d + 1}, {shift[1]}')
        e(f's_add_u32 s{d + 1}, s{d + 1}, s{d}')
        e(f's_lshl_b32 s62, s{sKSA}, {shift[0]}')
        e(f's_add_u32 s{d}, s{d}, s62')
        if kind == 'row':
            return
        self.lane_offsets(vp + 2, t, 16, 1 << 30, g1=1 << 29, g2=512)
        e(f's_lshl_b32 s{d + 2}, s{sSG}, 2')
        e(f's_lshr_b32 s62, s{sW}, 1')
        e(f's_add_u32 s{d + 2}, s{d + 2}, s62')
        e(f's_lshl_b32 s{d + 2}, s{d + 2}, 2')
        e(f's_lshr_b32 s62, s{sJ}, 2')
        e(f's_add_u32 s{d + 2}, s{d + 2}, s62')
        e(f's_lshl_b32 s{d + 2}, s{d + 2}, 1')
        e(f's_and_b32 s62, s{sW}, 1')
        e(f's_add_u32 s{d + 2}, s{d + 2}, s62')
        e(f's_lshl_b32 s{d + 2}, s{d + 2}, 5')
        e(f's_and_b32 s62, s{sJ}, 3')
        e(f's_add_u32 s{d + 2}, s{d + 2}, s62')
        e(f's_lshl_b32 s{d + 2}, s{d + 2}, 2')
        e(f's_add_u32 s{d + 2}, s{d + 2}, {self.act(L, ST1_O if kind == "x1" else ST_O)}')
        e(f's_lshl_b32 s{d + 3}, s{sSG}, 3')
        e(f's_add_u32 s{d + 3}, s{d + 3}, s{sJ}')
        e(f's_lshl_b32 s{d + 3}, s{d + 3}, 2')
        e(f's_add_u32 s{d + 3}, s{d + 3}, s{sW}')
        e(f's_lshl_b32 s{d + 3}, s{d + 3}, 2')
        e(f's_add_u32 s{d + 3}, s{d + 3}, {FL}')

    def x_slot(self, u):
        n0, n1 = self.cfg.xpre
        return u if u < n0 else (u - n0 if u < n1 else 2 + (u - n1) % 3)

    def x_dma(self, u):
        kq, mt = divmod(u, 2)
        pre = f's_add_u32 s46, s{sXG}, {40960 * mt + 128 * kq}\n'
        m0 = f's_add_u32 m0, s{sXL}, {16384 * self.x_slot(u)}\n'
        return [(pre if i == 0 else '') + m0 +
                f'buffer_load_dwordx4 {v(vXG + i)}, {s_(S_X, 4)}, s46 offen offset:{1024 * i} lds #xa{u}' for i in range(4)]

    def x_reg(self, ks, mt):
        return 4 * ((2 * ks + mt) % 60)

    def x_read(self, u, wait=True):
        kq, mt = divmod(u, 2)
        sl = self.x_slot(u)
        t = [f'ds_read_b128 {a_(self.x_reg(4 * kq + q, mt), 4)}, {v(vXL + q + 4 * (sl // 4))} offset:{16384 * (sl % 4)}' for q in range(4)]
        if wait:
            t[0] = f'@wait xa{u}\n' + t[0]
        return t

    def x_done(self, u):
        kq, mt = divmod(u, 2)
        return f'@need {a_(self.x_reg(4 * kq + 3, mt), 4)}'

    def prologue(self):
        e, cfg = self.e, self.cfg
        name = NAME + '_kernel'
        nt = cfg.nt
        RQ, RS, R1, R2, RO = 0, 17408, 18432, 30720, 38912
        e(f'.globl {name}\n.p2align 8\n.type {name},@function\n{name}:')
        e('s_cmp_ge_u32 s2, 256')
        e('s_cbranch_scc1 Lend')
        e('s_getpc_b64 s[44:45]')
        e('Lpc:')
        e('s_load_dwordx16 s[64:79], s[0:1], 0')
        e('s_load_dwordx8 s[80:87], s[0:1], 64')
        if cfg.diag:
            e('s_memrealtime s[100:101]')
        if cfg.stamps:
            e('s_memrealtime s[100:101]')
            e(('s_memrealtime' if cfg.rt else 's_memtime') + ' s[98:99]')
        e(f's_lshr_b32 s{sC}, s2, 3')
        e('v_lshrrev_b32 v44, 6, v0')
        e('v_and_b32 v45, 3, v0')
        e('v_lshl_add_u32 v45, v44, 2, v45')
        e(f's_lshl_b32 s46, s{sC}, 4')
        e('v_add_u32 v45, s46, v45')
        e('v_lshlrev_b32 v45, 7, v45')
        e('v_min_u32 v45, Lfast_end-Lpc, v45')
        e('s_mov_b64 exec, 15')
        e('global_load_dword v46, v45, s[44:45]')
        e('s_mov_b64 exec, -1')
        e(f'v_readfirstlane_b32 s{sW}, v44')
        LANE, M16_, G4, M32_, G2 = 47, 48, 49, 50, 51
        e(f'v_and_b32 {v(LANE)}, 63, v0')
        e(f'v_and_b32 {v(M32_)}, 31, v0')
        e(f'v_bfe_u32 {v(G2)}, v0, 5, 1')
        e(f's_and_b32 s{sSET}, s2, 7')
        e(f'v_mul_u32_u24 v52, 205, {v(LANE)}')
        e('v_lshrrev_b32 v52, 11, v52')
        e('v_mul_u32_u24 v53, 1120, v52')
        e(f'v_lshl_add_u32 v53, {v(LANE)}, 4, v53')
        e('s_cmp_lt_u32 s2, 160')
        e(f's_cselect_b32 s88, 0, {OOB}')
        e(f'v_mov_b32 v54, {OOB}')
        e(f'v_cmp_gt_u32 vcc, 60, {v(LANE)}')
        e('v_add_u32 v53, s88, v53')
        e('v_cndmask_b32 v53, v54, v53, vcc')
        e(f's_mul_i32 s{sRB}, s{sSET}, 20')
        e(f's_add_u32 s{sRB}, s{sRB}, s{sC}')
        e(f's_and_b32 s{sHD}, s{sRB}, 7')
        e(f's_lshr_b32 s{sRB}, s{sRB}, 3')
        e(f's_lshl_b32 s89, s{sRB}, 2')
        e(f's_add_u32 s89, s89, s{sW}')
        e(f's_mul_i32 s89, s89, {8 * 3840}')
        e(f's_mul_i32 s90, s{sHD}, 160')
        e('s_add_u32 s89, s89, s90')
        e(f's_lshl_b32 s{sHD}, s{sHD}, 2')
        e(f's_add_u32 s{sHD}, s{sHD}, s{sW}')
        e(f's_mul_i32 s90, s{sW}, 4160')
        e(f'v_and_b32 v55, 7, {v(LANE)}')
        e(f'v_lshrrev_b32 v56, 3, {v(LANE)}')
        e('v_mul_u32_u24 v63, 1280, v56')
        e('v_lshl_add_u32 v57, v55, 4, v63')
        e(f's_lshl_b32 s93, s{sSET}, 5')
        e(f's_add_u32 s93, s93, s{sC}')
        e('s_mul_i32 s94, s93, 10240')
        e(f's_lshl_b32 s95, s{sW}, 7')
        e('s_add_u32 s94, s94, s95')
        e(f's_cmp_lt_u32 s{sW}, 2')
        e(f's_cselect_b32 s95, 0, {OOB}')
        e('v_add_u32 v58, s95, v57')
        e(f'v_and_b32 v59, 19, {v(M32_)}')
        e(f'v_bfe_u32 v60, {v(M32_)}, 2, 1')
        e('v_lshl_add_u32 v59, v60, 3, v59')
        e(f'v_bfe_u32 v61, {v(M32_)}, 3, 1')
        e('v_lshl_add_u32 v59, v61, 2, v59')
        e('v_mul_u32_u24 v61, 40, v59')
        e('v_cmp_gt_u32 vcc, 20, v59')
        e(f's_lshl_b32 s{sSG}, s{sSET}, 2')
        e(f's_add_u32 s{sSW}, s{sSG}, s{sW}')
        e('v_cndmask_b32 v61, v54, v61, vcc')
        e(f'v_lshl_add_u32 v62, {v(G2)}, 30, v61')
        e(f'v_lshl_add_u32 v61, {v(G2)}, 4, v61')
        e(f's_mul_i32 s91, s{sHD}, 800')
        e('s_waitcnt lgkmcnt(0)')
        self.srd(S_WQKV, P_WQKV, 640 * 3840)
        AQ, AK, AV, AT0, AT1, AP, APT, XR = 64, 68, 72, 76, 78, 80, 84, 88
        for q in range(4):
            e('s_mov_b32 m0, s90')
            e('s_add_u32 s90, s90, 1040')
            e(f'buffer_load_dwordx4 v53, {s_(S_WQKV, 4)}, s89 offen {nt} lds #rq')
            e('s_add_u32 s89, s89, 7680')
        self.srd(S_WPHI, P_WPHI, 32 * 800)
        e(f'buffer_load_dwordx4 {v(AP, 4)}, v61, {s_(S_WPHI, 4)}, s91 offen')
        e(f'buffer_load_dwordx2 {v(APT, 2)}, v62, {s_(S_WPHI, 4)}, s91 offen offset:32')
        self.srd(S_X, P_X, 2048 * 1280)
        xs = s_(S_X, 4)
        e(f'buffer_load_dwordx4 {v(XR, 4)}, v57, {xs}, s94 offen {cfg.ntx}')
        e(f'buffer_load_dwordx4 {v(XR + 4, 4)}, v57, {xs}, s94 offen offset:512 {cfg.ntx}')
        e(f'buffer_load_dwordx4 {v(XR + 8, 4)}, v58, {xs}, s94 offen offset:1024 {cfg.ntx}')
        e(f's_add_u32 s46, s{P_WS}, {EPOCH}')
        e(f's_addc_u32 s47, s{P_WS + 1}, 0')
        e(f's_load_dword s{sTAG}, s[46:47], 0')
        self.srd(S_WS, P_WS, WS_USED)
        self.srd(S_OUT, P_OUT, 2048 * 1280)
        self.srd(S_B2, P_B2, 1280)
        self.srd(S_WO, P_WO, 640 * 1280)
        self.srd(S_W1, P_W1, 640 * 3072)
        self.srd(S_W2, P_W2, 1536 * 1280)
        self.srd(S_B1, P_B1, 3072)
        if cfg.stamps:
            e(f's_mov_b32 s{sSTAMP}, s98')
            self.stamp_names.append('start')
            self.nstamp = 1
        self.stamp('issued')
        e(f'v_and_b32 {v(M16_)}, 15, {v(LANE)}')
        e(f'v_lshrrev_b32 {v(G4)}, 4, {v(LANE)}')
        e(f'v_lshlrev_b32 {v(vL16)}, 4, {v(LANE)}')
        e(f's_lshr_b32 s{sGI}, s2, 6')
        e(f's_and_b32 s{sJ}, s{sC}, 7')
        e(f's_add_u32 s{sSG}, s{sSG}, s{sGI}')
        e(f's_lshr_b32 s{sKSS}, s{sJ}, 1')
        e(f's_mul_i32 s{sKSS}, s{sKSS}, 5')
        e(f's_and_b32 s{sPAR}, s{sJ}, 1')
        e(f's_mul_i32 s{sKSA}, s{sPAR}, 3')
        e(f's_add_u32 s{sKSA}, s{sKSA}, s{sKSS}')
        e(f's_add_u32 s{sKSS}, s{sKSS}, 2')
        e(f's_mov_b32 s{sLO}, 0x3f80')
        e(f's_mov_b32 s{sHI}, 0x3f800000')
        e('s_lshr_b32 s80, s93, 1')
        e('s_lshl_b32 s80, s80, 2')
        e(f's_add_u32 s80, s80, s{sW}')
        e('s_lshl_b32 s80, s80, 1')
        e(f's_add_u32 s80, s80, s{sPAR}')
        e('s_lshl_b32 s80, s80, 7')
        e(f's_add_u32 s80, s80, {self.act(0, ST_O)}')
        e(f's_mul_i32 s81, s{sHD}, {RSTR}')
        e(f's_add_u32 s81, s81, {RG}')
        e(f's_lshl_b32 s82, s{sRB}, 12')
        e('s_add_u32 s81, s81, s82')
        e(f's_mul_i32 s82, s{sHD}, 5120')
        e(f's_lshl_b32 s83, s{sRB}, 8')
        e('s_add_u32 s82, s82, s83')
        e(f's_add_u32 s82, s82, {CSQ}')
        e(f'v_add_u32 v100, s88, {v(vL16)}')
        e(f'v_lshl_add_u32 v101, {v(LANE)}, 2, s88')

        def second_stage_loads(part):
            def colblock(src, base, jstride, stage, vst, vrd, so, tag):
                e('s_mul_i32 s93, s93, 1280')
                e('s_mul_i32 s94, s94, 1280')
                e('s_lshl_b32 s95, s92, 8')
                e('s_add_u32 s93, s93, s95')
                e('s_add_u32 s94, s94, s95')
                e('s_sub_u32 s94, s94, 1024')
                e('v_mul_u32_u24 v52, 1280, v52')
                e(f'v_lshl_add_u32 v52, {v(M16_)}, 4, v52')
                e('v_add_u32 v52, s88, v52')
                e(f's_lshl_b32 s95, s{sW}, 11')
                e(f's_add_u32 m0, s95, {stage}')
                e('s_lshl_b32 s92, s92, 2')
                e(f'buffer_load_dwordx4 v52, {src}, s93 offen {nt} lds #{tag}')
                e(f'buffer_load_dwordx4 v52, {src}, s94 offen offset:1024 {nt} lds #{tag}')
                e(f's_add_u32 s92, s92, s{sW}')
                self.sdiv(89, 96, 92, 5)
                e('s_cmp_eq_u32 s96, 2')
                e('s_cselect_b32 s92, 3, 4')
                e('s_cselect_b32 s95, 32, 8')
                e(f's_mov_b32 s{so + 1}, {jstride}')
                e(f's_cselect_b32 s{so + 1}, s{so + 1}, 1024')
                e(f'v_lshl_add_u32 {v(vrd)}, v219, s92, v220')
                e(f'v_add_u32 {v(vrd + 1)}, s95, {v(vrd)}')
                e(f'v_add_u32 {v(vst)}, s88, {v(vL16)}')
                e('s_lshl_b32 s89, s89, 1')
                e('s_sub_u32 s92, s96, 3')
                e('s_cmp_gt_u32 s96, 2')
                e('s_cselect_b32 s92, s92, s96')
                e('s_addc_u32 s89, s89, 0')
                e(f's_mul_i32 s89, s89, {jstride}')
                e('s_lshl_b32 s92, s92, 11')
                e('s_add_u32 s89, s89, s92')
                e('s_mul_i32 s92, s91, 5120')
                e('s_add_u32 s89, s89, s92')
                e(f's_add_u32 s{so}, s89, {base}')
                e(f's_add_u32 s{so + 1}, s{so + 1}, s{so}')

            if part == 0:
                e(f'v_and_b32 v219, 3, {v(LANE)}')
                e(f'v_bfe_u32 v218, {v(LANE)}, 2, 2')
                e(f'v_lshl_add_u32 v218, {v(G4)}, 3, v218')
                e('v_lshlrev_b32 v220, 8, v218')
                e(f's_lshl_b32 s95, s{sW}, 6')
                e('v_add_u32 v220, s95, v220')
                e('s_sub_u32 s96, s2, 156')
                e(f's_cselect_b32 s88, {OOB}, 0')
                e('s_cselect_b32 s96, 0, s96')
                self.sdiv(91, 92, 96, 5)
                self.sdiv(89, 90, 91, 5)
                e('s_mul_i32 s93, s89, 160')
                e('s_mul_i32 s95, s90, 40')
                e('s_cmp_eq_u32 s90, 4')
                e('s_cselect_b32 s95, 8, s95')
                e('s_cselect_b32 s94, 20, 4')
                e('s_cselect_b32 s96, 40, 10')
                e('s_cselect_b32 s90, 8, 0')
                e(f's_mul_i32 s96, s96, s{sW}')
                e('s_add_u32 s93, s93, s95')
                e('s_add_u32 s93, s93, s96')
                e('s_add_u32 s94, s94, s93')
                e(f'v_mul_u32_u24 v52, s90, {v(G2)}')
                e(f'v_add_u32 v52, v52, {v(G4)}')
                colblock(s_(S_WO, 4), WOF, 102400, RO, 208, 212, 84, 'ro')
                return
            e(f's_sub_u32 s91, s{sC}, 12')
            e(f's_cselect_b32 s88, {OOB}, 0')
            e('s_cselect_b32 s91, 0, s91')
            e('s_lshl_b32 s92, s91, 2')
            e(f's_add_u32 s92, s92, s{sW}')
            e(f's_mul_i32 s92, s92, {8 * 3072}')
            e(f's_mul_i32 s93, s{sSET}, 384')
            e('s_add_u32 s92, s92, s93')
            e(f's_mul_i32 s93, s{sW}, 3072')
            e(f's_add_u32 m0, s93, {R1}')
            for q in range(3):
                e(f'v_add_u32 v52, {64 * q}, {v(LANE)}')
                e('v_mul_u32_u24 v52, 171, v52')
                e('v_lshrrev_b32 v52, 12, v52')
                e(f'v_mul_u32_u24 v52, {3072 - 384}, v52')
                e(f'v_add3_u32 v52, v52, {v(vL16)}, s88')
                e(f'buffer_load_dwordx4 v52, {s_(S_W1, 4)}, s92 offen offset:{1024 * q} {nt} lds #rn')
            e('v_mul_u32_u24 v216, 384, v218')
            e(f's_mul_i32 s93, s{sW}, 96')
            e('v_add_u32 v216, s93, v216')
            e('v_lshl_add_u32 v217, v219, 3, v216')
            e('v_lshl_add_u32 v216, v219, 4, v216')
            e(f'v_add_u32 v210, s88, {v(vL16)}')
            e(f'v_lshl_add_u32 v211, {v(LANE)}, 2, s88')
            e(f's_mul_i32 s78, s{sSW}, {RSTR}')
            e('s_mul_i32 s79, s91, 3072')
            e('s_add_u32 s78, s78, s79')
            e(f's_add_u32 s78, s78, {RG + RG_W1}')
            e(f's_mul_i32 s79, s{sSW}, 5120')
            e('s_lshl_b32 s91, s91, 8')
            e('s_add_u32 s79, s79, s91')
            e(f's_add_u32 s79, s79, {CS1}')
            e('s_cmp_lt_u32 s2, 240')
            e(f's_cselect_b32 s88, 0, {OOB}')
            e('s_cselect_b32 s96, s2, 0')
            self.sdiv(91, 92, 96, 5)
            self.sdiv(89, 90, 91, 3)
            e('s_mul_i32 s93, s89, 96')
            e('s_mul_i32 s95, s90, 24')
            e('s_cmp_eq_u32 s90, 1')
            e('s_cselect_b32 s95, 32, s95')
            e('s_cselect_b32 s94, 32, 0')
            e('s_add_u32 s93, s93, s95')
            e(f's_lshr_b32 s95, s{sW}, 1')
            e('s_mul_i32 s94, s94, s95')
            e('s_add_u32 s93, s93, s94')
            e(f's_lshl_b32 s95, s{sW}, 3')
            e('s_add_u32 s93, s93, s95')
            e('s_add_u32 s94, s93, 4')
            e(f'v_mov_b32 v52, {v(G4)}')
            colblock(s_(S_W2, 4), RG + RG_W2, 4 * RSTR, R2, 209, 214, 86, 'rn')
            self.sdiv(89, 90, 91, 12)
            e(f's_mul_i32 s89, s89, {RSTR - 61440}')
            e('s_add_u32 s86, s86, s89')
            e('s_add_u32 s87, s87, s89')
            if cfg.warm:
                e(f'v_lshlrev_b32 v52, 7, {v(LANE)}')
                e(f'buffer_load_dword v222, v52, {B2}, 0 offen')
                e(f'v_lshlrev_b32 v52, 12, {v(G4)}')
                e(f's_lshl_b32 s89, s{sSW}, 7')
                e(f's_add_u32 s89, s89, {FL}')
                e(f'buffer_load_dword v222, v52, {WS}, s89 offen sc1')
            e(f'v_lshrrev_b32 v52, 2, {v(M16_)}')
            e('v_lshl_add_u32 v52, v52, 3, v219')
            e('v_lshlrev_b32 v52, 1, v52')
            e(f'v_lshlrev_b32 v221, 1, {v(M16_)}')
            e(f's_mul_i32 s89, s{sC}, 96')
            e(f'buffer_load_ushort {a_(aB1)}, v52, {s_(S_B1, 4)}, s89 offen')
            e(f'buffer_load_ushort {a_(aB1 + 1)}, v52, {s_(S_B1, 4)}, s89 offen offset:8')
            e(f'buffer_load_ushort {a_(aB1 + 2)}, v221, {s_(S_B1, 4)}, s89 offen offset:64')

        second_stage_loads(0)
        if not cfg.reord:
            second_stage_loads(1)
        SEL, SELT, BV0, BV1, BT0, BT1, BP, ONES = 112, 116, 120, 124, 128, 130, 132, 136
        e(f'v_lshrrev_b32 v52, 3, {v(M32_)}')
        e(f'v_and_b32 v53, 3, {v(M32_)}')
        e('v_lshl_add_u32 v52, v52, 2, v53')
        e('v_mul_u32_u24 v60, 10, v60')
        e('v_add_u32 v60, v60, v52')
        e(f'v_and_b32 v53, 1, {v(M32_)}')
        e('v_lshlrev_b32 v53, 4, v53')
        e(f'v_lshlrev_b32 v53, v53, s{sLO}')
        e(f'v_lshlrev_b32 v61, 2, {v(G2)}')
        for (b4, b2, off, lo, hi, tg) in ((SEL, SELT, 0, 0, 10, 0), (BV0, BT0, 10, 10, 16, 1), (BV1, BT1, 4, 10, 14, 1)):
            e(f'v_subrev_u32 v57, {off}, v60')
            e('v_lshrrev_b32 v57, 1, v57')
            e(f'v_subrev_u32 v58, {lo}, v52')
            e(f'v_cmp_gt_u32 vcc, {hi - lo}, v58')
            e(f'v_cmp_eq_u32 s[46:47], {tg}, {v(G2)}')
            e('v_cndmask_b32 v57, 32, v57, vcc')
            e('v_sub_u32 v58, v57, v61')
            e('v_cndmask_b32 v57, 32, v57, s[46:47]')
            for h in range(2):
                for q in range(3 * h, 3 * h + 3):
                    e(f'v_cmp_eq_u32 s[{20 + 2 * (q % 3)}:{21 + 2 * (q % 3)}], {q if q < 4 else q + 4}, {"v58" if q < 4 else "v57"}')
                for q in range(3 * h, 3 * h + 3):
                    e(f'v_cndmask_b32 {v(b4 + q if q < 4 else b2 + q - 4)}, 0, v53, s[{20 + 2 * (q % 3)}:{21 + 2 * (q % 3)}]')
        for i in range(4):
            e(f'v_mov_b32 {v(ONES + i)}, 0x3f803f80')
        e('v_lshrrev_b32 v57, 1, v59')
        e('v_mul_u32_u24 v57, 1040, v57')
        e('v_and_b32 v58, 1, v59')
        e('v_mul_u32_u24 v58, 480, v58')
        e(f's_mul_i32 s89, s{sW}, 40')
        e('v_add3_u32 v57, v57, v58, s89')
        e(f'v_mul_u32_u24 v58, 160, {v(G2)}')
        e('v_add_u32 v59, v57, v58')
        e('v_add_u32 v58, v59, v58')
        e(f'v_lshl_add_u32 v57, {v(G2)}, 4, v57')
        e('v_and_b32 v61, 3, v55')
        e('v_lshlrev_b32 v60, 7, v61')
        e('v_lshl_add_u32 v60, v56, 4, v60')
        e(f's_lshl_b32 s89, s{sW}, 2')
        e(f's_add_u32 s89, s89, {RS}')
        e('v_add_u32 v60, s89, v60')
        e('v_cmp_eq_u32 s[20:21], 0, v61')
        e('v_cmp_eq_u32 s[22:23], 2, v61')
        e(f'v_lshlrev_b32 v102, 2, {v(M32_)}')
        e(f's_lshl_b32 s89, s{sW}, 7')
        e(f's_add_u32 s89, s89, {RS}')
        e('v_add_u32 v103, s89, v102')
        e(f'v_lshl_add_u32 v102, {v(G2)}, 30, v102')
        def staging_addresses():
            e(f'v_lshrrev_b32 v61, 4, {v(LANE)}')
            e(f'v_and_b32 v62, 7, {v(LANE)}')
            e('v_xor_b32 v61, v61, v62')
            e(f'v_lshrrev_b32 v63, 3, {v(LANE)}')
            e('v_mul_u32_u24 v63, 1280, v63')
            for i in range(4):
                if i:
                    e('v_xor_b32 v61, 4, v61')
                e(f'v_lshl_add_u32 {v(vXG + i)}, v61, 4, v63')
                if i:
                    e(f'v_add_u32 {v(vXG + i)}, {9216 * i}, {v(vXG + i)}')
            e(f's_mul_i32 s{sXG}, s{sSW}, {64 * 1280}')
            e(f's_lshl_b32 s{sXL}, s{sW}, 12')
            e(f's_add_u32 s{sXL}, s{sXL}, {XB}')
            e(f'v_bfe_u32 v61, {v(M32_)}, 1, 3')
            e(f'v_xor_b32 v61, v61, {v(G2)}')
            e(f'v_lshl_add_u32 v63, {v(M32_)}, 7, s{sXL}')
            for q in range(4):
                e(f'v_xor_b32 v62, {2 * q}, v61')
                e(f'v_lshl_add_u32 {v(vXL + q)}, v62, 4, v63')
                e(f'v_add_u32 {v(vXL + 4 + q)}, 0x10000, {v(vXL + q)}')
        if not cfg.reord:
            staging_addresses()
        e('v_mov_b32 v62, 0')
        e('v_mov_b32 v63, 0')
        D0, D1, FR = 144, 160, 176
        e(f'{M32} {v(D0, 16)}, {v(AP, 4)}, {v(SEL, 4)}, 0')
        e(f'{M32H} {v(D0, 16)}, {v(APT, 2)}, {v(SELT, 2)}, {v(D0, 16)}')
        e('s_barrier')
        self.stamp('landed')
        early = [x for u in range(cfg.xpre[0]) for x in self.x_dma(u)]
        e(f'ds_read2_b64 {v(AV, 4)}, v57 offset0:40 offset1:41')
        e(f'ds_read2_b64 {v(AK, 4)}, v57 offset0:20 offset1:21')
        e(f'ds_read2_b64 {v(AQ, 4)}, v57 offset0:0 offset1:1')
        e(f'ds_read_b64 {v(AT0, 2)}, v59 offset:192')
        e(f'ds_read_b64 {v(AT1, 2)}, v58 offset:32')
        for x in early[:cfg.xe[0]]:
            e(x)
        for q in range(4):
            e(f'v_cvt_pk_bf16_f32 {v(BP + q)}, {v(D0 + 2 * q)}, {v(D0 + 2 * q + 1)}')
        for q in range(2):
            e(f'v_cvt_pk_bf16_f32 v61, {v(D0 + 8 + 2 * q)}, {v(D0 + 9 + 2 * q)}')
            e(f'v_or_b32 {v(BT0 + q)}, {v(BT0 + q)}, v61')
            e(f'v_or_b32 {v(BT1 + q)}, {v(BT1 + q)}, v61')
        e(f'{M32} {v(D0, 16)}, {v(AV, 4)}, {v(BV0, 4)}, 0')
        e(f'{M32} {v(D1, 16)}, {v(AV, 4)}, {v(BV1, 4)}, 0')
        e(f'{M32} {v(D0, 16)}, {v(AK, 4)}, {v(BP, 4)}, {v(D0, 16)}')
        e(f'{M32} {v(D1, 16)}, {v(AQ, 4)}, {v(BP, 4)}, {v(D1, 16)}')
        e(f'{M32H} {v(D0, 16)}, {v(AT0, 2)}, {v(BT0, 2)}, {v(D0, 16)}')
        e(f'{M32H} {v(D1, 16)}, {v(AT1, 2)}, {v(BT1, 2)}, {v(D1, 16)}')
        for T, D in ((0, D0), (1, D1)):
            for half in range(2):
                f = FR + 8 * T + 4 * half
                for q in range(4):
                    e(f'v_cvt_pk_bf16_f32 {v(f + q)}, {v(D + 8 * half + 2 * q)}, {v(D + 8 * half + 2 * q + 1)}')
                e(f'buffer_store_dwordx4 {v(f, 4)}, v100, {WS}, s81 offen offset:{2048 * half + 1024 * T} sc1 #c')
            e(f'{M32} {v(D, 16)}, {v(ONES, 4)}, {v(FR + 8 * T, 4)}, 0')
            e(f'{M32} {v(D, 16)}, {v(ONES, 4)}, {v(FR + 8 * T + 4, 4)}, {v(D, 16)}')
        for x in early[cfg.xe[0]:cfg.xe[1]]:
            e(x)
        for q in range(12):
            e(f'v_dot2c_f32_bf16 v62, {v(ONES)}, {v(XR + q)}')
            e(f'v_dot2c_f32_bf16 v63, {v(XR + q)}, {v(XR + q)}')
        e(f'v_cmp_eq_u32 vcc, 1, {v(G2)}')
        e(f'v_cndmask_b32 v55, {v(D0)}, {v(D1)}, vcc')
        e(f'buffer_store_dword v55, v101, {WS}, s82 offen sc1 #c')
        for ctl in ('quad_perm:[1,0,3,2]', 'quad_perm:[2,3,0,1]', 'row_half_mirror'):
            e(f'v_add_f32_dpp v62, v62, v62 {ctl} row_mask:0xf bank_mask:0xf')
            e(f'v_add_f32_dpp v63, v63, v63 {ctl} row_mask:0xf bank_mask:0xf')
        e('v_cndmask_b32 v62, 0, v62, s[20:21]')
        e('v_cndmask_b32 v62, v62, v63, s[22:23]')
        e('ds_write_b32 v60, v62')
        e('@wait ro')
        e('s_waitcnt lgkmcnt(0)')
        e('s_barrier')
        e('ds_read_b32 v62, v103')
        for n in range(2):
            for T in range(2):
                e(f'ds_read_b64_tr_b16 {v(64 + 4 * n + 2 * T, 2)}, {v(212 + n)} offset:{RO + 1024 * T}')
        e(f'buffer_store_dword v62, v102, {WS}, s80 offen sc1 #c')
        for n in range(2):
            e(f'buffer_store_dwordx4 {v(64 + 4 * n, 4)}, v208, {WS}, s{84 + n} offen sc1 #c')
        self.stamp('stored')
        if cfg.reord:
            second_stage_loads(1)
            staging_addresses()
        units = cfg.xpre
        for x in early[cfg.xe[1]:]:
            e(x)

        e('s_getreg_b32 s97, hwreg(HW_REG_XCC_ID, 0, 4)')
        e(f's_add_u32 s{sVAL}, s{sTAG}, {SEQ_G1}')
        e(f'v_mov_b32 v56, s{sVAL}')
        e('v_mov_b32 v57, s97')
        e(f'v_mov_b32 v58, s{sVAL}')
        e('v_mov_b32 v59, s97')
        e('s_lshl_b32 s89, s2, 7')
        e(f's_add_u32 s89, s89, {G1}')
        e(f's_cmp_eq_u32 s{sW}, 0')
        e(f's_cselect_b32 s90, 0, {OOB}')
        e(f'v_add_u32 v55, s90, {v(vL16)}')
        e('@wait c')
        e('s_barrier')
        e('s_mov_b64 exec, 0xff')
        e(f'buffer_store_dwordx4 v[56:59], v55, {WS}, s89 offen sc1')
        e('s_mov_b64 exec, -1')
        self.stamp('g1set')

        def constants():
            e = self.e
            e(f'v_add_u32 {v(vB2)}, 0x10000, {v(vL16)}')
            e(f'v_add_u32 {v(vB3)}, 0x20000, {v(vL16)}')
            e(f's_mul_i32 s91, s{sW}, 5120')
            e(f'v_add_u32 {v(vWE)}, s91, {v(vB3)}')
            e(f's_xor_b32 s91, s{sW}, 2')
            e('s_mul_i32 s91, s91, 5120')
            e(f'v_add_u32 {v(vWO)}, s91, {v(vB3)}')
            e(f's_and_b32 s91, s{sW}, 2')
            e('s_mul_i32 s91, s91, 5120')
            e(f's_and_b32 s92, s{sW}, 1')
            e('s_lshl_b32 s92, s92, 7')
            e('s_add_u32 s91, s91, s92')
            e(f'v_and_b32 v52, 0xfffffb7f, {v(vB3)}')
            e('v_add_u32 v52, s91, v52')
            e(f'v_bfe_u32 v60, {v(LANE)}, 3, 1')
            e(f'v_lshl_add_u32 {v(vRA)}, v60, 11, v52')
            e(f'v_lshl_add_u32 {v(vRS)}, v60, 3, v52')
            e(f'v_and_b32 v52, 1, {v(G4)}')
            e(f'v_lshlrev_b32 v60, 4, {v(M16_)}')
            e(f'v_mul_u32_u24 {v(vHS)}, 49152, v52')
            e(f'v_lshl_add_u32 v61, {v(G2)}, 8, v60')
            e(f'v_add_u32 {v(vHS)}, {v(vHS)}, v61')
            e(f'v_mul_u32_u24 {v(vOM)}, 20480, v52')
            e(f'v_add_u32 {v(vOM)}, {v(vOM)}, v60')
            e(f'v_lshl_add_u32 {v(vOM)}, {v(G2)}, 8, {v(vOM)}')
            e(f'v_mul_u32_u24 {v(vOR)}, 20480, {v(G4)}')
            e(f'v_add_u32 {v(vOR)}, {v(vOR)}, v60')
            e(f'v_subrev_u32 v60, 8, {v(M32_)}')
            e(f'v_cmp_lt_u32 vcc, 27, {v(M32_)}')
            e('v_subb_co_u32 v60, vcc, v60, 0, vcc')
            e('v_cmp_gt_u32 vcc, 22, v60')
            e(f'v_mul_u32_u24 v62, 22, {v(G2)}')
            e('v_cndmask_b32 v61, 0, v60, vcc')
            e(f'v_add_lshl_u32 {v(vKVL)}, v61, v62, 4')
            e(f'v_cmp_ne_u32 s[20:21], 27, {v(M32_)}')
            e('s_and_b64 vcc, vcc, s[20:21]')
            e(f'v_cndmask_b32 {v(vKVS)}, v54, {v(vKVL)}, vcc')
            e(f'v_bfe_u32 v61, {v(M32_)}, 2, 1')
            e(f'v_cmp_eq_u32 vcc, v61, {v(G2)}')
            e(f'v_bfe_u32 v62, {v(M32_)}, 1, 1')
            e(f'v_lshrrev_b32 v60, 3, {v(M32_)}')
            e('v_cndmask_b32 v61, 0, v53, vcc')
            e('v_lshl_add_u32 v62, v60, 1, v62')
            for h in range(2):
                for q in range(4):
                    e(f'v_cmp_eq_u32 s[{20 + 2 * q}:{21 + 2 * q}], {4 * h + q}, v62')
                for q in range(4):
                    e(f'v_cndmask_b32 {v(PA + 4 * h + q)}, 0, v61, s[{20 + 2 * q}:{21 + 2 * q}]')
            e(f's_lshr_b32 s91, s{sC}, 2')
            e(f's_lshl_b32 s92, s{sW}, 3')
            e('s_add_u32 s92, s92, s91')
            e(f'v_min_u32 v52, 4, {v(M16_)}')
            e('v_lshl_add_u32 v53, v52, 5, s92')
            e('v_mul_u32_u24 v60, 205, v53')
            e('v_lshrrev_b32 v60, 12, v60')
            e('v_mul_u32_u24 v60, 159, v60')
            e('v_lshlrev_b32 v53, 3, v53')
            e('v_sub_u32 v53, v53, v60')
            e(f's_sub_u32 s93, s{sKSA}, s{sPAR}')
            e(f'v_and_b32 v60, 1, {v(LANE)}')
            e('v_lshl_add_u32 v60, v60, 1, s93')
            e('v_lshrrev_b32 v60, 2, v60')
            e(f'v_lshrrev_b32 v61, 1, {v(M16_)}')
            e('v_min_u32 v61, 4, v61')
            e(f's_mul_i32 s93, s{sW}, 25')
            e('s_add_u32 s93, s93, 156')
            e('v_mul_u32_u24 v61, 5, v61')
            e('v_add3_u32 v61, v61, v60, s93')
            e(f'v_cmp_eq_u32 vcc, 3, {v(G4)}')
            e(f'v_cmp_eq_u32 s[20:21], 1, {v(G2)}')
            e(f'v_lshl_add_u32 v62, {v(M32_)}, 3, s{sSET}')
            e('v_cndmask_b32 v53, v53, v61, vcc')
            e('v_cndmask_b32 v53, v62, v53, s[20:21]')
            e(f'v_lshlrev_b32 {v(vT2)}, 7, v53')
            e(f's_mul_i32 s92, s{sW}, 40')
            e('s_add_u32 s92, s92, s91')
            e('s_add_u32 s92, s92, 96')
            e('v_lshl_add_u32 v52, v52, 3, s92')
            e(f'v_lshrrev_b32 v61, 1, {v(M32_)}')
            e('v_min_u32 v61, 11, v61')
            e(f's_mul_i32 s93, s{sW}, 60')
            e('v_mul_u32_u24 v61, 5, v61')
            e('v_add3_u32 v61, v61, v60, s93')
            e('v_cndmask_b32 v52, v52, v61, s[20:21]')
            e(f's_lshl_b32 s92, s{sSW}, 3')
            e(f'v_and_or_b32 v61, {v(LANE)}, 7, s92')
            e(f'v_cmp_eq_u32 vcc, 1, {v(G4)}')
            e('v_cndmask_b32 v52, v52, v61, vcc')
            e(f'v_lshlrev_b32 {v(vG2)}, 7, v52')

        def second_stage():
            e = self.e
            if cfg.reord:
                e('@wait rn')
                e('s_barrier')
            jobs = [(216, R1, 1536, 210, 78, 0), (216, R1 + 8, 1536, 210, 78, 1024), (217, R1 + 64, 1536, 210, 78, 2048),
                    (214, R2, 1024, 209, 86, 0), (215, R2, 1024, 209, 87, 0)]
            for n, (vrd, stage, step, _, _, _) in enumerate(jobs):
                for T in range(2):
                    e(f'ds_read_b64_tr_b16 {v(NCF + 4 * n + 2 * T, 2)}, {v(vrd)} offset:{stage + step * T}')
            self.nc_stores = []
            for n, (_, _, _, vst, so, off) in enumerate(jobs):
                self.nc_stores.append(f'buffer_store_dwordx4 {v(NCF + 4 * n, 4)}, {v(vst)}, {WS}, s{so} offen offset:{off} sc1 #nc')
                if n < 3:
                    e(f'{M16} {v(144 + 4 * n, 4)}, {v(ONES, 4)}, {v(NCF + 4 * n, 4)}, 0')
            e(f'v_cmp_eq_u32 vcc, 1, {v(G4)}')
            e(f'v_cmp_eq_u32 s[20:21], 2, {v(G4)}')
            e('s_waitcnt lgkmcnt(0)')
            e('s_barrier')
            e('v_cndmask_b32 v204, v144, v148, vcc')
            e('v_cndmask_b32 v204, v204, v152, s[20:21]')
            self.nc_stores.append(f'buffer_store_dword v204, v211, {WS}, s79 offen sc1 #nc')

        assert units[1] - units[0] <= 7 and units[1] <= 14
        if units[0]:
            second_stage()
            e(f'@wait xa{units[0] - 1}')
            for x in ([] if cfg.late else self.nc_stores):
                e(x)
            for u in range(units[0]):
                for x in self.x_read(u, False):
                    e(x)
            e('s_waitcnt lgkmcnt(0)')
        for u in range(units[0], units[1]):
            if u == 2 and not units[0]:
                constants()
                second_stage()
            for x in self.x_dma(u):
                e(x)
        if units[0]:
            constants()
        if cfg.rese:
            self.tile_addresses('row', 0, 90, 52, 54)
            for h in range(2):
                e(f'buffer_load_dwordx4 {v(R + 12 + 4 * h, 4)}, v52, {s_(S_X, 4)}, s90 offen')
                e(f'buffer_load_dword {v(D16 + h)}, v53, {s_(S_X, 4)}, s91 offen')
                if h == 0:
                    e('s_add_u32 s90, s90, 40960')
                    e('s_add_u32 s91, s91, 40960')
        self.stamp('pre_done')
        e(f's_mov_b32 s89, {G1}')
        self.spin(f'buffer_load_dwordx2 {v(vT0, 2)}, {v(vT2)}, {WS}, s89 offen sc1',
                  f'v_cmp_ne_u32 vcc, s{sVAL}, {v(vT0)}')
        e(f'v_cmp_ne_u32 vcc, s97, {v(vT1)}')
        e('s_waitcnt lgkmcnt(0)')
        e('s_cmp_lg_u32 vcc_lo, 0')
        if cfg.both:
            e('s_cbranch_scc1 Lslow')
        self.stamp('g1got')

    def softmax(self, a, sp, dst, pk):
        e = self.e
        t0, t1, t2, t3 = vT0, vT1, vT2, vT3
        e(f'v_max3_f32 {v(t0)}, {v(a)}, {v(a + 1)}, {v(a + 2)}')
        e(f'v_max3_f32 {v(t1)}, -{v(a)}, -{v(a + 1)}, -{v(a + 2)}')
        for i in (3, 5, 7):
            e(f'v_max3_f32 {v(t0)}, {v(t0)}, {v(a + i)}, {v(a + i + 1)}')
            e(f'v_max3_f32 {v(t1)}, {v(t1)}, -{v(a + i)}, -{v(a + i + 1)}')
        e(f'v_max_f32 {v(t0)}, {v(t0)}, {v(a + 9)}')
        e(f'v_max_f32 {v(t1)}, {v(t1)}, -{v(a + 9)}')
        e(f'v_permlane32_swap_b32 {v(t0)}, {v(t1)}')
        e(f'v_max_f32 {v(t0)}, {v(t0)}, {v(t1)}')
        e(f'v_mul_f32 {v(t1)}, {v(t0)}, {v(sp + 1)}')
        e(f'v_mul_f32 {v(t0)}, {v(t0)}, {v(sp + 1)}')
        e(f'v_permlane32_swap_b32 {v(t0)}, {v(t1)}')
        for i in range(10):
            if pk:
                sel = (a + i) & 1
                e(f'v_pk_fma_f32 {v(E + 2 * i, 2)}, {v((a + i) & ~1, 2)}, {v(sp, 2)}, {v(t0, 2)} '
                  f'op_sel:[{sel},0,0] op_sel_hi:[{sel},1,1]')
            else:
                for h in range(2):
                    e(f'v_fma_f32 {v(E + 2 * i + h)}, {v(a + i)}, {v(sp + h)}, {v(t0 + h)}')
        for i in range(20):
            e(f'v_exp_f32 {v(E + i)}, {v(E + i)}')
        if pk:
            e(f'v_pk_add_f32 {v(t2, 2)}, {v(E, 2)}, {v(E + 2, 2)}')
            for i in range(2, 10):
                e(f'v_pk_add_f32 {v(t2, 2)}, {v(t2, 2)}, {v(E + 2 * i, 2)}')
        else:
            for i in range(1, 10):
                for h in range(2):
                    e(f'v_add_f32 {v(t2 + h)}, {v(t2 + h if i > 1 else E + h)}, {v(E + 2 * i + h)}')
        e(f'v_permlane32_swap_b32 {v(t2)}, {v(t3)}')
        e(f'v_add_f32 {v(t2)}, {v(t2)}, {v(t3)}')
        e(f'v_rcp_f32 {v(t2)}, {v(t2)}')
        e(f'v_mov_b32 {v(t3)}, {v(t2)}')
        e(f'v_permlane32_swap_b32 {v(t2)}, {v(t3)}')
        for i in range(10):
            if pk:
                e(f'v_pk_mul_f32 {v(E + 2 * i, 2)}, {v(E + 2 * i, 2)}, {v(t2, 2)}')
            else:
                for h in range(2):
                    e(f'v_mul_f32 {v(E + 2 * i + h)}, {v(E + 2 * i + h)}, {v(t2 + h)}')
            e(f'v_cvt_pk_bf16_f32 {v(dst + i)}, {v(E + 2 * i)}, {v(E + 2 * i + 1)}')

    def mean_term(self, T, mt, first=False):
        a = ((A00, A01), (A10, A11))[T][mt]
        return f'{M32H} {v(a, 16)}, {a_(aCQ + 2 * T, 2)}, {v(CB + 2 * mt, 2)}, {0 if first else v(a, 16)}'

    def kpart(self, mt, pk):
        e = self.e
        a0, a1, st, KV2 = (A00, A01)[mt], (A10, A11)[mt], STT + 4 * mt, A00
        e(f'v_mov_b32 {v(D16 + 15)}, s{sLO}')
        self.softmax(a0, st, D16, pk)
        X, Y = E, a0
        gap = (lambda n: None) if pk else (lambda n: e(f'; gap {n}'))
        e(f'{M32} {v(X, 16)}, {v(D16, 4)}, {v(PA, 4)}, 0')
        e(f'{M32} {v(X, 16)}, {v(D16 + 4, 4)}, {v(PB, 4)}, {v(X, 16)}')
        for i, src in enumerate((a0 + 10, a0 + 12, a0 + 14, a1 + 10, a1 + 12)):
            for h in range(2):
                e(f'v_mul_f32 {v(src + h)}, {v(src + h)}, {v(st + 2)}')
            e(f'v_cvt_pk_bf16_f32 {v(D16 + 10 + i)}, {v(src)}, {v(src + 1)}')
        gap(1)
        e(f'{M32} {v(Y, 16)}, {v(D16 + 8, 4)}, {v(PA, 4)}, 0')
        e(f'{M32} {v(Y, 16)}, {v(D16 + 12, 4)}, {v(PB, 4)}, {v(Y, 16)}')
        for q in range(8):
            e(f'v_cvt_pk_bf16_f32 {v(D16 + q)}, {v(X + 2 * q)}, {v(X + 2 * q + 1)}')
        gap(2)
        for q in range(8):
            e(f'v_cvt_pk_bf16_f32 {v(D16 + 8 + q)}, {v(Y + 2 * q)}, {v(Y + 2 * q + 1)}')
        gap(1)
        for h in range(2):
            c = v(KV1, 16) if mt or h else '0'
            e(f'{M32} {v(KV1, 16)}, {v(D16 + 4 * h, 4)}, {v(D16 + 8 + 4 * h, 4)}, {c}')
        for h in range(2):
            c = v(KV2, 16) if mt or h else '0'
            e(f'{M32} {v(KV2, 16)}, {v(D16 + 8 + 4 * h, 4)}, {v(D16 + 8 + 4 * h, 4)}, {c}')

    def w2_loads(self, n):
        out = []
        for k in range(self.w2n, min(60, self.w2n + n)):
            i = (k + 20) % 60
            t = f'buffer_load_dwordx4 {a_(4 * i, 4)}, {v(vL16)}, {WS}, s47 offen offset:{(i % 4) * 1024} sc1 {self.cfg.nt2}'
            if i == 59:
                t += f'\ns_sub_u32 s47, s47, {56 * 1024}'
            elif i % 4 == 3:
                t += '\ns_add_u32 s47, s47, 4096'
            out.append(t)
        self.w2n += len(out)
        return out

    def touch_all(self, which):
        t = [f's_lshl_b32 s62, s{sSET}, 5\ns_add_u32 s62, s62, s{sC}\ns_lshl_b32 s62, s62, 2\ns_add_u32 s62, s62, s{sW}\n'
             f'v_lshlrev_b32 {v(SP + 1)}, 3, {v(vL16)}']
        for name, buf, share, base in (('b', WS, 6144, self.act(0, HF_O)), ('a', self.xbuf(), 2560, self.act(0, X1F_O))):
            if name in which:
                mask = (1 << (share // 128)) - 1
                t[0] += (f'\ns_mul_i32 s63, s62, {share}\ns_add_u32 s63, s63, {base}\ns_mov_b32 exec_lo, {hex(mask & 0xffffffff)}\n'
                         f's_mov_b32 exec_hi, {hex(mask >> 32)}\nbuffer_load_dword {v(SP)}, {v(SP + 1)}, {buf}, s63 offen sc1\ns_mov_b64 exec, -1')
        return t

    def side(self, k):
        a = [self.w1q.pop(0) for _ in range(min(self.cfg.w1split[k], len(self.w1q)))]
        b = self.w2_loads(self.cfg.w2split[k])
        keyed = [((i + 0.5) / len(a), x) for i, x in enumerate(a)] + [((i + 0.5) / len(b), x) for i, x in enumerate(b)]
        out = [x for _, x in sorted(keyed, key=lambda t: t[0])]
        return out

    def p1(self, L, chain=None):
        e, cfg = self.e, self.cfg
        acc = ((A00, A01), (A10, A11))
        areg = lambda n: 176 + (n % 12) * 4
        wreg = lambda n: 224 + (n % 8) * 4

        def early_addresses():
            e = self.e
            e(f's_mul_i32 s16, s{sSW}, 81920')
            e(f's_add_u32 s16, s16, {self.act(L, XF_O)}')
            e(f's_lshl_b32 s17, s{sSW}, 12')
            e(f's_add_u32 s17, s17, {self.act(L, ST_O)}')
        if L == 0:
            early_addresses()

        def late_addresses():
            e = self.e
            e(f's_mul_i32 s18, s{sJ}, 102400')
            e(f's_mul_i32 s19, s{sW}, 25600')
            e('s_add_u32 s18, s18, s19')
            e(f's_add_u32 s18, s18, {WOF}')
            e(f's_mul_i32 s20, s{sSW}, {self.ostride()}')
            e(f's_add_u32 s20, s20, {self.act(L, OF_O)}')
            e(f's_mul_i32 s21, s{sGI}, 5120')
            e('s_add_u32 s20, s20, s21')
            e(f's_lshr_b32 s22, s{sJ}, 1')
            e('s_lshl_b32 s22, s22, 5')
            e(f's_add_u32 s22, s22, s{sPAR}')
            e('s_lshl_b32 s22, s22, 3')
            e('s_add_u32 s22, s22, s20')
            e('s_add_u32 s22, s22, 4096')
            e(f's_lshl_b32 s21, s{sJ}, 9')
            e('s_add_u32 s20, s20, s21')
            e('s_add_u32 s21, s20, 40960')
            self.flag_line(23, 1, sSW)
            e(f's_lshl_b32 s24, s{sC}, 2')
            e('s_add_u32 s23, s23, s24')
            e(f's_add_u32 s24, s24, s{sW}')
            e(f's_mul_i32 s24, s24, {8 * KVS}')
            e(f's_add_u32 s24, s24, {KVP + L * 0x100000}')
            for x in range(1, 8):
                e(f's_xor_b32 s{24 + x}, s{sSET}, {x}')
                e(f's_mul_i32 s{24 + x}, s{24 + x}, {KVS}')
                e(f's_add_u32 s{24 + x}, s{24 + x}, s24')
            e(f's_mul_i32 s32, s{sSET}, {KVS}')
            e('s_add_u32 s24, s24, s32')

        def load_a(n):
            t = f'buffer_load_dwordx4 {v(areg(n), 4)}, {v(vL16)}, {self.xbuf()}, s16 offen offset:{(n % 4) * 1024} sc1'
            return t + ('\ns_add_u32 s16, s16, 4096' if n % 4 == 3 else '')

        def load_w(n):
            b, off = lds((n % 80) * 1024)
            return f'ds_read_b128 {v(wreg(n), 4)}, {v(b)} offset:{off}'

        stat_ld = [f'buffer_load_dwordx4 {v(KV1 + 4 * q, 4)}, {v(vSTL)}, {WS}, s17 offen offset:{1024 * q} sc1' for q in range(4)]

        def stats(tiles=(0, 1)):
            for mt in tiles:
                b, st = KV1 + 8 * mt, STT + 4 * mt
                self.pair_stats(b, b + 4)
                self.hi_lo(CB + 2 * mt, b, b + 3)
                self.e(f'v_mov_b32 {v(st + 2)}, {v(b + 2)}')
                self.e(f'v_mul_f32 {v(st)}, {hex(LOG2E)}, {v(b + 2)}')
                self.e(f'v_mul_f32 {v(st + 1)}, {hex(LOG2E | 0x80000000)}, {v(b + 2)}')

        mf, after = [], {}
        DW = 5

        def load_wo(i):
            r = WO_E + 4 * i if i < 20 else WO_L + 4 * (i - 20)
            t = f'buffer_load_dwordx4 {v(r, 4)}, {v(vL16)}, {WS}, s18 offen offset:{(i % 4) * 1024} sc1'
            return t + ('\ns_add_u32 s18, s18, 4096' if i % 4 == 3 else '')

        if L == 0:
            for ks in range(40):
                for T in range(2):
                    for mt in range(2):
                        c = v(acc[T][mt], 16) if ks else '0'
                        mf.append(f'{M32} {v(acc[T][mt], 16)}, {v(wreg(2 * ks + T), 4)}, {a_(self.x_reg(ks, mt), 4)}, {c}')
            e(f's_mul_i32 s33, s{sC}, {RSTR}')
            e(f's_add_u32 s33, s33, {RG}')
            e(f's_lshl_b32 s34, s{sW}, 12')
            e('s_add_u32 s33, s33, s34')

            def wq(g):
                t = f's_mov_b32 m0, s34\nbuffer_load_dwordx4 {v(vL16)}, {WS}, s33 offen offset:{(g % 4) * 1024} sc1 {cfg.ntq} lds #wq{g // 4}'
                return t + ('\ns_add_u32 s33, s33, 16384\ns_add_u32 s34, s34, 16384' if g % 4 == 3 else '')
            lead, u0 = cfg.wlead, cfg.xpre[1]
            for g in range(lead):
                e(wq(g))
            for u in range(cfg.xpre[0], u0):
                for x in self.x_read(u, False):
                    e(x)
            late_addresses()
            e('s_waitcnt lgkmcnt(0)')
            for x in self.x_dma(u0):
                e(x)
            e('@wait wq0')
            e('s_barrier')
            for n in range(DW):
                e(load_w(n))
            for ch in range(1, 5):
                spread(after, [f'@wait wq{ch}\ns_barrier'], 32 * ch - 2 * DW)
            spread(after, [wq(g) for g in range(lead, 20)], 0, 8)
            step = cfg.xstep
            for u in range(u0, 20):
                at = (u - u0) * step
                if u + 1 < 20:
                    items = self.x_dma(u + 1)
                    if u - 2 >= u0:
                        items[0] = self.x_done(u - 2) + '\n' + items[0]
                    spread(after, items, at + 1, 2)
                rd = at + step + 1
                assert rd + 4 < 16 * (u // 2), (u, rd)
                assert u < 14 or rd > 16 * (u // 2) - 105
                spread(after, self.x_read(u), rd, 1)
            spread(after, [load_w(n) for n in range(DW, 80)], 0, 2)
            spread(after, [self.colsum_dma(CSQ, 35, SP, 'csq')], 30)
            spread(after, ['@wait csq'], 32 * 3 - 2 * DW - 1)
            spread(after, stat_ld, 60, 4)

            def cs():
                self.colsum(E, SP + 1)
                self.e(f'v_cmp_gt_u32 vcc, 512, {v(vL16)}')
                self.e(f'v_cndmask_b32 {v(E + 1)}, 0, {v(E)}, vcc')
                self.e(f'v_cndmask_b32 {v(E + 2)}, {v(E)}, 0, vcc')
                for q in range(4):
                    self.e(f'v_accvgpr_write_b32 {a_(aCQ + q)}, {v(E + 1 + q // 2)}')
            fill(after, self.capture(cs), 88, 116)
            fill(after, self.capture(stats), 119, 150)
            g2 = [f's_add_u32 s{sVAL}, s{sTAG}, {SEQ_G2}'] + [f'v_mov_b32 {v(vT0 + q)}, s{sVAL}' for q in range(4)]
            g2 += ['s_lshl_b32 s39, s2, 7', f's_add_u32 s39, s39, {G2}', f's_cmp_eq_u32 s{sW}, 0\ns_cselect_b32 s36, 0, {OOB}',
                   f'v_add_u32 {v(SP + 2)}, s36, {v(vL16)}',
                   f's_mov_b64 exec, 0xff\nbuffer_store_dwordx4 {v(vT0, 4)}, {v(SP + 2)}, {WS}, s39 offen sc1\ns_mov_b64 exec, -1',
                   f's_mov_b32 s39, {G2}', f's_mul_i32 s47, s{sJ}, {4 * RSTR}', f's_mul_i32 s36, s{sW}, {RSTR}',
                   's_add_u32 s47, s47, s36', f's_add_u32 s47, s47, {RG + RG_W2 + 20 * 1024}']
            self.w2n = 0
            if cfg.late:
                spread(after, self.nc_stores, cfg.nc_at, 1)
                spread(after, [f'v_mov_b32 {v(SP + 3)}, {v(vG2)}'], cfg.nc_at + 8)
                n_in = 0
            else:
                spread(after, g2, 0, 1, 4)
                g2ld = f'buffer_load_dword {v(vT0)}, {v(vG2)}, {WS}, s39 offen sc1'
                spread(after, [g2ld], cfg.g2[0])
                spread(after, [self.late_check(g2ld, f'v_cmp_ne_u32 vcc, s{sVAL}, {v(vT0)}')], cfg.g2[1])
                n_in = (160 - cfg.g2[1] - 1) // 3
                fill(after, [load_wo(i) for i in range(min(n_in, 12))], cfg.g2[1] + 1, 160)
            if cfg.prew:
                spread(after, [f's_add_u32 s36, s24, 0x100000\nv_mov_b32 {v(vT3)}, s{sTAG}\n'
                               f'buffer_store_dwordx4 {v(vT0, 4)}, {v(vKVS)}, {WS}, s24 offen sc1 #nc',
                               f'buffer_store_dwordx4 {v(vT0, 4)}, {v(vKVS)}, {WS}, s36 offen sc1 #nc'], cfg.nc_at + 6, 1)
                assert cfg.late
            if cfg.te and cfg.tat:
                spread(after, self.touch_all(cfg.te), cfg.tat)
            spread(after, ['s_barrier'], 159)
            if L == cfg.fine:
                for g in (0, 23, 55, 87, 119, 140):
                    spread(after, self.capture(lambda: self.stamp(f'p1_{L}_g{g}')), g, 0)
            self.weave(mf, after)
            self.stamp(f'p1_{L}_gemm')
            e(f's_mul_i32 s37, s{sC}, {RSTR}')
            e(f's_mul_i32 s38, s{sW}, 15360')
            e('s_add_u32 s37, s37, s38')
            e(f's_add_u32 s37, s37, {RG + RG_W1}')
            e(f's_add_u32 s38, s38, {LDS_W1}')
            self.w1q = []
            for i in range(15):
                t = f's_mov_b32 m0, s38\nbuffer_load_dwordx4 {v(vL16)}, {WS}, s37 offen offset:{(i % 4) * 1024} sc1 {cfg.nt1} lds'
                self.w1q.append(t + ('\ns_add_u32 s37, s37, 4096\ns_add_u32 s38, s38, 4096' if i % 4 == 3 else ''))
            for q in range(4):
                e(self.mean_term(q % 2, q // 2))
                if cfg.rese and q < 2:
                    b = R + 10 * q
                    for z in range(4):
                        e(f'v_lshlrev_b32 {v(b + 2 * z)}, 16, {v(R + 12 + 4 * q + z)}')
                        e(f'v_and_b32 {v(b + 2 * z + 1)}, 0xffff0000, {v(R + 12 + 4 * q + z)}')
                    e(f'v_lshlrev_b32 {v(b + 8)}, 16, {v(D16 + q)}')
                    e(f'v_and_b32 {v(b + 9)}, 0xffff0000, {v(D16 + q)}')
            if cfg.late:
                self.kpart(0, True)
                self.stamp('k0_0_')
                for x in g2[:9] + ['@wait nc', 's_barrier'] + g2[9:]:
                    e(x)
                self.stamp('nc_0_')
                body = self.capture(lambda: self.kpart(1, True))
            else:
                body = self.capture(lambda: [self.kpart(0, True), self.kpart(1, True)])
            extra = [f'buffer_load_dwordx2 {v(SP, 2)}, {v(vOM)}, {WS}, s20 offen sc1 {cfg.ntt}',
                     f'buffer_load_dwordx2 {v(SP, 2)}, {v(vOM)}, {WS}, s21 offen sc1 {cfg.ntt}',
                     f'buffer_load_dwordx2 {v(SP, 2)}, {v(vOR)}, {WS}, s22 offen sc1 {cfg.ntt}'] if 'o' in cfg.tl else []
            if cfg.te and not cfg.tat:
                extra = self.touch_all(cfg.te) + extra
            wo_next = cfg.wo0 if cfg.late else 20
            extra += [load_wo(i) for i in range(min(n_in, 12), wo_next)]
            if not cfg.late:
                extra += self.side(0)
        else:
            mf, after, boundary, tail_b = chain
            B = len(mf)
            for n in range(80):
                for T in range(2):
                    c = v(acc[T][n // 40], 16) if n else '0'
                    pre = f'@need {v(wreg(2 * n), 4)} {v(wreg(2 * n + 1), 4)} {v(areg(n), 4)}\n' if T == 0 else ''
                    mf.append(f'{pre}{M32} {v(acc[T][n // 40], 16)}, {v(wreg(2 * n + T), 4)}, {v(areg(n), 4)}, {c}')
            pour(mf, after, self.capture(early_addresses), B - 58, B - 30, 2)
            boundary(B, 4 * L + F_X, [load_a(n) for n in range(cfg.db)], [load_w(n) for n in range(DW)])
            gate = B + cfg.g1b[1]
            self.gate(after, B + cfg.g1b[0], gate, vPL32, 33, 4 * L + F_X)
            for n in range(cfg.db, 80):
                at = B + 2 * (n - cfg.d1)
                spread(after, [load_a(n)], max(at, gate + n - 40) if n >= 40 else at)
            spread(after, stat_ld[:2], B + 9, 6)
            spread(after, stat_ld[2:], gate + 9, 2)
            spread(after, [load_w(n) for n in range(DW, 160)], B, 1)
            last = tail_b(B, 6)
            spread(after, ['s_barrier'], last + 1)
            pour(mf, after, self.capture(lambda: stats((0,))), last + 1, B + 78, 5)
            pour(mf, after, self.capture(late_addresses), last + 2, B + 80, 6)
            spread(after, [self.mean_term(0, 0), self.mean_term(1, 0)], B + 82, 1)
            pour(mf, after, self.capture(lambda: stats((1,))) + self.capture(lambda: self.kpart(0, False)), B + 86, B + 156, cfg.cap1)
            for q in (80, 81):
                mf[B + q] = mf[B + q].rsplit(', ', 1)[0] + ', 0'
            self.weave(mf, after)
            e(self.mean_term(0, 1))
            e(self.mean_term(1, 1))
            self.stamp(f'p1_{L}_gemm')
            body = self.capture(lambda: self.kpart(1, True))
            extra = [load_wo(i) for i in range(cfg.wo1)]
            wo_next = cfg.wo1
        after = {}
        fill(after, extra, 1, len(body) - 8)
        self.weave(body, after)

        self.stamp(f'k1_{L}_')
        KV2 = A00
        e(f's_lshl_b32 s33, s{sW}, 10')
        e(f'v_add_u32 {v(vT1)}, s33, {v(vB3)}')
        e(f's_lshl_b32 s33, s{sW}, 2')
        e(f'v_add_u32 {v(vT2)}, s33, {v(vB3)}')
        e(f's_add_u32 s{sVAL}, s{sTAG}, {SEQ_KV + L}')
        e(f'v_mov_b32 {v(D16 + 3)}, s{sVAL}')
        for q in range(4):
            e(f'ds_write_b128 {v(vWE)}, {v(KV1 + 4 * q, 4)} offset:{EXO + 1024 * q}')
        e(f'ds_write_b128 {v(vWE)}, {v(KV2, 4)} offset:{EXO + 4096}')
        e('s_waitcnt lgkmcnt(0)')
        e('s_barrier')
        for src in range(4):
            e(f'ds_read_b128 {v(E + 4 * src, 4)}, {v(vT1)} offset:{EXO + 5120 * src}')
            e(f'ds_read_b32 {v(E + 16 + src)}, {v(vT2)} offset:{EXO + 5120 * src + 4096}')
        for h in range(2):
            e(f'v_pk_add_f32 {v(E + 2 * h, 2)}, {v(E + 2 * h, 2)}, {v(E + 4 + 2 * h, 2)}')
        for h in range(2):
            e(f'v_pk_add_f32 {v(E + 8 + 2 * h, 2)}, {v(E + 8 + 2 * h, 2)}, {v(E + 12 + 2 * h, 2)}')
        e(f'v_pk_add_f32 {v(E + 16, 2)}, {v(E + 16, 2)}, {v(E + 18, 2)}')
        for h in range(2):
            e(f'v_pk_add_f32 {v(E + 2 * h, 2)}, {v(E + 2 * h, 2)}, {v(E + 8 + 2 * h, 2)}')
        e(f'v_add_f32 {v(E + 16)}, {v(E + 16)}, {v(E + 17)}')
        e(f'v_cvt_pk_bf16_f32 {v(D16)}, {v(E)}, {v(E + 1)}')
        e(f'v_cvt_pk_bf16_f32 {v(D16 + 1)}, {v(E + 2)}, {v(E + 3)}')
        e(f'v_cvt_pk_bf16_f32 {v(D16 + 2)}, {v(E + 16)}, 0')
        e(f'buffer_store_dwordx4 {v(D16, 4)}, {v(vKVS)}, {WS}, s24 offen sc1')
        e('s_barrier')
        self.stamp(f'p1_{L}_kvpub')
        G = A00
        gld = [f'buffer_load_dwordx4 {v(G + 4 * x, 4)}, {v(vKVL)}, {WS}, s{25 + x} offen sc1' for x in range(7)]
        body = self.capture(lambda: [self.softmax(acc[1][mt], STT + 4 * mt, acc[1][mt], True)
                                     for mt in range(1 if L and cfg.qa else 0, 2)])
        extra = [load_wo(i) for i in range(wo_next, 25)]
        if L == 0 and cfg.late:
            g2ld = f'buffer_load_dword {v(SP + 2)}, {v(SP + 3)}, {WS}, s39 offen sc1'
            e(f's_add_u32 s36, s{sTAG}, {SEQ_G2}')
            extra = [g2ld] + extra + [self.late_check(g2ld, f'v_cmp_ne_u32 vcc, s36, {v(SP + 2)}')]
        if L == 0:
            extra += self.side(1)
        after = {}
        fill(after, extra, 0, len(body) - cfg.gat[L])
        self.weave(body, after)
        if L == 0 and not cfg.rese:
            self.tile_addresses('row', 0, 33, vT0, vT2)
            for h in range(2):
                e(f'buffer_load_dwordx4 {v(R + 10 * h + 4, 4)}, {v(vT0)}, {s_(S_X, 4)}, s33 offen')
                e(f'buffer_load_dword {v(R + 10 * h + 9)}, {v(vT1)}, {s_(S_X, 4)}, s34 offen')
                if h == 0:
                    e('s_add_u32 s33, s33, 40960')
                    e('s_add_u32 s34, s34, 40960')
        self.stamp(f'p1_{L}_smq')
        e(f's_lshr_b32 s33, s{sW}, 1')
        e('s_lshl_b32 s33, s33, 10')
        e(f's_and_b32 s34, s{sW}, 1')
        e('s_lshl_b32 s34, s34, 3')
        e('s_add_u32 s33, s33, s34')
        e(f'v_add_u32 {v(E + 10)}, s33, {v(vB3)}')
        e(f'v_lshrrev_b32 {v(E + 11)}, 1, {v(vL16)}')
        e(f'v_add_u32 {v(E + 11)}, {LDS_EX + 2048}, {v(E + 11)}')
        e(f's_lshl_b32 s33, s{sW}, 1')
        e(f'v_add_u32 {v(E + 12)}, s33, {v(E + 11)}')
        lab = self.label('kv')
        e(f's_mov_b32 s{sCNT}, 0')
        e(f'{lab}:')
        for x in gld:
            e(x)
        e(f's_add_u32 s{sCNT}, s{sCNT}, 1')
        e(f's_cmp_gt_u32 s{sCNT}, 0x40000')
        e('s_cbranch_scc1 Lend')
        for i in range(5):
            if i % 2 == 0:
                e(f'v_lshlrev_b32 {v(E + i)}, 16, {v(D16 + i // 2)}')
            else:
                e(f'v_and_b32 {v(E + i)}, 0xffff0000, {v(D16 + i // 2)}')
        e(f'v_mov_b32 {v(vT0)}, 0')
        for x in range(7):
            for i in range(5):
                e(f'v_dot2c_f32_bf16 {v(E + i)}, s{sHI if i % 2 else sLO}, {v(G + 4 * x + i // 2)}')
            e(f'v_bitop3_b32 {v(vT0)}, {v(vT0)}, {v(G + 4 * x + 3)}, s{sVAL} bitop3:0xf6')
        e(f'v_cmp_ne_u32 vcc, 0, {v(vT0)}')
        e(f's_cbranch_vccnz {lab}')
        self.stamp(f'p1_{L}_kvgot')
        if L == 0:
            for x in self.side(2):
                e(x)
        def addresses():
            self.k_addresses(24, 5, self.act(L, OF_O), self.ostride(), 20480)
            self.flag_line(28, 1, sSG)
            self.e(f's_lshl_b32 s62, s{sW}, 5')
            self.e('s_add_u32 s28, s28, s62')
            self.e(f'v_lshrrev_b32 {v(vPL32)}, 2, {v(vL16)}')
            self.e(f'v_and_b32 {v(vPL8)}, 28, {v(vPL32)}')
            self.e(f'v_and_b32 {v(vPL32)}, 124, {v(vPL32)}')
        pad = self.capture(addresses)
        late = self.capture(lambda: self.tile_addresses('x1', L, 29, vP, vT2))

        def slack(n):
            for _ in range(n):
                if pad:
                    e(pad.pop(0))
        e(f'v_cvt_pk_bf16_f32 {v(E + 6)}, {v(E)}, {v(E + 1)}')
        e(f'v_cvt_pk_bf16_f32 {v(E + 7)}, {v(E + 2)}, {v(E + 3)}')
        e(f'v_cvt_pk_bf16_f32 {v(E + 8)}, {v(E + 4)}, {v(E + 4)}')
        e(f'ds_write_b64 {v(E + 10)}, {v(E + 6, 2)} offset:{EXO}')
        e(f'ds_write_b16 {v(E + 12)}, {v(E + 8)}')
        slack(8)
        e('s_waitcnt lgkmcnt(0)')
        e('s_barrier')
        e(f'ds_read_b64 {v(D16 + 8, 2)}, {v(E + 11)}')
        e(f'ds_read_b128 {v(D16, 4)}, {v(vB3)} offset:{EXO}')
        e(f'ds_read_b128 {v(D16 + 4, 4)}, {v(vB3)} offset:{EXO + 1024}')
        slack(10)
        for mt in range(2):
            e(f'{M32H} {v(acc[0][mt], 16)}, {v(D16 + 8, 2)}, {v(acc[1][mt] + 8, 2)}, 0')
            slack(5)
        for mt in range(2):
            O, Q = acc[0][mt], acc[1][mt]
            e(f'{M32} {v(O, 16)}, {v(D16, 4)}, {v(Q, 4)}, {v(O, 16)}')
            e(f'{M32} {v(O, 16)}, {v(D16 + 4, 4)}, {v(Q + 4, 4)}, {v(O, 16)}')
        slack(100)
        for mt in range(2):
            O, P = acc[0][mt], E + 4 * mt
            e(f'v_add_f32 {v(O + 14)}, {hex(EPS_DEN)}, {v(O + 14)}')
            e(f'v_rcp_f32 {v(O + 14)}, {v(O + 14)}')
            for i in range(5):
                if mt:
                    e(f'v_pk_mul_f32 {v(O + 4 + 2 * i, 2)}, {v(O + 4 + 2 * i, 2)}, {v(O + 14, 2)} op_sel_hi:[1,0]')
                else:
                    for z in range(2):
                        e(f'v_mul_f32 {v(O + 4 + 2 * i + z)}, {v(O + 4 + 2 * i + z)}, {v(O + 14)}')
            for i in range(5):
                e(f'v_cvt_pk_bf16_f32 {v(P + i if i < 4 else E + 8 + mt)}, {v(O + 4 + 2 * i)}, {v(O + 5 + 2 * i)}')
            e(f'buffer_store_dwordx4 {v(P, 4)}, {v(vOM)}, {WS}, s{20 + mt} offen {self.st} #o{L}')
        e(f'v_permlane32_swap_b32 {v(E + 8)}, {v(E + 9)}')
        e(f'buffer_store_dwordx2 {v(E + 8, 2)}, {v(vOR)}, {WS}, s22 offen {self.st} #o{L}')
        for x in late:
            e(x)
        if L == 0 and not cfg.rese:
            for h in range(2):
                b = R + 10 * h
                for q in range(4):
                    e(f'v_lshlrev_b32 {v(b + 2 * q)}, 16, {v(b + 4 + q)}')
                    e(f'v_and_b32 {v(b + 2 * q + 1)}, 0xffff0000, {v(b + 4 + q)}')
                e(f'v_lshlrev_b32 {v(b + 8)}, 16, {v(b + 9)}')
                e(f'v_and_b32 {v(b + 9)}, 0xffff0000, {v(b + 9)}')
        e(self.flag_store(23, 4 * L + F_O, vT0, f'o{L}'))
        self.stamp(f'p1_{L}_end')
        if L == 0:
            e('s_add_u32 s62, s29, 40960')
            e('s_add_u32 s63, s30, 40960')
            for vo, so in ((vP, 29), (vP + 1, 30), (vP, 62), (vP + 1, 63)) if 'x' in cfg.tl else ():
                e(f'buffer_load_dword {v(SP)}, {v(vo)}, {self.xbuf()}, s{so} offen sc1')
            for x in self.side(3):
                e(x)

    def k_addresses(self, d, nk, abase, gstride, mstride):
        e = self.e
        e(f's_mul_i32 s{d}, s{sSG}, {gstride}')
        e(f's_add_u32 s{d}, s{d}, {abase}')
        e(f's_mul_i32 s{d + 1}, s{sW}, {nk * 1024}')
        e(f's_add_u32 s{d}, s{d}, s{d + 1}')
        e(f's_lshr_b32 s{d + 2}, s{sW}, 1')
        e(f's_mul_i32 s{d + 2}, s{d + 2}, {mstride}')
        e(f's_add_u32 s{d + 1}, s{d}, {mstride}')
        e(f's_sub_u32 s{d + 1}, s{d + 1}, s{d + 2}')
        e(f's_add_u32 s{d}, s{d}, s{d + 2}')
        e(f's_add_u32 s{d + 2}, s{d}, {2 * mstride}')
        e(f's_add_u32 s{d + 3}, s{d + 1}, {2 * mstride}')

    def k_steps(self, steps, nk, wreg, areg):
        mf = []
        for s in steps:
            acc = (KX0, KX1)[s % 2]
            for k in range(nk):
                for t in range(5):
                    c = v(acc + 4 * t, 4) if k else '0'
                    pre = f'@need {v(areg(s * nk + k), 4)}\n' if t == 0 else ''
                    mf.append(f'{pre}{M16} {v(acc + 4 * t, 4)}, {wreg(k, t)}, {v(areg(s * nk + k), 4)}, {c}')
        return mf

    def x_writes(self, s):
        return [f'ds_write_b128 {v((vWE, vWO)[s % 2])}, {v((KX0, KX1)[s % 2] + 4 * t, 4)} offset:{EXO + 1024 * t}' for t in range(5)]

    def x_reads(self):
        out = []
        for u in range(2):
            out += [f'ds_read_b128 {v(KZ + 10 * u + 4 * q, 4)}, {v(vRA)} offset:{EXO + 5120 * u + 1024 * q}' for q in range(2)]
            out.append(f'ds_read_b64 {v(KZ + 10 * u + 8, 2)}, {v(vRS)} offset:{EXO + 5120 * u + 4096}')
        return out

    def x_adds(self, h, pk):
        b = R + 10 * h
        if pk:
            return [f'v_pk_add_f32 {v(b + 2 * q, 2)}, {v(b + 2 * q, 2)}, {v(KZ + 10 * u + 2 * q, 2)}' for u in range(2) for q in range(5)]
        return [f'v_add_f32 {v(b + q)}, {v(b + q)}, {v(KZ + 10 * u + q)}' for u in range(2) for q in range(10)]

    def x_weave(self, after, s, b, pos):
        wr, r0 = pos
        spread(after, ['s_waitcnt lgkmcnt(0)\ns_barrier'], b + wr[0] - 1)
        for t, x in enumerate(self.x_writes(s)):
            spread(after, [x], b + wr[t])
        spread(after, ['s_waitcnt lgkmcnt(0)\ns_barrier'], b + r0)
        spread(after, self.x_reads(), b + r0 + 1, 1)

    def x_block(self, s, pad):
        out, k = ['s_waitcnt lgkmcnt(0)', 's_barrier'], -(-len(pad) // 5)
        for t, x in enumerate(self.x_writes(s)):
            out += [x] + (pad[t] if pad and isinstance(pad[0], list) else pad[k * t:k * t + k])
        return out + ['s_waitcnt lgkmcnt(0)', 's_barrier'] + self.x_reads()

    def finish_rows(self, h, seq, pk):
        e, st, b, P, t = self.e, self.st, R + 10 * h, KZ, KZ + 6
        for q in range(5):
            e(f'v_cvt_pk_bf16_f32 {v(P + q)}, {v(b + 2 * q)}, {v(b + 2 * q + 1)}')
        buf = self.xbuf() if seq else OUT
        e(f'buffer_store_dwordx4 {v(P, 4)}, {v(vP)}, {buf}, s29 offen {st} #x{seq}{h}')
        e(f'buffer_store_dword {v(P + 4)}, {v(vP + 1)}, {buf}, s30 offen {st} #x{seq}{h}')
        if seq:
            if pk:
                e(f'v_pk_add_f32 {v(t, 2)}, {v(b, 2)}, {v(b + 2, 2)}')
                e(f'v_pk_mul_f32 {v(t + 2, 2)}, {v(b, 2)}, {v(b, 2)}')
                for i in range(1, 5):
                    if i > 1:
                        e(f'v_pk_add_f32 {v(t, 2)}, {v(t, 2)}, {v(b + 2 * i, 2)}')
                    e(f'v_pk_fma_f32 {v(t + 2, 2)}, {v(b + 2 * i, 2)}, {v(b + 2 * i, 2)}, {v(t + 2, 2)}')
                e(f'v_add_f32 {v(t)}, {v(t)}, {v(t + 1)}')
                e(f'v_add_f32 {v(t + 2)}, {v(t + 2)}, {v(t + 3)}')
            else:
                e(f'v_add_f32 {v(t)}, {v(b)}, {v(b + 1)}')
                e(f'v_mul_f32 {v(t + 2)}, {v(b)}, {v(b)}')
                for i in range(1, 10):
                    if i > 1:
                        e(f'v_add_f32 {v(t)}, {v(t)}, {v(b + i)}')
                    e(f'v_fmac_f32 {v(t + 2)}, {v(b + i)}, {v(b + i)}')
            e(f'v_permlane32_swap_b32 {v(t)}, {v(t + 2)}')
            e(f'v_add_f32 {v(t + 1)}, {v(t)}, {v(t + 2)}')
            e(f'v_add_f32 {v(t)}, {v(t)}, {v(t + 2)}')
            e(f'v_permlane16_swap_b32 {v(t)}, {v(t + 1)}')
            e(f'v_add_f32 {v(t)}, {v(t)}, {v(t + 1)}')
            e(f'v_add_f32_dpp {v(t)}, {v(t)}, {v(t)} row_ror:8 row_mask:0xf bank_mask:0xf')
            e(f'buffer_store_dword {v(t)}, {v(vP + 2)}, {WS}, s31 offen {st} #x{seq}{h}')
        if h == 0:
            e('s_add_u32 s29, s29, 40960')
            e('s_add_u32 s30, s30, 40960')
            if seq:
                e('s_add_u32 s31, s31, 2048')

    def gate(self, after, at_load, at_check, vpoll, sflag, seq):
        pl = f'buffer_load_dword {v(vT0)}, {v(vpoll)}, {WS}, s{sflag} offen sc1'
        spread(after, [f's_add_u32 s{sVAL}, s{sTAG}, {seq}\n' + pl], at_load)
        spread(after, [self.late_check(pl, f'v_cmp_ne_u32 vcc, s{sVAL}, {v(vT0)}')], at_check)

    def k_load(self, i, nk, areg):
        s, k = divmod(i, nk)
        t = f'buffer_load_dwordx4 {v(areg(i), 4)}, {v(vL16)}, {WS}, s{24 + s} offen offset:{(k % 4) * 1024} sc1'
        return t + (f'\ns_add_u32 s{24 + s}, s{24 + s}, 4096' if k % 4 == 3 and k + 1 < nk else '')

    def chain(self, L):
        e, cfg = self.e, self.cfg
        ring = lambda n: 44 + 4 * (n % 10)
        wo = lambda k, t: v(WO_E + 4 * (5 * k + t), 4) if k < 4 else v(WO_L + 4 * t, 4)
        WB, SB, BQ = 176, 236, 252
        acc = lambda lt, n: (212, 144)[n // 2] + 4 * (3 * (n % 2) + lt)
        wreg = lambda n: WB + (n % 9) * 4
        seq1 = 4 * L + F_X1

        self.poll(28, vPL8, 4 * L + F_O)
        self.stamp(f'p2_{L}_go')
        for i in range(cfg.d2):
            e(self.k_load(i, 5, ring))
        e(f's_mul_i32 s16, s{sSW}, 81920')
        e(f's_add_u32 s16, s16, {self.act(L, X1F_O)}')
        for n in range(1, 4):
            e(f's_add_u32 s{16 + n}, s16, {20480 * n}')
        e(f's_lshl_b32 s20, s{sSW}, 12')
        e(f's_add_u32 s20, s20, {self.act(L, ST1_O)}')
        mf, after = self.k_steps((0, 1), 5, wo, ring), {}
        self.x_weave(after, 0, 25, cfg.kp2)
        spread(after, [self.k_load(i, 5, ring) for i in range(cfg.d2, cfg.d2 + 10)], 0, 5)
        if L == 0:
            rest = self.side(4) + self.w1q
            if rest:
                fill(after, rest, 2, 48)
        self.weave(mf, after)
        more = [self.k_load(i, 5, ring) for i in range(cfg.d2 + 10, 20)]
        for x in self.x_block(1, self.x_adds(0, True) + more) + self.x_adds(0, True):
            e(x)
        self.finish_rows(0, seq1, True)
        self.stamp(f'p2_{L}_a')

        mf, after = self.k_steps((2, 3), 5, wo, ring), {}
        self.x_weave(after, 2, 25, cfg.kp2)
        spread(after, [self.flag_store(32, seq1, vT3, f'x{seq1}0') + '\ns_add_u32 s32, s32, 12288'], cfg.f2)

        def boundary(B, seq, loads, reads, pending=True):
            lab = self.label('gate')
            pl = f'buffer_load_dword {v(vT0)}, {v(vPL32)}, {WS}, s33 offen sc1'
            ck = f'v_cmp_ne_u32 vcc, s{sVAL}, {v(vT0)}'
            pre = self.capture(lambda: self.flag_line(33, 0, sSW))
            spread(after, pre + [f's_add_u32 s{sVAL}, s{sTAG}, {seq}\n' + pl], B - cfg.gl[0 if pending else 1], 0)
            spin = self.capture(lambda: self.spin(pl, ck))
            check = ['s_waitcnt vmcnt(0)', ck, f's_cbranch_vccz {lab}'] + spin + [f'{lab}:', 's_add_u32 s33, s33, 12288']
            n0, n1 = cfg.bl
            cw = cfg.cw[0 if pending else 1]
            other = (self.x_adds(1, True) if pending else []) + reads
            k, mid, pad = -(-len(other) // 5), loads[n0:n1], []
            for t in range(5):
                here = other[k * t:k * t + k]
                if t == cw - 1:
                    here += check + loads[:n0]
                if t >= cw:
                    here = mid[(t - cw) * len(mid) // (5 - cw):(t - cw + 1) * len(mid) // (5 - cw)] + here
                pad.append(here)
            items = (check + loads[:n0] if cw == 0 else []) + self.x_block(3, pad) + (mid if cw == 5 else []) + loads[n1:]
            spread(after, items, B - 1, 0)

        def tail(seq):
            def place(B, cap):
                last = pour(mf, after, self.x_adds(1, False) + self.capture(lambda: self.finish_rows(1, seq, False)), B + 2, B + 70, cap)
                at = last + (cfg.fw[0] if cap < 5 else cfg.fw[1])
                spread(after, [self.flag_store(32, seq, vT3, f'x{seq}1')], at)
                return at
            return place

        B3 = len(mf)
        areg = lambda n: ring(20 + n)

        def load_w(n):
            b, off = lds(LDS_W1 + (n % 60) * 1024)
            return f'ds_read_b128 {v(wreg(n), 4)}, {v(b)} offset:{off}'

        def load_a(n):
            if n >= 80:
                return self.k_load(n - 80, 12, lambda i: areg(80 + i))
            h, r = divmod(n, 40)
            ks, m = divmod(r, 2)
            t = f'buffer_load_dwordx4 {v(areg(n), 4)}, {v(vL16)}, {self.xbuf()}, s{16 + 2 * h + m} offen offset:{(ks % 4) * 1024} sc1'
            return t + (f'\ns_add_u32 s{16 + 2 * h + m}, s{16 + 2 * h + m}, 4096' if ks % 4 == 3 else '')
        for h in range(2):
            for ks in range(20):
                for m in range(2):
                    for lt in range(3):
                        n, wn = 2 * h + m, 60 * h + 3 * ks + lt
                        c = v(acc(lt, n), 4) if ks else '0'
                        pre = ''
                        if lt == 0:
                            regs = [v(areg(40 * h + 2 * ks + m), 4)] + ([v(wreg(wn + q), 4) for q in range(3)] if m == 0 else [])
                            pre = '@need ' + ' '.join(regs) + '\n'
                        mf.append(f'{pre}{M16} {v(acc(lt, n), 4)}, {v(wreg(wn), 4)}, {v(areg(40 * h + 2 * ks + m), 4)}, {c}')
        B4 = len(mf)
        mf += self.k_steps(range(4), 12, lambda k, t: a_(4 * (5 * k + t), 4), lambda i: areg(80 + i))
        DW, D = 5, cfg.d3
        side5 = self.w2_loads(cfg.w2split[5]) if L == 0 else []
        if side5:
            fill(after, side5, 0, 40)
        boundary(B3, seq1, [load_a(n) for n in range(cfg.db)], [load_w(n) for n in range(DW)])

        def addresses():
            e = self.e
            e(f's_mul_i32 s35, s{sSW}, {self.hstride()}')
            e(f's_add_u32 s35, s35, {self.act(L, HF_O)}')
            e(f's_lshr_b32 s34, s{sC}, 1')
            e('s_mul_i32 s34, s34, 3072')
            e('s_add_u32 s35, s35, s34')
            e(f's_lshl_b32 s34, s{sPAR}, 11')
            e('s_add_u32 s34, s34, s35')
            e(f's_lshl_b32 s36, s{sPAR}, 9')
            e('s_add_u32 s35, s35, s36')
            self.flag_line(36, 1, sSW)
            e(f's_lshl_b32 s21, s{sC}, 2')
            e('s_add_u32 s36, s36, s21')
            self.k_addresses(24, 12, self.act(L, HF_O), self.hstride(), 49152)
            e('s_mov_b32 s44, 0')
            e('s_mov_b32 s45, 0xffff0000')

        def bias():
            e = self.e
            e(f's_lshl_b32 s21, s{sKSA}, 6')
            e(f's_lshl_b32 s22, s{sKSS}, 1')
            e(f's_add_u32 s22, s22, s{sPAR}')
            e('s_lshl_b32 s22, s22, 5')
            self.lane_offsets(BQ, vT2, 0, 64, gs=16)
            self.lane_offsets(vBS, vT2, 0, 4, gs=8)
            e(f'buffer_load_dwordx4 {v(BQ, 4)}, {v(BQ)}, {B2}, s21 offen')
            e(f'buffer_load_dword {v(vBS)}, {v(vBS)}, {B2}, s22 offen')

        def bias_add():
            for q in range(10):
                src = BQ + q // 2 if q < 8 else vBS
                self.e(f'v_and_b32 {v(vT2)}, 0xffff0000, {v(src)}' if q % 2 else f'v_lshlrev_b32 {v(vT2)}, 16, {v(src)}')
                for h in range(2):
                    self.e(f'v_add_f32 {v(R + 10 * h + q)}, {v(R + 10 * h + q)}, {v(vT2)}')

        def stats(h):
            e = self.e
            a, b = SB + 8 * h, SB + 8 * h + 4
            self.pair_stats(a, b)
            e(f'v_mul_f32 {v(a + 1)}, {v(a + 1)}, {v(a + 2)}')
            for q in range(3):
                e(f'v_mov_b32 {v(b + q)}, {v(a + q)}')
            for q in range(3):
                e(f'v_permlane16_swap_b32 {v(a + q)}, {v(b + q)}')
            for x in (a, b):
                e(f'v_cndmask_b32 {v(vT2)}, {v(x)}, {v(x + 1)}, s[44:45]')
                self.hi_lo(x, vT2, x + 3)

        def cs():
            e, PK = self.e, KX0
            self.colsum(PK, vT1)
            e(f'v_lshrrev_b32 {v(PK + 1)}, 8, {v(vL16)}')
            for lt in range(3):
                e(f'v_cmp_eq_u32 s[22:23], {lt}, {v(PK + 1)}')
                e(f'v_accvgpr_read_b32 {v(PK + 3)}, {a_(aB1 + lt)}')
                e(f'v_cndmask_b32 {v(PK + 2)}, 0, {v(PK)}, s[22:23]')
                e(f'v_cndmask_b32 {v(PK + 2)}, {v(PK + 2)}, {v(PK + 3)}, s[44:45]')
                e(f'v_accvgpr_write_b32 {a_(aC1 + 2 * lt)}, {v(PK + 2)}')
                e(f'v_accvgpr_write_b32 {a_(aC1 + 2 * lt + 1)}, {v(PK + 2)}')

        def terms(h):
            return [f'{M16H} {v(acc(lt, n), 4)}, {a_(aC1 + 2 * lt, 2)}, {v(SB + 4 * n, 2)}, {v(acc(lt, n), 4)}'
                    for n in (2 * h, 2 * h + 1) for lt in range(3)]

        def finish(h):
            e, st, PK = self.e, self.st, KZ
            for m in range(2):
                n = 2 * h + m
                a = acc(0, n)
                for q in range(6):
                    for z in range(2):
                        x = a + 2 * q + z
                        e(f'v_mul_f32 {v(x)}, {v(x)}, {v(SB + 4 * n + 2)}')
                        e(f'v_mul_f32 {v(x)}, {v(x)}, abs({v(x)})')
                    dst = PK + 4 * m + q if q < 4 else PK + 8 + 2 * m + q - 4
                    e(f'v_cvt_pk_bf16_f32 {v(dst)}, {v(a + 2 * q)}, {v(a + 2 * q + 1)}')
                    e(f'v_pk_max_i16 {v(dst)}, {v(dst)}, 0')
                    if q == 3:
                        e(f'buffer_store_dwordx4 {v(PK + 4 * m, 4)}, {v(vL16)}, {WS}, s34 offen {st} #h{h}{L}')
                        e('s_add_u32 s34, s34, 49152')
            e(f'v_permlane16_swap_b32 {v(PK + 8)}, {v(PK + 10)}')
            e(f'v_permlane16_swap_b32 {v(PK + 9)}, {v(PK + 11)}')
            e(f'buffer_store_dwordx4 {v(PK + 8, 4)}, {v(vHS)}, {WS}, s35 offen offset:1024 {st} #h{h}{L}')
            e('s_add_u32 s35, s35, 98304')

        spread(after, [load_w(n) for n in range(DW, 120)], B3 + 1, 2)
        g3 = B3 + cfg.g3b[1]
        self.gate(after, B3 + cfg.g3b[0], g3, vPL32, 33, seq1)
        self.gate(after, B3 + cfg.ga[0], B3 + cfg.ga[1], vPL8, 28, 4 * L + F_H)
        spread(after, ['s_add_u32 s28, s28, 4096'], B3 + cfg.ga[1])
        self.gate(after, B3 + cfg.gb[0], B3 + cfg.gb[1], vPL8, 28, 4 * L + F_H)
        need = lambda n: B3 + (3 * n if n < 80 else 240 + 5 * (n - 80))
        for n in range(cfg.db, 128):
            at = max(need(max(n - D, 0)), need(n - 10) + 2 if n - 10 < 80 else need(n - 10) + 4) if n >= 10 else need(0)
            for first, g in ((40, g3), (80, B3 + cfg.ga[1]), (104, B3 + cfg.gb[1])):
                if n >= first:
                    at = max(at, g + n - first)
            assert at < need(n)
            spread(after, [load_a(n)], at)
        st_ld = [f'buffer_load_dwordx4 {v(SB + 4 * n, 4)}, {v(vSTL)}, {WS}, s20 offen offset:{1024 * n} sc1' for n in range(4)]
        spread(after, st_ld[:2], B3 + 14, 6)
        spread(after, st_ld[2:], g3 + 14, 6)
        spread(after, [self.flag_store(36, 4 * L + F_H, vT3, f'h0{L}') + '\ns_add_u32 s36, s36, 4096'], B3 + cfg.fa[2])
        spread(after, [self.flag_store(36, 4 * L + F_H, vT3, f'h1{L}')], B3 + cfg.fb[2])
        seq4 = 0 if L else 4 + F_X
        for s in range(3):
            self.x_weave(after, s, B4 + 60 * (s + 1), cfg.kp4)
        spread(after, terms(0), B3 + cfg.fa[0] - 2, 1, 3)
        spread(after, terms(1), B3 + cfg.fb[0] - 2, 1, 3)
        last = tail(seq1)(B3, cfg.cap3)
        assert last < g3 - 8, (last, g3)
        if L == 0:
            spread(after, ['s_barrier\n' + self.colsum_dma(CS1, 22, vT1, 'cs1')], B3 + 24)
            rest = self.w2_loads(60)
            if rest:
                fill(after, rest, B3 + cfg.w2r[0], B3 + cfg.w2r[1])
            spread(after, ['@wait cs1\ns_barrier'], B3 + 70)
        if L == 0 and cfg.rg:
            assert cfg.late
            g3s = B3 + cfg.g3[0]
            assert cfg.w2r[1] < cfg.g3[0] and cfg.g3[2] < cfg.fb[0]
            spread(after, [f's_add_u32 s22, s{sTAG}, {SEQ_G3}\n' + '\n'.join(f'v_mov_b32 {v(KX1 + 4 + q)}, s22' for q in range(4)) +
                           f'\ns_cmp_eq_u32 s{sW}, 0\ns_cselect_b32 s22, 0, {OOB}\nv_add_u32 {v(KX1 + 8)}, s22, {v(vL16)}\n'
                           f's_lshl_b32 s22, s2, 7\ns_add_u32 s22, s22, {G3}\n@need {a_(0, 240)}\ns_barrier\ns_mov_b64 exec, 0xff\n'
                           f'buffer_store_dwordx4 {v(KX1 + 4, 4)}, {v(KX1 + 8)}, {WS}, s22 offen sc1\ns_mov_b64 exec, -1'], g3s)
            spread(after, [f'v_bfe_u32 {v(KX1 + 9)}, {v(vL16)}, 7, 2\nv_lshl_add_u32 {v(KX1 + 9)}, {v(KX1 + 9)}, 3, s{sSET}\n'
                           f'v_mov_b32 {v(KX1 + 10)}, s{sSW}\nv_cmp_gt_u32 vcc, 512, {v(vL16)}\n'
                           f'v_cndmask_b32 {v(KX1 + 9)}, {v(KX1 + 10)}, {v(KX1 + 9)}, vcc\n'
                           f'v_and_b32 {v(KX1 + 10)}, 0x70, {v(vL16)}\nv_lshlrev_b32 {v(KX1 + 10)}, 3, {v(KX1 + 10)}\n'
                           f'v_lshl_add_u32 {v(KX1 + 9)}, {v(KX1 + 9)}, 10, {v(KX1 + 10)}\ns_mov_b32 s46, {G3}'], g3s + 2)
            self.gate(after, B3 + cfg.g3[1], B3 + cfg.g3[2], KX1 + 9, 46, SEQ_G3)
        a_end = pour(mf, after, self.capture(addresses), B3 + 26, B3 + 70, cfg.cap3 + 0.5)
        if L == 0 and 'h' in cfg.tl:
            for h in range(2):
                spread(after, [f'buffer_load_dwordx2 {v(KX1, 2)}, {v(vL16)}, {WS}, s34 offen sc1',
                               f's_add_u32 s23, s34, 49152\nbuffer_load_dwordx2 {v(KX1, 2)}, {v(vL16)}, {WS}, s23 offen sc1',
                               f'buffer_load_dwordx2 {v(KX1, 2)}, {v(vHS)}, {WS}, s35 offen offset:1024 sc1'],
                       B3 + (cfg.tch[0] if h == 0 else cfg.tch[1]), 2)
            assert a_end < B3 + cfg.tch[0] and cfg.tch[0] + 4 < 71 + 9 and cfg.tch[1] >= cfg.fa[1]
        pour(mf, after, (self.capture(cs) if L == 0 else []) + self.capture(lambda: stats(0)), B3 + 80, B3 + cfg.fa[0] - 3, cfg.cap3)
        pour(mf, after, self.capture(lambda: finish(0)), B3 + cfg.fa[0] + 2, B3 + cfg.fa[1], cfg.cap3)
        more = self.capture(bias) + self.capture(lambda: stats(1))
        more += self.capture(lambda: self.tile_addresses('row' if L else 'x', 1, 29, vP, vT2)) + self.capture(bias_add)
        pour(mf, after, more, max(B3 + cfg.fa[1], last + 1), B3 + 238, cfg.cap3)
        pour(mf, after, self.capture(lambda: finish(1)), B3 + cfg.fb[0] + 2, B3 + cfg.fb[1], 2)
        r1 = cfg.kp4[1] + 9
        pour(mf, after, self.x_adds(0, False), B4 + 60 + r1, B4 + 120, 2)
        fin = pour(mf, after, self.x_adds(0, False) + self.capture(lambda: self.finish_rows(0, seq4, False)),
                   B4 + 120 + r1, B4 + cfg.f4[0], 2)
        assert fin < B4 + 180 + cfg.kp4[1]
        if seq4:
            spread(after, [self.flag_store(32, seq4, vT3, f'x{seq4}0') + '\ns_add_u32 s32, s32, 12288'], B4 + cfg.f4[1])
        pour(mf, after, self.x_adds(1, False), B4 + 180 + r1, B4 + 239, 2)
        if L == 0 and cfg.code2:
            pc = self.label('pc')
            spread(after, [f's_getpc_b64 s[22:23]\n{pc}:\ns_lshl_b32 s21, s{sC}, 2\ns_add_u32 s21, s21, s{sW}\ns_lshl_b32 s21, s21, 8\n'
                           f'v_lshl_add_u32 {v(vT2)}, {v(vL16)}, 3, s21\nv_min_u32 {v(vT2)}, {self.end_label}-{pc}, {v(vT2)}\n'
                           f's_mov_b64 exec, 3\nglobal_load_dword {v(vT2)}, {v(vT2)}, s[22:23]\ns_mov_b64 exec, -1'], B3 + cfg.code2)
        for g in ((B3 - 1, B3 + 119, B4 - 1, B4 + 119) if cfg.fine < 0 else cfg.fg if L + 2 == cfg.fine else ()):
            spread(after, self.capture(lambda: self.stamp(f'c_{L}_g{g}')), g, 0)
        if L == 0:
            spread(after, self.capture(lambda: self.stamp(f'p4_{L}_gemm')), B4 + 238, 0)
            self.p1(1, (mf, after, lambda B, seq, loads, reads: boundary(B, seq, loads, reads, False), tail(seq4)))
            return
        self.weave(mf, after)
        self.stamp(f'p4_{L}_gemm')
        for x in self.x_block(3, []) + self.x_adds(1, True):
            e(x)
        self.finish_rows(1, 0, True)
        self.stamp(f'p4_{L}_end')

    def body(self):
        e = self.e
        self.p1(0)
        self.chain(0)
        self.chain(1)
        e(f's_add_u32 s{sVAL}, s{sTAG}, 16')
        e(f'v_mov_b32 {v(vT0)}, s{sVAL}')
        e(f's_mov_b32 s16, {EPOCH}')
        e(f's_or_b32 s17, s2, s{sW}')
        e('s_cmp_eq_u32 s17, 0')
        e(f's_cselect_b32 s17, 0, {OOB}')
        e(f'v_mov_b32 {v(vT1)}, s17')
        e('s_mov_b64 exec, 1')
        e(f'buffer_store_dword {v(vT0)}, {v(vT1)}, {WS}, s16 offen sc1')
        e('s_mov_b64 exec, -1')
        if self.cfg.diag:
            lab = self.label('diag')
            e(f'{lab}:')
            e('s_memrealtime s[62:63]')
            e('s_waitcnt lgkmcnt(0)')
            e('s_sub_u32 s62, s62, s100')
            e(f's_cmp_lt_u32 s62, {self.cfg.diag}')
            e(f's_cbranch_scc1 {lab}')
        if self.stamping:
            e('s_waitcnt vmcnt(0)')
            self.stamp('done')
            e('s_memrealtime s[62:63]')
            e('s_waitcnt lgkmcnt(0)')
            e('s_mov_b32 s101, s62')
            e('s_lshl_b32 s16, s2, 2')
            e(f's_add_u32 s16, s16, s{sW}')
            e('s_lshl_b32 s16, s16, 8')
            e(f's_add_u32 s16, s16, {STAMP}')
            for i in range(38):
                e(f'v_mov_b32 {v(44 + i)}, s{sSTAMP + i}')
            e('s_mov_b64 exec, 1')
            for i in range(10):
                e(f'buffer_store_dwordx4 {v(44 + 4 * i, 4)}, {v(vL16)}, {WS}, s16 offen offset:{16 * i}')
        e('s_endpgm')
        tails, self.tails = self.tails, []
        for t in tails:
            e.reset()
            e.extend(t)

    def build(self):
        e, cfg = self.e, self.cfg
        self.prologue()
        self.st, self.end_label = ('sc1' if cfg.force_slow else ''), 'Lfast_end'
        self.body()
        e('Lfast_end:')
        e('Lend:')
        e('s_endpgm')
        if cfg.both:
            e.reset()
            e('Lslow:')
            self.st, self.stamping, self.end_label = 'sc1', False, 'Lslow_end'
            self.body()
            e('Lslow_end:')
            e('s_endpgm')
        txt = f'; @launch grid=(256,1,1) block=(256,1,1) lds={LDS_TOTAL}\n'
        txt += '.amdgcn_target "amdgcn-amd-amdhsa--gfx950"\n.text\n' + re.sub(r'; gap \d+\n', '', e.finalize()).replace(' offset:0', '').replace('    ', ' ')
        txt += f""".section .rodata,"a"
.p2align 6
.amdhsa_kernel {NAME}_kernel
  .amdhsa_next_free_vgpr 512
  .amdhsa_next_free_sgpr 102
  .amdhsa_accum_offset 256
  .amdhsa_group_segment_fixed_size 0
  .amdhsa_kernarg_size 96
  .amdhsa_user_sgpr_count 2
  .amdhsa_user_sgpr_kernarg_segment_ptr 1
  .amdhsa_system_sgpr_workgroup_id_x 1
.end_amdhsa_kernel
"""
        return txt


def parse_cfg(args):
    cfg = Cfg()
    for a in args:
        if '=' in a:
            k, val = a.split('=')
            assert hasattr(cfg, k), k
            setattr(cfg, k, val if isinstance(getattr(cfg, k), str) else eval(val))
    return cfg


def build(cfg):
    g = Gen(cfg)
    return g.build(), g.e, g


if __name__ == '__main__':
    txt, e, g = build(parse_cfg(sys.argv[2:]))
    open(sys.argv[1], 'w').write(txt)
    print('instructions', len(e.ins), e.stats, 'bytes', len(txt), 'pending at labels:', e.pending)
```
